```python
import torch

def _softmax(x, axis=-1):
    return torch.softmax(x, dim=axis)
def _gelu(x):
    return torch.nn.functional.gelu(x, approximate="tanh")
def _silu(x):
    return torch.nn.functional.silu(x)
def _sigmoid(x):
    return torch.sigmoid(x)
def _layernorm(x, axis=-1, eps=1e-5):
    m = x.mean(dim=axis, keepdim=True)
    v = x.var(dim=axis, keepdim=True, unbiased=False)
    return (x - m) / torch.sqrt(v + eps)
def _scatter_add(tgt, idx, src, axis=0):
    return tgt.clone().index_add_(axis, idx, src)
def _segment_sum(src, seg, n):
    out = torch.zeros((n,) + src.shape[1:], dtype=src.dtype)
    return out.index_add_(0, seg, src)
def _pad(x, pw):
    flat = tuple(v for pair in reversed(pw) for v in pair)
    return torch.nn.functional.pad(x, flat)

kernel_name = 'concat_heads__spectral_gfnet__ssm_conv_s4__prompt'

def setup_inputs():

    _w = (lambda a: (lambda t: t.to(torch.bfloat16) if t.is_floating_point() else t)(torch.as_tensor(a)))
    def _A_setup():
        B, S, D = 1, 2048, 1024
        Df = D // 2 + 1
        return {
            "x": _w((lambda *s: torch.randn(*s, dtype=torch.bfloat16) * 0.05)(B, S, D)),
            "w_r": _w((lambda *s: torch.randn(*s, dtype=torch.bfloat16) * 1.6)(S, Df) * 0.02),
            "w_i": _w((lambda *s: torch.randn(*s, dtype=torch.bfloat16) * 1.6)(S, Df) * 0.02),
        }
    _A_in = _A_setup()

    def _B_setup():
        B, L, D, N = 1, 2048, 1024, 128
        A_re = -(lambda _x: torch.exp(torch.as_tensor(_x)))((lambda *s: torch.randn(*s, dtype=torch.bfloat16) * 3.2)(D, N))
        A_im = torch.pi * (lambda *s: torch.randn(*s, dtype=torch.bfloat16) * 0.05)(D, N)
        B_re = (lambda *s: torch.randn(*s, dtype=torch.bfloat16) * 0.1)(D, N)
        B_im = (lambda *s: torch.randn(*s, dtype=torch.bfloat16) * 0.1)(D, N)
        C_re = (lambda *s: torch.randn(*s, dtype=torch.bfloat16) * 0.1)(D, N)
        C_im = (lambda *s: torch.randn(*s, dtype=torch.bfloat16) * 0.1)(D, N)
        log_dt = (lambda *s: torch.randn(*s, dtype=torch.bfloat16) * 0.05)(D) * 0.5 - 4.0
        Dskip = (lambda *s: torch.randn(*s, dtype=torch.bfloat16) * 0.05)(D)
        return {
            "u": _w((lambda *s: torch.randn(*s, dtype=torch.bfloat16) * 0.05)(B, L, D)),
            "A_re": _w(A_re),
            "A_im": _w(A_im),
            "B_re": _w(B_re),
            "B_im": _w(B_im),
            "C_re": _w(C_re),
            "C_im": _w(C_im),
            "log_dt": _w(log_dt),
            "Dskip": _w(Dskip),
        }
    _B_in = _B_setup()

    return {
        "A_x": _A_in["x"],
        "A_w_r": _A_in["w_r"],
        "A_w_i": _A_in["w_i"],
        "B_u": _B_in["u"],
        "B_A_re": _B_in["A_re"],
        "B_A_im": _B_in["A_im"],
        "B_B_re": _B_in["B_re"],
        "B_B_im": _B_in["B_im"],
        "B_C_re": _B_in["C_re"],
        "B_C_im": _B_in["C_im"],
        "B_log_dt": _B_in["log_dt"],
        "B_Dskip": _B_in["Dskip"],
    }

def reference(A_x, A_w_r, A_w_i, B_u, B_A_re, B_A_im, B_B_re, B_B_im, B_C_re, B_C_im, B_log_dt, B_Dskip):
    def _A_ref(x, w_r, w_i):
        B, S, D = x.shape
        X = (lambda x, axes=(-2,-1): torch.fft.rfft2(x.float(), dim=axes))(x, axes=(-2, -1))
        W = w_r + 1j * w_i
        X = X * W
        y = (lambda x, s, axes=(-2,-1): torch.fft.irfft2(x, s=s, dim=axes).to(torch.bfloat16))(X, (S, D), axes=(-2, -1))
        return y

    def _B_ref(u, A_re, A_im, B_re, B_im, C_re, C_im, log_dt, Dskip):
        Bsz, L, D = u.shape
        dt = torch.exp(log_dt)[:, None]
        A = A_re + 1j * A_im
        Bc = B_re + 1j * B_im
        Cc = C_re + 1j * C_im
        logdA = dt * A
        dB = dt * Bc
        l = (lambda x, dt: x.to(dt))(torch.arange(L), A_re.dtype)
        P = torch.exp(logdA[:, :, None] * l[None, None, :])
        K = torch.einsum("dn,dnl,dn->dl", Cc, P, dB).real
        L2 = 2 * L
        Kp = _pad(K, ((0, 0), (0, L)))
        up = (lambda x, *d: x.permute(*d))(u, 0, 2, 1)
        up = _pad(up, ((0, 0), (0, 0), (0, L)))
        Kf = (lambda x, axes=(-2,-1): torch.fft.rfft2(x.float(), dim=axes))(Kp[:, None, :], axes=(-2, -1))
        Uf = (lambda x, axes=(-2,-1): torch.fft.rfft2(x.float(), dim=axes))(up[:, :, None, :], axes=(-2, -1))
        Yf = Uf * Kf[None, :, :, :]
        y = (lambda x, s, axes=(-2,-1): torch.fft.irfft2(x, s=s, dim=axes).to(torch.bfloat16))(Yf, (1, L2), axes=(-2, -1))[:, :, 0, :L]
        y = (lambda x, *d: x.permute(*d))(y, 0, 2, 1) + u * Dskip[None, None, :]
        return y

    a = _A_ref(A_x, A_w_r, A_w_i)
    b = _B_ref(B_u, B_A_re, B_A_im, B_B_re, B_B_im, B_C_re, B_C_im, B_log_dt, B_Dskip)
    return torch.concatenate([a, b], axis=-1)
```

```python
import re

def regs_of(tok):
    tok = tok.strip()
    neg = tok.lstrip('-').replace('abs(', '').rstrip(')')
    m = re.fullmatch(r'([vas])\[(\d+):(\d+)\]', neg)
    if m: return {(m.group(1), i) for i in range(int(m.group(2)), int(m.group(3))+1)}
    m = re.fullmatch(r'([vas])(\d+)', neg)
    if m: return {(m.group(1), int(m.group(2)))}
    if neg == 'vcc': return {('s', 'vcc')}
    if neg == 'exec': return {('s', 'exec')}
    if neg == 'm0': return {('s', 'm0')}
    return set()

TRANS = ('v_exp_f32', 'v_log_f32', 'v_rcp_f32', 'v_rsq_f32', 'v_sqrt_f32', 'v_sin_f32', 'v_cos_f32')
NODST_S = ('s_cmp', 's_waitcnt', 's_barrier', 's_branch', 's_cbranch', 's_nop', 's_sleep', 's_setprio', 's_endpgm', 's_bitcmp', 's_setpc')

class Inst:
    def __init__(self, text):
        self.text = text
        t = text.split(';')[0].strip()
        self.label = t.endswith(':')
        self.directive = t.startswith('.')
        self.wr = set(); self.rd = set(); self.kind = 'x'; self.srcC = set(); self.srcAB = set(); self.passes = 0
        self.states = 1
        if self.label or self.directive or not t:
            self.states = 0; self.mn = ''; return
        parts = t.split(None, 1)
        self.mn = mn = parts[0]
        ops = []
        if len(parts) > 1:
            body = parts[1]
            toks = [x.strip() for x in re.split(r',(?![^\[]*\])', body)]
            last = toks[-1].split()
            toks[-1] = last[0] if last else ''
            ops = toks
        R = [regs_of(o) for o in ops]
        allr = lambda l: set().union(*l) if l else set()
        if mn.startswith('v_mfma'):
            self.kind = 'mfma'; self.wr = R[0]; self.srcAB = R[1] | R[2]; self.srcC = R[3]; self.rd = allr(R[1:])
            self.passes = 8 if '32x32' in mn else 4
        elif mn.startswith('v_'):
            self.kind = 'valu'; self.wr = set(R[0]); self.rd = allr(R[1:])
            if mn.startswith(('v_fmac', 'v_permlane', 'v_writelane', 'v_swap')) or 'dpp' in mn: self.rd |= R[0]
            if mn.startswith(('v_permlane', 'v_swap')): self.wr |= R[1]
            if '_co_' in mn: self.wr |= R[1]
            if mn.startswith('v_cndmask') and len(ops) == 3: self.rd |= {('s', 'vcc')}
        elif mn.startswith('ds_'):
            self.kind = 'ds'
            if mn.startswith(('ds_read', 'ds_bpermute', 'ds_permute', 'ds_swizzle')) or '_rtn' in mn:
                self.wr = R[0]; self.rd = allr(R[1:])
            else: self.rd = allr(R)
            if 'addtid' in mn: self.rd = self.rd | {('s', 'm0')}
        elif mn.startswith(('global_', 'buffer_')):
            self.kind = 'vmem'
            if '_lds_' in mn or re.search(r'\blds\b', t): self.rd = allr(R) | {('s', 'm0')}
            elif '_load_' in mn:
                self.wr = R[0]; self.rd = allr(R[1:])
                if 'd16' in mn: self.rd |= R[0]
            else:
                self.rd = allr(R)
                self.wide = R[0 if mn.startswith('buffer') else 1] if ('x4' in mn or 'x3' in mn) else set()
        elif mn.startswith('s_'):
            self.kind = 'salu'
            if mn.startswith(('s_load', 's_memtime', 's_memrealtime')):
                self.kind = 'smem'; self.wr = R[0]; self.rd = allr(R[1:])
            elif mn.startswith(NODST_S): self.rd = allr(R)
            else: self.wr = R[0]; self.rd = allr(R[1:])
            if mn == 's_nop': self.states = int(ops[0]) + 1
            if 'saveexec' in mn: self.wr |= {('s', 'exec')}
        else:
            raise ValueError(text)

def need(p, c):
    n = 0
    V = lambda s: {r for r in s if r[0] in 'va'}
    S = lambda s: {r for r in s if r[0] == 's'}
    if p.kind == 'valu':
        w = V(p.wr)
        if c.kind == 'mfma' and w & c.rd: n = max(n, 2)
        if c.kind == 'valu':
            if p.mn in TRANS and c.mn not in TRANS and w & c.rd: n = max(n, 1)
            if c.mn.startswith(('v_readlane', 'v_readfirstlane')) and w & c.rd: n = max(n, 1)
            if ('dpp' in c.mn or c.mn.startswith('v_permlane')) and w & c.rd: n = max(n, 2)
        sw = S(p.wr)
        if sw:
            if c.kind == 'valu' and sw & c.rd: n = max(n, 4 if c.mn.startswith(('v_readlane', 'v_writelane')) else 2)
            if c.kind == 'vmem' and sw & c.rd: n = max(n, 5)
            if c.kind in ('salu', 'smem') and sw & c.rd: n = max(n, 2)
            if ('s', 'exec') in sw and c.kind != 'salu': n = max(n, 5)
    if p.kind == 'mfma':
        big = 12 if p.passes == 8 else 8
        if c.kind == 'mfma':
            if p.wr & c.srcAB: n = max(n, big)
            if p.wr & c.srcC and not (p.wr == c.srcC and p.passes == c.passes): n = max(n, big-2)
            if p.wr & c.wr and not (p.wr == c.srcC and p.passes == c.passes): n = max(n, big-2)
        elif c.kind in ('valu', 'ds', 'vmem'):
            if p.wr & (c.rd | c.wr): n = max(n, big)
            if c.kind == 'valu' and p.srcC & c.wr: n = max(n, 7 if p.passes == 8 else 3)
    if p.kind == 'vmem' and getattr(p, 'wide', None) and p.wide & c.wr: n = max(n, 2)
    if p.kind == 'salu' and ('s', 'm0') in p.wr and ('s', 'm0') in c.rd and c.kind != 'salu': n = max(n, 1)
    return n

class Prog:
    def __init__(self): self.ins = []
    def __call__(self, text):
        for l in text.split('\n'):
            l = l.strip()
            if l: self.ins.append(Inst(l))
    def pad(self):
        out = []; padded = 0
        for c in self.ins:
            if c.states and c.mn != 's_nop':
                want = 0; dist = 0
                for p in reversed(out):
                    if dist >= 20: break
                    if p.states:
                        want = max(want, need(p, c) - dist)
                        dist += p.states
                if want > 0:
                    out.append(Inst(f's_nop {want-1}')); padded += want
            out.append(c)
        self.ins = out
        return padded
    def verify(self):
        vm = []; lg = []; errs = []
        for i, c in enumerate(self.ins):
            if not c.states: continue
            touched = c.rd | c.wr
            if c.mn == 's_waitcnt':
                m = re.search(r'vmcnt\((\d+)\)', c.text)
                if m: n = int(m.group(1)); vm = vm[len(vm)-n:] if n < len(vm) and n else ([] if n == 0 else vm)
                m = re.search(r'lgkmcnt\((\d+)\)', c.text)
                if m:
                    n = int(m.group(1))
                    if n == 0: lg = []
                    else:
                        sm = [x for x in lg if x[0] == 'smem']; ds = [x for x in lg if x[0] != 'smem']
                        lg = sm + (ds[len(ds)-n:] if n < len(ds) else ds)
                continue
            for q in (vm, [x[1] for x in lg]):
                for w in q:
                    if w & touched and not ('d16' in c.mn and c.kind == 'vmem') and 'nocheck' not in c.text:
                        errs.append(f'line {i}: {c.text} touches pending {sorted(w & touched)[:3]}')
            if c.kind == 'vmem':
                vm.append(c.wr)
                if len(vm) > 63: errs.append(f'line {i}: vmcnt overflow')
            if c.kind in ('ds', 'smem'):
                lg.append((c.kind, c.wr))
        return errs
    def text(self):
        return '\n'.join(('' if c.label else '    ') + c.text for c in self.ins) + '\n'

class Alloc:
    def __init__(self, kind, n, start=0):
        self.kind = kind; self.free = [True]*n; self.names = {}; self.hi = 0
        for i in range(start): self.free[i] = False
    def get(self, n=1, align=None, name=None):
        align = align or (1 if n == 1 else (2 if self.kind != 's' or n == 2 else 4))
        for b in range(0, len(self.free)-n+1, align):
            if all(self.free[b:b+n]):
                for i in range(b, b+n): self.free[i] = False
                self.hi = max(self.hi, b+n)
                return Reg(self.kind, b, n)
        raise RuntimeError(f'out of {self.kind} regs for {name} n={n}')
    def put(self, *rs):
        for r in rs:
            for i in range(r.b, r.b+r.n):
                assert not self.free[i]; self.free[i] = True

class Reg:
    def __init__(self, k, b, n): self.k = k; self.b = b; self.n = n
    def __getitem__(self, i):
        if isinstance(i, slice):
            a = i.start or 0; z = i.stop if i.stop is not None else self.n
            assert 0 <= a < z <= self.n, (a, z, self.n)
            return Reg(self.k, self.b+a, z-a)
        assert 0 <= i < self.n, (i, self.n)
        return Reg(self.k, self.b+i, 1)
    def __str__(self):
        return f'{self.k}{self.b}' if self.n == 1 else f'{self.k}[{self.b}:{self.b+self.n-1}]'
    __repr__ = __str__
    def __format__(self, spec): return str(self)
```

```python
import sys, math, struct
from dsl import *

NAME = "concat_heads__spectral_gfnet__ssm_conv_s4__prompt"
def fl(x): return hex(struct.unpack('<I', struct.pack('<f', x))[0])

T1, T2, TU, T1X, WX, EOFF, DBG = 0, 4 << 20, 8 << 20, 12 << 20, (12 << 20) + (64 << 10), (12 << 20) + (128 << 10), 16 << 20
A0, PL = 0, 4608
US = 18432; EX = US
WS = 34816; YS = WS; YST = 4128
BB, BW = 51456, 23040
KT, KC, UZ = 256, 256 + 16896, 256 + 16896 + 1280
UT = UZ + 512
LDS_BYTES = BB + 4*BW
SPIN_MAX = 4000

class Gen:
    def __init__(self, stamps=False, opts=None):
        self.p = Prog(); self.V = Alloc('v', 256, 1); self.A = Alloc('a', 256); self.S = Alloc('s', 100, 32)
        self.stamps = stamps; self.nst = 0; self.o = opts or {}; self.stn = []
        self.lbl = 0
    def stamp(self, name):
        if not self.stamps: return
        r = self.S.get(2); self.stn.append((name, r))
        self.p(f's_memrealtime {r}\ns_waitcnt lgkmcnt(0)')
    def label(self, base):
        self.lbl += 1; return f'L{base}{self.lbl}'
    def addr64(self, dst, base, off):
        self.p(f's_add_u32 {dst[0]}, {base[0]}, {off}\ns_addc_u32 {dst[1]}, {base[1]}, 0')

    def prologue(self):
        p, V, S = self.p, self.V, self.S
        P = lambda b: Reg('s', b, 2)
        self.x, self.wr, self.wi, self.u = P(4), P(6), P(8), P(10)
        self.par = [P(12), P(14), P(16), P(18), P(20), P(22)]
        self.ldt, self.dsk, self.out, self.ws = P(24), P(26), P(28), P(30)
        self.sV, self.sC, self.sR, self.sG = S.get(), S.get(), S.get(), S.get()
        self.L = L = V.get(); t = V.get()
        self.st0, self.st1 = S.get(), S.get(); self.sa = S.get(2); self.sb = S.get(2)
        st0, st1, sa, sb = self.st0, self.st1, self.sa, self.sb
        sV, sC, sR, sG = self.sV, self.sC, self.sR, self.sG
        p(f'''s_cmp_ge_u32 s2, 256
        s_cbranch_scc1 L_end
        s_load_dwordx16 s[4:19], s[0:1], 0
        s_load_dwordx8 s[20:27], s[0:1], 64
        s_load_dwordx2 s[28:29], s[0:1], 96
        s_load_dwordx2 s[30:31], s[0:1], 112
        v_lshrrev_b32 {t}, 6, v0
        v_and_b32 {L}, 63, v0
        v_readfirstlane_b32 {sV}, {t}
        s_and_b32 {sC}, s2, 7
        s_lshl_b32 {sC}, {sC}, 5
        s_lshr_b32 {st0}, s2, 3
        s_add_u32 {sC}, {sC}, {st0}
        s_lshr_b32 {sR}, {sC}, 6
        s_and_b32 {sG}, {sC}, 63''')
        self.L16 = V.get()
        p(f'v_lshlrev_b32 {self.L16}, 4, {L}')
        p(f'''s_lshl_b32 {st0}, {sV}, 8
        s_add_u32 {st0}, {st0}, {sC}
        s_lshl_b32 {st0}, {st0}, 12
        s_mul_i32 {st1}, {sV}, {PL}
        s_mov_b32 m0, {st1}
        s_waitcnt lgkmcnt(0)''')
        self.stamp('karg')
        self.addr64(sa, self.x, st0)
        self.sE = S.get(); self.sLD = S.get(); self.sDS = S.get()
        p(f'''global_load_lds_dwordx4 {self.L16}, {sa}
        global_load_lds_dwordx4 {self.L16}, {sa} offset:1024
        s_add_u32 m0, {st1}, 128
        s_load_dword {self.sE}, {self.ws}, {EOFF & 0xfffff}  ; placeholder
        global_load_lds_dwordx4 {self.L16}, {sa} offset:2048
        global_load_lds_dwordx4 {self.L16}, {sa} offset:3072''')
        self.p.ins = [i for i in self.p.ins if 'placeholder' not in i.text]
        self.addr64(sb, self.ws, EOFF)
        p(f's_load_dword {self.sE}, {sb}, 0')
        self.sD = S.get()
        self.PR = V.get(6)
        p(f'''s_lshl_b32 {self.sD}, {sC}, 2
        s_add_u32 {self.sD}, {self.sD}, {sV}
        s_lshl_b32 {st0}, {self.sD}, 8
        v_lshl_add_u32 {t}, {L}, 2, {st0}
        s_lshr_b32 {st1}, {self.sD}, 1
        s_lshl_b32 {st1}, {st1}, 2
        s_load_dword {self.sLD}, {self.ldt}, {st1}
        s_load_dword {self.sDS}, {self.dsk}, {st1}''')
        for i in range(6): p(f'global_load_dword {self.PR[i]}, {t}, {self.par[i]}')
        t2 = V.get()
        p(f'''v_lshrrev_b32 {t}, 3, {L}
        v_and_b32 {t2}, 7, {L}
        v_lshlrev_b32 {t2}, 4, {t2}
        v_lshl_add_u32 {t}, {t}, 11, {t2}
        s_and_b32 {st0}, {sC}, 15
        s_lshl_b32 {st0}, {st0}, 2
        s_add_u32 {st0}, {st0}, {sV}
        s_lshl_b32 {st0}, {st0}, 16
        s_lshr_b32 {st1}, {sC}, 4
        s_lshl_b32 {st1}, {st1}, 7
        s_add_u32 {st0}, {st0}, {st1}''')
        self.addr64(sa, self.u, st0)
        p(f's_lshl_b32 {st1}, {sV}, 12\ns_add_u32 {st1}, {st1}, {US}')
        for i in range(4):
            p(f's_add_u32 m0, {st1}, {1024*i}')
            if i: self.addr64(sa, sa, 16384)
            p(f'global_load_lds_dwordx4 {t}, {sa}')
        self.WXV = V.get()
        lb = self.label('nowx')
        t3 = V.get()
        p(f'''v_bfe_u32 {t}, {L}, 2, 1
        v_lshlrev_b32 {t}, 10, {t}
        v_lshrrev_b32 {t2}, 4, {L}
        v_add_u32 {t}, {t}, {t2}
        s_lshl_b32 {st0}, {sC}, 2
        v_add_u32 {t}, {st0}, {t}
        v_sub_u32 {t2}, 0x800, {t}
        v_and_b32 {t2}, 0x7ff, {t2}
        v_and_b32 {t3}, 1, {L}
        v_cmp_eq_u32 vcc, 1, {t3}
        v_cndmask_b32 {t}, {t}, {t2}, vcc
        v_mul_u32_u24 {t}, 1026, {t}
        v_bfe_u32 {t2}, {L}, 3, 1
        v_lshl_add_u32 {t}, {t2}, 10, {t}
        s_mov_b32 exec_lo, 0x33333333
        s_mov_b32 exec_hi, 0x33333333
        global_load_ushort {self.WXV}, {t}, {self.wr}
        s_not_b64 exec, exec
        global_load_ushort {self.WXV}, {t}, {self.wi} ; nocheck
        s_mov_b64 exec, -1''')
        self.WL = V.get(16)
        p(f'''v_and_b32 {t}, 15, {L}
        v_lshrrev_b32 {t2}, 4, {L}
        v_lshlrev_b32 {t2}, 8, {t2}
        v_lshl_add_u32 {t}, {t}, 2, {t2}
        v_mul_u32_u24 {t}, 1026, {t}
        s_bitcmp1_b32 {sV}, 0
        s_cselect_b32 {sa[0]}, {self.wi[0]}, {self.wr[0]}
        s_cselect_b32 {sa[1]}, {self.wi[1]}, {self.wr[1]}
        s_lshr_b32 {st0}, {sV}, 1
        s_lshl_b32 {st0}, {st0}, 10
        s_add_u32 {st0}, {st0}, {sR}
        s_mul_i32 {st0}, {st0}, 1026
        s_lshl_b32 {st1}, {sG}, 4
        s_add_u32 {st0}, {st0}, {st1}''')
        self.addr64(sa, sa, st0)
        for i in range(4):
            if i: self.addr64(sa, sa, 64*1026)
            p(f'global_load_dwordx4 {self.WL[4*i:4*i+4]}, {t}, {sa}')
        V.put(t, t2, t3)

    def consts1(self):
        p, V, A, S, L = self.p, self.V, self.A, self.S, self.L
        self.CFr, self.CFi = A.get(16), A.get(16)
        self.TWc, self.TWs = V.get(16), V.get(16)
        k, b, an, c, s, d = V.get(), V.get(), V.get(), V.get(), V.get(), V.get()
        self.PI = V.get()
        self.H = V.get()
        p(f'''v_and_b32 {k}, 0x13, {L}
        v_bfe_u32 {b}, {L}, 2, 1
        v_lshl_or_b32 {k}, {b}, 3, {k}
        v_bfe_u32 {b}, {L}, 3, 1
        v_lshl_or_b32 {self.PI}, {b}, 2, {k}
        v_lshrrev_b32 {self.H}, 5, {L}
        v_cvt_f32_u32 {k}, {self.PI}
        v_cvt_f32_u32 {b}, {self.H}
        v_mul_f32 {k}, {fl(1/32)}, {k}
        v_mul_f32 {b}, {b}, {k}
        v_mul_f32 {b}, 4.0, {b}''')
        for f in range(4):
            for jj in range(4):
                i = 4*f + jj
                p(f'''v_fmamk_f32 {an}, {k}, {fl(8*f+jj)}, {b}
                v_cos_f32 {c}, {an}
                v_sin_f32 {s}, {an}
                v_mul_f32 {an}, {fl(1/32)}, {an}
                v_cvt_pk_bf16_f32 {d}, {c}, {s}
                v_cos_f32 {self.TWc[i]}, {an}
                v_accvgpr_write_b32 {self.CFr[i]}, {d}
                v_cvt_pk_bf16_f32 {d}, -{s}, {c}
                v_sin_f32 {self.TWs[i]}, {an}
                v_accvgpr_write_b32 {self.CFi[i]}, {d}''')
        self.R4a, self.R4b = A.get(4), A.get(4)
        m1, m2 = S.get(2), S.get(2)
        sg = V.get()
        p(f'''v_bfe_u32 {k}, {L}, 2, 2
        v_cvt_f32_u32 {k}, {k}
        v_mul_f32 {k}, {fl(1/1024)}, {k}
        v_cvt_f32_u32 {b}, {self.sC}
        v_mul_f32 {b}, {b}, {k}
        v_and_b32 {c}, 1, {L}
        v_cvt_f32_u32 {c}, {c}
        v_fmamk_f32 {b}, {c}, {fl(0.25)}, {b}
        v_lshlrev_b32 {sg}, 30, {L}
        v_and_b32 {sg}, 0x80000000, {sg}
        v_and_b32 {c}, 2, {L}
        v_lshrrev_b32 {s}, 4, {L}
        v_cmp_eq_u32 {m1}, {c}, {s}
        v_add_u32 {c}, 1, {c}
        v_cmp_eq_u32 {m2}, {c}, {s}''')
        for m in range(4):
            p(f'''v_fmamk_f32 {an}, {k}, {fl(256*m)}, {b}
            v_cos_f32 {c}, {an}
            v_sin_f32 {s}, {an}
            v_xor_b32 {s}, {sg}, {s}
            v_cvt_pk_bf16_f32 {d}, {c}, {s}
            v_cndmask_b32 {c}, 0, {d}, {m1}
            v_cndmask_b32 {s}, 0, {d}, {m2}
            v_accvgpr_write_b32 {self.R4a[m]}, {c}
            v_accvgpr_write_b32 {self.R4b[m]}, {s}''')
        S.put(m1, m2); V.put(sg)
        self.aXR = V.get(); self.aZW = V.get(); self.aZR = V.get(4); self.aC = V.get(); self.aZX = V.get()
        st0 = self.st0
        p(f'''s_mul_i32 {st0}, {self.sV}, {PL}
        v_bfe_u32 {k}, {L}, 2, 1
        v_mul_u32_u24 {k}, 2176, {k}
        v_bfe_u32 {b}, {L}, 3, 1
        v_lshl_add_u32 {b}, {self.H}, 2, {b}
        v_lshl_add_u32 {k}, {b}, 6, {k}
        v_bfe_u32 {b}, {L}, 4, 1
        v_lshl_add_u32 {k}, {b}, 5, {k}
        v_and_b32 {b}, 3, {L}
        v_lshl_add_u32 {k}, {b}, 3, {k}
        v_add_u32 {self.aXR}, {st0}, {k}
        v_and_b32 {k}, 31, {L}
        v_mul_u32_u24 {k}, 144, {k}
        v_lshl_add_u32 {k}, {self.H}, 5, {k}
        v_add_u32 {self.aZW}, {st0}, {k}
        v_and_b32 {k}, 15, {L}
        v_lshlrev_b32 {k}, 1, {k}
        v_bfe_u32 {b}, {L}, 4, 1
        v_add_u32 {k}, {k}, {b}
        s_lshl_b32 {st0}, {self.sV}, 7
        v_add_u32 {k}, {st0}, {k}
        v_cmp_lt_u32 vcc, 31, {L}''')
        def zaddr(dst, q):
            p(f'''v_lshrrev_b32 {c}, 5, {q}
            v_and_b32 {s}, 0x13, {c}
            v_bfe_u32 {d}, {c}, 2, 1
            v_lshl_or_b32 {s}, {d}, 3, {s}
            v_bfe_u32 {d}, {c}, 3, 1
            v_lshl_or_b32 {s}, {d}, 2, {s}
            v_mul_u32_u24 {s}, 144, {s}
            v_and_b32 {c}, 31, {q}
            v_lshl_add_u32 {dst}, {c}, 2, {s}''')
        m1 = S.get(2)
        for t in range(4):
            p(f'''v_add_u32 {b}, {32*t}, {k}
            v_sub_u32 {an}, 0x400, {b}''')
            if t == 0:
                p(f'''v_cmp_eq_u32 {m1}, 0, {b}
                v_mov_b32 {c}, 0x200
                v_cndmask_b32 {an}, {an}, {c}, {m1}''')
            p(f'v_cndmask_b32 {b}, {b}, {an}, vcc')
            zaddr(self.aZR[t], b)
        S.put(m1)
        p(f'''v_mov_b32 {c}, {16*144}
        v_cndmask_b32 {self.aZX}, {c}, 0, vcc
        v_lshrrev_b32 {k}, 4, {L}
        v_bfe_u32 {b}, {L}, 2, 2
        v_lshl_add_u32 {k}, {k}, 6, {b}
        v_and_b32 {b}, 3, {L}
        v_lshlrev_b32 {b}, 4, {b}
        v_lshl_add_u32 {self.aC}, {k}, 14, {b}''')
        V.put(k, b, an, c, s, d)
        self.TG = S.get(4); self.sN = S.get(); self.MK = V.get()
        st0, st1, sE = self.st0, self.st1, self.sE
        p(f'''v_mov_b32 {self.MK}, 0xfffefffe
        s_waitcnt lgkmcnt(0)
        s_not_b32 {self.sN}, {sE}
        s_mul_i32 {st0}, {sE}, 0x9e3779b1
        s_lshr_b32 {st1}, {st0}, 15
        s_and_b32 {self.TG[1]}, {st1}, 0x10001
        s_lshr_b32 {st1}, {st0}, 14
        s_and_b32 {self.TG[2]}, {st1}, 0x10001
        s_lshr_b32 {st1}, {st0}, 13
        s_and_b32 {self.TG[3]}, {st1}, 0x10001
        s_lshr_b32 {st1}, {st0}, 12
        s_and_b32 {st1}, {st1}, 0x10000
        s_and_b32 {self.TG[0]}, {self.sN}, 1
        s_or_b32 {self.TG[0]}, {self.TG[0]}, {st1}''')

    def fft1024(self, FA, Dr, Di):
        p, V = self.p, self.V
        for f in range(4):
            p(f'v_mfma_f32_32x32x16_bf16 {Dr}, {FA[4*f:4*f+4]}, {self.CFr[4*f:4*f+4]}, {Dr if f else 0}')
            p(f'v_mfma_f32_32x32x16_bf16 {Di}, {FA[4*f:4*f+4]}, {self.CFi[4*f:4*f+4]}, {Di if f else 0}')
        self.twiddle(Dr, Di, self.TWc, self.TWs, FA)
        for f in range(4):
            p(f'v_mfma_f32_32x32x16_bf16 {Dr}, {FA[4*f:4*f+4]}, {self.CFr[4*f:4*f+4]}, {Dr if f else 0}')
            p(f'v_mfma_f32_32x32x16_bf16 {Di}, {FA[4*f:4*f+4]}, {self.CFi[4*f:4*f+4]}, {Di if f else 0}')
    def twiddle(self, Dr, Di, Tc, Ts, F):
        p, V = self.p, self.V
        T = V.get(8)
        n = Dr.n//2
        for k0 in range(0, n, 2):
            ks = (k0, k0+1)
            tt = {k: (T[4*(k-k0):4*(k-k0)+2], T[4*(k-k0)+2:4*(k-k0)+4]) for k in ks}
            s2 = lambda R, k: R[(2*k) % R.n:(2*k) % R.n+2]
            for k in ks: p(f'v_pk_mul_f32 {tt[k][0]}, {s2(Dr,k)}, {s2(Tc,k)}\nv_pk_mul_f32 {tt[k][1]}, {s2(Di,k)}, {s2(Tc,k)}')
            for k in ks: p(f'v_pk_fma_f32 {tt[k][0]}, {s2(Di,k)}, {s2(Ts,k)}, {tt[k][0]}\nv_pk_fma_f32 {tt[k][1]}, {s2(Dr,k)}, {s2(Ts,k)}, {tt[k][1]} neg_lo:[1,0,0] neg_hi:[1,0,0]')
            for k in ks:
                for e in range(2): p(f'v_cvt_pk_bf16_f32 {F[2*k+e]}, {tt[k][0][e]}, {tt[k][1][e]}')
        V.put(T)
    def fft256(self, F, Dr, Di):
        p = self.p; n = F.n//4
        q = lambda R, s: R[4*s:4*s+4]
        for s in range(n):
            p(f'v_mfma_f32_16x16x32_bf16 {q(Dr,s)}, {q(F,s)}, {self.C16r}, 0\nv_mfma_f32_16x16x32_bf16 {q(Di,s)}, {q(F,s)}, {self.C16i}, 0')
        self.twiddle(Dr, Di, self.T16c, self.T16s, F)
        for s in range(n):
            p(f'v_mfma_f32_16x16x32_bf16 {q(Dr,s)}, {self.C16r}, {q(F,s)}, 0\nv_mfma_f32_16x16x32_bf16 {q(Di,s)}, {self.C16i}, {q(F,s)}, 0')
    def tag4(self, R):
        for d in range(4): self.p(f'v_bfi_b32 {R[d]}, {self.MK}, {R[d]}, {self.TG[d]}')
    def check16(self, R, acc, t):
        p = self.p
        for d in range(4):
            p(f'v_bitop3_b32 {t[0]}, {R[d]}, {R[4+d]}, {self.TG[d]} bitop3:0x7e')
            p(f'v_bitop3_b32 {t[1]}, {R[8+d]}, {R[12+d]}, {self.TG[d]} bitop3:0x7e')
            p(f'v_or3_b32 {acc}, {t[0]}, {t[1]}, {acc if d else 0}')
        p(f'v_and_b32 {acc}, 0x10001, {acc}\nv_cmp_ne_u32 vcc, 0, {acc}')
    def poll(self, issue, check, first_wait):
        p = self.p; ok, re_ = self.label('ok'), self.label('re')
        cnt = self.st1
        p(f's_waitcnt vmcnt({first_wait})')
        check()
        p(f's_cbranch_vccz {ok}\ns_movk_i32 {cnt}, {SPIN_MAX}\n{re_}:\ns_sleep 4')
        issue()
        p('s_waitcnt vmcnt(0)')
        check()
        p(f's_cbranch_vccz {ok}\ns_sub_u32 {cnt}, {cnt}, 1\ns_cmp_lg_u32 {cnt}, 0\ns_cbranch_scc1 {re_}\n{ok}:')

    def phase1(self, vm_after_x):
        p, V, S = self.p, self.V, self.S
        FA, Dr, Di = V.get(16), V.get(16), V.get(16)
        p(f's_waitcnt vmcnt({vm_after_x})')
        self.stamp('xland')
        for f in range(4):
            for t in range(2): p(f'ds_read_b64_tr_b16 {FA[4*f+2*t:4*f+2*t+2]}, {self.aXR} offset:{512*f+128*t}')
        p('s_waitcnt lgkmcnt(0)')
        self.fft1024(FA, Dr, Di)
        for g in range(4):
            for jj in range(4): p(f'v_cvt_pk_bf16_f32 {FA[4*g+jj]}, {Dr[4*g+jj]}, {Di[4*g+jj]}')
            p(f'ds_write_b128 {self.aZW}, {FA[4*g:4*g+4]} offset:{64*(g>>1)+16*(g&1)}')
        sa, st0, st1 = self.sa, self.st0, self.st1
        p(f'''s_lshl_b32 {st0}, {self.sV}, 18
        s_lshl_b32 {st1}, {self.sC}, 6
        s_add_u32 {st0}, {st0}, {st1}''')
        self.addr64(sa, self.ws, st0)
        p('s_waitcnt lgkmcnt(0)\ns_barrier')
        for t in range(4):
            p(f'ds_read2st64_b32 {FA[4*t:4*t+2]}, {self.aZR[t]} offset0:0 offset1:18\nds_read2st64_b32 {FA[4*t+2:4*t+4]}, {self.aZR[t]} offset0:36 offset1:54')
        for t in range(4):
            p(f's_waitcnt lgkmcnt({6-2*t})')
            p(f'v_mfma_f32_16x16x32_bf16 {Dr[4*t:4*t+4]}, {self.R4a}, {FA[4*t:4*t+4]}, 0\nv_mfma_f32_16x16x32_bf16 {Di[4*t:4*t+4]}, {self.R4b}, {FA[4*t:4*t+4]}, 0')
        for t in range(4):
            o = FA[4*t:4*t+4]
            p(f'''v_cvt_pk_bf16_f32 {o[0]}, {Dr[4*t]}, {Dr[4*t+1]}
            v_cvt_pk_bf16_f32 {o[1]}, {Dr[4*t+2]}, {Dr[4*t+3]}
            v_cvt_pk_bf16_f32 {o[2]}, {Di[4*t]}, {Di[4*t+1]}
            v_cvt_pk_bf16_f32 {o[3]}, {Di[4*t+2]}, {Di[4*t+3]}''')
            self.tag4(o)
            if t: self.addr64(sa, sa, 4*16384)
            p(f'global_store_dwordx4 {self.aC}, {o}, {sa} sc1')
        self.stamp('t1st')
        l0, l1 = self.label('x0'), self.label('x1')
        t = Dr
        p(f'''s_cmp_lg_u32 {self.sV}, 0
        s_cbranch_scc1 {l0}
        ds_read2st64_b32 {t[0:2]}, {self.aZX} offset0:0 offset1:18
        ds_read2st64_b32 {t[2:4]}, {self.aZX} offset0:36 offset1:54
        v_lshrrev_b32 {t[8]}, 4, {self.L}
        v_lshlrev_b32 {t[8]}, 12, {t[8]}
        s_lshl_b32 {st0}, {self.sC}, 4
        s_add_u32 {st0}, {st0}, {T1X}''')
        self.addr64(sa, self.ws, st0)
        p(f'''s_waitcnt lgkmcnt(0)
        v_mfma_f32_16x16x32_bf16 {t[4:8]}, {self.R4a}, {t[0:4]}, 0
        v_cvt_pk_bf16_f32 {t[0]}, {t[4]}, {t[5]}
        v_cvt_pk_bf16_f32 {t[2]}, {t[6]}, {t[7]}
        v_mov_b32 {t[1]}, {self.sN}
        v_mov_b32 {t[3]}, {self.sN}
        s_mov_b32 exec_lo, 0x00010001
        s_mov_b32 exec_hi, 0x00010001
        global_store_dwordx4 {t[8]}, {t[0:4]}, {sa} sc1
        s_mov_b64 exec, -1
        s_branch {l1}
        {l0}:
        s_waitcnt vmcnt(8)
        v_lshlrev_b32 {t[10]}, 16, {self.WXV}
        v_and_b32 {t[11]}, 3, {self.L}
        v_cmp_eq_u32 vcc, 3, {t[11]}
        v_cndmask_b32 {t[10]}, {t[10]}, -{t[10]}, vcc
        v_add_f32_dpp {t[11]}, {t[10]}, {t[10]} quad_perm:[1,0,3,2] row_mask:0xf bank_mask:0xf
        v_mul_f32 {t[11]}, 0.5, {t[11]}
        v_mov_b32_dpp {t[10]}, {t[11]} quad_perm:[2,3,0,1] row_mask:0xf bank_mask:0xf
        v_cvt_pk_bf16_f32 {t[10]}, {t[11]}, {t[10]}
        v_and_b32 {t[12]}, 1, {self.L}
        v_cmp_eq_u32 vcc, 1, {t[12]}
        v_mov_b32 {t[11]}, {self.sN}
        v_cndmask_b32 {t[10]}, {t[10]}, {t[11]}, vcc
        v_bfe_u32 {t[11]}, {self.L}, 2, 2
        v_lshlrev_b32 {t[11]}, 3, {t[11]}
        v_lshl_add_u32 {t[11]}, {t[12]}, 2, {t[11]}
        v_lshrrev_b32 {t[12]}, 4, {self.L}
        v_lshl_add_u32 {t[11]}, {t[12]}, 13, {t[11]}
        s_lshl_b32 {st0}, {self.sC}, 5
        s_add_u32 {st0}, {st0}, {WX}''')
        self.addr64(sa, self.ws, st0)
        p(f'''s_mov_b32 exec_lo, 0x33333333
        s_mov_b32 exec_hi, 0x33333333
        global_store_dword {t[11]}, {t[10]}, {sa} sc1
        s_mov_b64 exec, -1
        {l1}:''')
        V.put(FA, Dr, Di, self.aXR, self.aZW, self.aZR, self.aZX, self.WXV)
        self.A.put(self.R4a, self.R4b)

    def wstage(self):
        p, V = self.p, self.V
        a = V.get()
        p(f's_lshl_b32 {self.st0}, {self.sV}, 10\ns_add_u32 {self.st0}, {self.st0}, {WS}\nv_add_u32 {a}, {self.st0}, {self.L16}')
        for rho in range(4):
            for s in range(4): p(f'ds_write_b32 {a}, {self.WL[4*rho+s]} offset:{4096*s+4*rho}')
        p('s_waitcnt lgkmcnt(0)\ns_barrier')
        V.put(a)
    def consts2(self):
        p, V, A, L = self.p, self.V, self.A, self.L
        self.C16r, self.C16i = A.get(4), A.get(4)
        self.T16c, self.T16s, self.Cm, self.Sm = V.get(4), V.get(4), V.get(4), V.get(4)
        k, b, an, c, s, d = V.get(), V.get(), V.get(), V.get(), V.get(), V.get()
        self.L15 = V.get(); self.GK = V.get()
        p(f'''v_and_b32 {self.L15}, 15, {L}
        v_lshrrev_b32 {self.GK}, 4, {L}
        v_cvt_f32_u32 {k}, {self.L15}
        v_cvt_f32_u32 {b}, {self.GK}
        v_mul_f32 {k}, {fl(1/16)}, {k}
        v_mul_f32 {d}, {b}, {k}
        v_mul_f32 {d}, 4.0, {d}''')
        e = V.get()
        for jj in range(4):
            p(f'''v_fmamk_f32 {an}, {k}, {fl(jj)}, {d}
            v_cos_f32 {c}, {an}
            v_sin_f32 {s}, {an}
            v_mul_f32 {an}, {fl(1/16)}, {an}
            v_cvt_pk_bf16_f32 {e}, {c}, {s}
            v_cos_f32 {self.T16c[jj]}, {an}
            v_accvgpr_write_b32 {self.C16r[jj]}, {e}
            v_cvt_pk_bf16_f32 {e}, -{s}, {c}
            v_sin_f32 {self.T16s[jj]}, {an}
            v_accvgpr_write_b32 {self.C16i[jj]}, {e}''')
        p(f'''v_lshlrev_b32 {c}, 8, {self.GK}
        v_lshl_add_u32 {c}, {self.L15}, 2, {c}
        v_add_u32 {c}, {self.sR}, {c}
        v_cvt_f32_u32 {c}, {c}
        v_mul_f32 {c}, {fl(1/2048)}, {c}''')
        for rho in range(4):
            p(f'''v_add_f32 {an}, {fl(rho/32)}, {c}
            v_sin_f32 {self.Cm[rho]}, {an}
            v_cos_f32 {self.Sm[rho]}, {an}''')
        self.aT1 = V.get(); self.aEW = V.get(); self.aT2s = V.get()
        p(f'''v_lshlrev_b32 {c}, 12, {self.GK}
        v_lshl_add_u32 {self.aT1}, {self.L15}, 6, {c}
        v_bfe_u32 {s}, {L}, 1, 3
        v_add_u32 {s}, {self.sV}, {s}
        v_and_b32 {s}, 3, {s}
        v_lshl_add_u32 {s}, {s}, 4, {self.aT1}
        v_add_u32 {self.aEW}, {EX}, {s}
        v_lshrrev_b32 {c}, 3, {L}
        v_sub_u32 {c}, {L}, {c}
        v_and_b32 {c}, 3, {c}
        v_lshlrev_b32 {c}, 4, {c}
        v_lshrrev_b32 {s}, 2, {L}
        v_lshl_add_u32 {self.aT2s}, {s}, 14, {c}''')
        V.put(k, b, an, c, s, d, e)
    def mcalc(self, M, W0r, W0i, W1r, W1i):
        p = self.p
        for h in range(2):
            s2 = lambda R: R[2*h:2*h+2]
            for (a, b, pp, mm, nn) in ((W0r, W1r, M[0], M[2], M[4]), (W0i, W1i, M[1], M[3], M[5])):
                p(f'''v_pk_add_f32 {s2(nn)}, {s2(a)}, {s2(b)} neg_lo:[0,1] neg_hi:[0,1]
                v_pk_add_f32 {s2(a)}, {s2(a)}, {s2(b)}
                v_pk_fma_f32 {s2(pp)}, {s2(self.Cm)}, {s2(nn)}, {s2(a)} neg_lo:[1,0,0] neg_hi:[1,0,0]
                v_pk_fma_f32 {s2(mm)}, {s2(self.Cm)}, {s2(nn)}, {s2(a)}
                v_pk_mul_f32 {s2(nn)}, {s2(self.Sm)}, {s2(nn)}''')
    def mpre(self):
        p, V, S = self.p, self.V, self.S
        a = V.get(); R = self.WL
        p(f's_lshl_b32 {self.st0}, {self.sV}, 12\ns_add_u32 {self.st0}, {self.st0}, {WS}\nv_add_u32 {a}, {self.st0}, {self.L16}')
        for ah in range(4): p(f'ds_read_b128 {R[4*ah:4*ah+4]}, {a} offset:{1024*ah}')
        self.M = [[V.get(4) for _ in range(6)] for _ in range(2)]
        U = V.get(16)
        p('s_waitcnt lgkmcnt(0)')
        for u in range(2):
            for i in range(16):
                p(f'v_lshlrev_b32 {U[i]}, 16, {R[i]}' if u == 0 else f'v_and_b32 {U[i]}, 0xffff0000, {R[i]}')
            self.mcalc(self.M[u], U[0:4], U[4:8], U[8:12], U[12:16])
        self.N2 = [V.get(4), V.get(4)]
        self.sSP = S.get()
        lb = self.label('nosp')
        X = V.get(32); acc = V.get(); junk = [V.get(4), V.get(4)]
        p(f'''s_or_b32 {self.sSP}, {self.sG}, {self.sV}
        s_cmp_lg_u32 {self.sSP}, 0
        s_cbranch_scc1 {lb}
        s_lshl_b32 {self.st0}, {self.sR}, 13
        s_add_u32 {self.st0}, {self.st0}, {WX}
        v_lshrrev_b32 {a}, 1, {self.aT1}''')
        self.addr64(self.sa, self.ws, self.st0)
        def issue():
            for i in range(4):
                for h in range(2): p(f'global_load_dwordx4 {X[8*i+4*h:8*i+4*h+4]}, {a}, {self.sa} offset:{512*i+16*h} sc1')
        def check():
            for i in range(8):
                p(f'v_bitop3_b32 {U[0]}, {X[4*i+1]}, {X[4*i+3]}, {self.sN} bitop3:0x7e')
                p(f'v_or_b32 {acc}, {U[0]}, {acc}' if i else f'v_mov_b32 {acc}, {U[0]}')
            p(f'v_cmp_ne_u32 vcc, 0, {acc}')
        issue(); self.poll(issue, check, 0)
        M0 = self.M[0]
        for col in range(2):
            for half in range(2):
                for i in range(4):
                    src = X[8*i+4*col+2*half]
                    p(f'v_lshlrev_b32 {U[8*half+i]}, 16, {src}\nv_and_b32 {U[8*half+4+i]}, 0xffff0000, {src}')
            MM = [M0[0], M0[1], junk[0], junk[1], M0[4], M0[5]] if col == 0 else [junk[0], junk[1], M0[2], M0[3], self.N2[0], self.N2[1]]
            self.mcalc(MM, U[0:4], U[4:8], U[8:12], U[12:16])
        p(f'{lb}:')
        V.put(a, U, X, acc, *junk, self.WL, self.Cm, self.Sm)

    def t1_issue_setup(self):
        S, V = self.S, self.V
        self.sT1 = S.get(2); self.TL = V.get(16)
        self.p(f's_lshl_b32 {self.st0}, {self.sC}, 14\ns_lshl_b32 {self.st1}, {self.sV}, 4\ns_add_u32 {self.st0}, {self.st0}, {self.st1}')
        self.addr64(self.sT1, self.ws, self.st0)
    def t1_issue(self):
        for i in range(4): self.p(f'global_load_dwordx4 {self.TL[4*i:4*i+4]}, {self.aT1}, {self.sT1} offset:{1024*i} sc1')
    def middle(self, M, Pr, Pi, Qr, Qi, Fp, Fm, Pxr=None, Pxi=None, Qxr=None, Qxi=None, N2=None):
        p, V = self.p, self.V
        ppr, ppi, mmr, mmi, nr, ni = M
        n2r, n2i = N2 or (nr, ni)
        Pxr, Pxi, Qxr, Qxi = Pxr or Pr, Pxi or Pi, Qxr or Qr, Qxi or Qi
        T = V.get(8)
        N = ' neg_lo:[1,0,0] neg_hi:[1,0,0]'
        for h in range(2):
            s = lambda R: R[2*h:2*h+2]
            a, b, c, d = T[0:2], T[2:4], T[4:6], T[6:8]
            p(f'''v_pk_mul_f32 {a}, {s(ppr)}, {s(Pr)}
            v_pk_mul_f32 {b}, {s(ppr)}, {s(Pi)}
            v_pk_mul_f32 {c}, {s(mmr)}, {s(Qr)}
            v_pk_mul_f32 {d}, {s(mmr)}, {s(Qi)}
            v_pk_fma_f32 {a}, {s(ppi)}, {s(Pi)}, {a}{N}
            v_pk_fma_f32 {b}, {s(ppi)}, {s(Pr)}, {b}
            v_pk_fma_f32 {c}, {s(mmi)}, {s(Qi)}, {c}{N}
            v_pk_fma_f32 {d}, {s(mmi)}, {s(Qr)}, {d}
            v_pk_fma_f32 {a}, {s(ni)}, {s(Qxr)}, {a}{N}
            v_pk_fma_f32 {b}, {s(nr)}, {s(Qxr)}, {b}
            v_pk_fma_f32 {c}, {s(n2r)}, {s(Pxi)}, {c}
            v_pk_fma_f32 {d}, {s(n2r)}, {s(Pxr)}, {d}{N}
            v_pk_fma_f32 {a}, {s(nr)}, {s(Qxi)}, {a}{N}
            v_pk_fma_f32 {b}, {s(ni)}, {s(Qxi)}, {b}{N}
            v_pk_fma_f32 {c}, {s(n2i)}, {s(Pxr)}, {c}
            v_pk_fma_f32 {d}, {s(n2i)}, {s(Pxi)}, {d}''')
            for e in range(2):
                p(f'v_cvt_pk_bf16_f32 {Fp[2*h+e]}, {b[e]}, {a[e]}\nv_cvt_pk_bf16_f32 {Fm[2*h+e]}, {d[e]}, {c[e]}')
        V.put(T)
    def phase2(self, first_wait, after_check=None):
        p, V, S = self.p, self.V, self.S
        TL = self.TL; F, Dr, Di = V.get(16), V.get(16), V.get(16)
        acc = V.get(); t = V.get(2)
        self.poll(self.t1_issue, lambda: self.check16(TL, acc, t), first_wait)
        self.stamp('t1ok')
        lb = self.label('ep')
        p(f'''s_or_b32 {self.st0}, {self.sC}, {self.sV}
        s_cmp_lg_u32 {self.st0}, 0
        s_cbranch_scc1 {lb}
        s_add_u32 {self.st0}, {self.sE}, 1
        v_mov_b32 {t[0]}, {self.st0}
        v_mov_b32 {t[1]}, 0
        s_mov_b64 exec, 1
        global_store_dword {t[1]}, {t[0]}, {self.sb}
        s_mov_b64 exec, -1
        s_waitcnt vmcnt(0)
        {lb}:''')
        if after_check: after_check()
        q = lambda R, s: R[4*s:4*s+4]
        for s in range(4):
            for i in range(4): p(f'v_mov_b32 {F[4*s+i]}, {TL[4*i+s]}')
        self.fft256(F, Dr, Di)
        lsp, ldone = self.label('sp'), self.label('spd')
        p(f's_cmp_eq_u32 {self.sSP}, 0\ns_cbranch_scc1 {lsp}')
        self.middle(self.M[0], q(Dr,0), q(Di,0), q(Dr,1), q(Di,1), q(F,0), q(F,1))
        p(f's_branch {ldone}\n{lsp}:')
        X, FX, Xr, Xi = TL, V.get(8), V.get(8), V.get(8); a = V.get()
        p(f's_lshl_b32 {self.st0}, {self.sR}, 12\ns_add_u32 {self.st0}, {self.st0}, {T1X}\nv_lshrrev_b32 {a}, 2, {self.aT1}')
        self.addr64(self.sa, self.ws, self.st0)
        def issue():
            for i in range(4): p(f'global_load_dwordx4 {X[4*i:4*i+4]}, {a}, {self.sa} offset:{256*i} sc1')
        def check():
            for i in range(4):
                p(f'v_bitop3_b32 {t[0]}, {X[4*i+1]}, {X[4*i+3]}, {self.sN} bitop3:0x7e')
                p(f'v_or_b32 {acc}, {t[0]}, {acc}' if i else f'v_mov_b32 {acc}, {t[0]}')
            p(f'v_cmp_ne_u32 vcc, 0, {acc}')
        issue(); self.poll(issue, check, 0)
        for s in range(2):
            for i in range(4): p(f'v_mov_b32 {FX[4*s+i]}, {X[4*i+2*s]}')
        self.fft256(FX, Xr, Xi)
        self.middle(self.M[0], q(Dr,0), q(Di,0), q(Dr,1), q(Di,1), q(F,0), q(F,1), q(Xr,0), q(Xi,0), q(Xr,1), q(Xi,1), self.N2)
        p(f'{ldone}:\ns_nop 7')
        V.put(FX, Xr, Xi, a)
        self.middle(self.M[1], q(Dr,2), q(Di,2), q(Dr,3), q(Di,3), q(F,2), q(F,3))
        self.fft256(F, Dr, Di)
        for rho in range(4):
            o = F[4*rho:4*rho+4]
            for s in range(4): p(f'v_cvt_pk_bf16_f32 {o[s]}, {Di[4*s+rho]}, {Dr[4*s+rho]}')
            self.tag4(o)
            p(f'ds_write_b128 {self.aEW}, {o} offset:{1024*rho}')
        sa, st0, st1 = self.sa, self.st0, self.st1
        p(f'''s_lshl_b32 {st0}, {self.sV}, 12
        s_add_u32 {st0}, {st0}, {EX}
        v_add_u32 {acc}, {st0}, {self.L16}
        s_lshl_b32 {st0}, {self.sV}, 20
        s_lshl_b32 {st1}, {self.sC}, 6
        s_add_u32 {st0}, {st0}, {st1}
        s_add_u32 {st0}, {st0}, {T2}''')
        self.addr64(sa, self.ws, st0)
        p('s_waitcnt lgkmcnt(0)\ns_barrier')
        for i in range(4): p(f'ds_read_b128 {Dr[4*i:4*i+4]}, {acc} offset:{1024*i}')
        for i in range(4):
            if i: self.addr64(sa, sa, 16*16384)
            p(f's_waitcnt lgkmcnt({3-i})\nglobal_store_dwordx4 {self.aT2s}, {Dr[4*i:4*i+4]}, {sa} sc1')
        self.stamp('t2st')
        V.put(F, Dr, Di, acc, t, self.aT1, self.aEW, self.aT2s, self.T16c, self.T16s, *self.M[0], *self.M[1], *self.N2)
        self.A.put(self.C16r, self.C16i); S.put(self.sT1)

    def consts3(self):
        p, V, A, S, L = self.p, self.V, self.A, self.S, self.L
        self.R4l, self.R4h = A.get(4), A.get(4)
        k, b, an, c, s, d = V.get(), V.get(), V.get(), V.get(), V.get(), V.get()
        m1, m2 = S.get(2), S.get(2)
        p(f'''v_bfe_u32 {k}, {L}, 3, 1
        v_bfe_u32 {b}, {L}, 1, 1
        v_lshl_add_u32 {k}, {k}, 1, {b}
        v_lshlrev_b32 {k}, 8, {k}
        v_add_u32 {k}, {self.sC}, {k}
        v_cvt_f32_u32 {k}, {k}
        v_mul_f32 {k}, {fl(1/1024)}, {k}
        v_and_b32 {b}, 1, {L}
        v_cvt_f32_u32 {b}, {b}
        v_mul_f32 {b}, {fl(-0.25)}, {b}
        v_bfe_u32 {c}, {L}, 2, 1
        v_cmp_eq_u32 {m1}, {c}, {self.GK}
        v_add_u32 {c}, 2, {c}
        v_cmp_eq_u32 {m2}, {c}, {self.GK}''')
        for r in range(4):
            p(f'''v_fmamk_f32 {an}, {k}, {fl(r)}, {b}
            v_cos_f32 {c}, {an}
            v_sin_f32 {s}, {an}
            v_mul_f32 {c}, {fl(2.0**-21)}, {c}
            v_mul_f32 {s}, {fl(-2.0**-21)}, {s}
            v_cvt_pk_bf16_f32 {d}, {c}, {s}
            v_cndmask_b32 {c}, 0, {d}, {m1}
            v_cndmask_b32 {s}, 0, {d}, {m2}
            v_accvgpr_write_b32 {self.R4l[r]}, {c}
            v_accvgpr_write_b32 {self.R4h[r]}, {s}''')
        S.put(m1, m2)
        self.aVW = V.get(4); self.aVR = V.get(4); self.aO = V.get()
        def vaddr(dst, q):
            p(f'''v_and_b32 {c}, 31, {q}
            v_lshrrev_b32 {s}, 5, {q}
            v_bfe_u32 {d}, {q}, 1, 3
            v_lshlrev_b32 {d}, 2, {d}
            v_xor_b32 {s}, {s}, {d}
            v_lshlrev_b32 {s}, 2, {s}
            v_lshl_add_u32 {s}, {c}, 7, {s}
            v_add_u32 {dst}, {s}, {b}''')
        m1 = S.get(2)
        p(f'''v_and_b32 {k}, 1, {self.GK}
        v_lshlrev_b32 {k}, 5, {k}
        v_lshl_add_u32 {k}, {self.L15}, 1, {k}
        s_lshl_b32 {self.st0}, {self.sV}, 7
        v_add_u32 {k}, {self.st0}, {k}
        v_lshlrev_b32 {b}, 13, {self.H}''')
        vaddr(self.aVW[0], k)
        p(f'v_sub_u32 {an}, {1024-1-64}, {k}'); vaddr(self.aVW[1], an)
        p(f'v_sub_u32 {an}, {1024-64}, {k}'); vaddr(self.aVW[3], an)
        p(f'''v_sub_u32 {an}, 0x400, {k}
        v_cmp_eq_u32 {m1}, 0, {k}
        v_mov_b32 {c}, 0x200
        v_cndmask_b32 {an}, {an}, {c}, {m1}''')
        vaddr(self.aVW[2], an)
        S.put(m1)
        p(f'''v_and_b32 {k}, 31, {L}
        v_bfe_u32 {c}, {L}, 1, 3
        v_xor_b32 {c}, {c}, {self.H}
        v_lshlrev_b32 {c}, 4, {c}
        v_lshl_add_u32 {k}, {k}, 7, {c}
        s_lshl_b32 {self.st0}, {self.sV}, 12
        v_add_u32 {self.aVR[0]}, {self.st0}, {k}''')
        for f in range(1, 4): p(f'v_xor_b32 {self.aVR[f]}, {32*f}, {self.aVR[0]}')
        p(f'v_lshlrev_b32 {k}, 4, {self.H}\nv_lshl_add_u32 {self.aO}, {self.PI}, 6, {k}')
        V.put(k, b, an, c, s, d)
        self.sT2 = [S.get(2), S.get(2)]
        p(f's_lshl_b32 {self.st0}, {self.sC}, 14\ns_lshl_b32 {self.st1}, {self.sV}, 10\ns_add_u32 {self.st0}, {self.st0}, {self.st1}\ns_add_u32 {self.st0}, {self.st0}, {T2+4096}')
        self.addr64(self.sT2[0], self.ws, self.st0)
        self.addr64(self.sT2[1], self.sT2[0], 8192)
    def t2_issue(self):
        for r in range(4): self.p(f'global_load_dwordx4 {self.TL[4*r:4*r+4]}, {self.L16}, {self.sT2[r>>1]} offset:{-4096*(1-(r&1))} sc1')
    def phase3(self, first_wait):
        p, V, S = self.p, self.V, self.S
        TL = self.TL; F, Dr, Di = V.get(16), V.get(16), V.get(16)
        acc = V.get(); t = V.get(2)
        self.poll(self.t2_issue, lambda: self.check16(TL, acc, t), first_wait)
        self.stamp('t2ok')
        for s in range(4):
            for i in range(4): p(f'v_mov_b32 {F[4*s+i]}, {TL[4*i+s]}')
        for s in range(4):
            p(f'v_mfma_f32_16x16x32_bf16 {Dr[4*s:4*s+4]}, {self.R4l}, {F[4*s:4*s+4]}, 0\nv_mfma_f32_16x16x32_bf16 {Di[4*s:4*s+4]}, {self.R4h}, {F[4*s:4*s+4]}, 0')
        for s in range(4):
            e, up = s >> 1, s & 1
            for hi, D in ((0, Dr), (1, Di)):
                for ml in range(2):
                    o = TL[4*s+2*hi+ml]
                    p(f'v_cvt_pk_bf16_f32 {o}, {"-" if up else ""}{D[4*s+2*ml+1]}, {D[4*s+2*ml]}')
                    if not up: a, off = self.aVW[0], 128*e + 8*hi
                    elif e: a, off = self.aVW[1], 8*(1-hi)
                    else: a, off = self.aVW[2+hi], 0
                    p(f'ds_write_b32 {a}, {o} offset:{off + 4096*ml}')
        sa, st0 = self.sa, self.st0
        p(f's_lshl_b32 {st0}, {self.sV}, 8\ns_add_u32 {st0}, {st0}, {self.sC}\ns_lshl_b32 {st0}, {st0}, 13\ns_add_u32 {st0}, {st0}, 4096')
        self.addr64(sa, self.out, st0)
        p('s_waitcnt lgkmcnt(0)\ns_barrier')
        for f in range(4): p(f'ds_read_b128 {F[4*f:4*f+4]}, {self.aVR[f]}')
        p('s_waitcnt lgkmcnt(0)')
        self.fft1024(F, Dr, Di)
        for row, D in ((0, Di), (1, Dr)):
            for hf in range(2):
                o = F[8*row+4*hf:8*row+4*hf+4]
                for k in range(4): p(f'v_cvt_pk_bf16_f32 {o[k]}, {D[8*hf+2*k]}, {D[8*hf+2*k+1]}')
                p(f'global_store_dwordx4 {self.aO}, {o}, {sa} offset:{-4096*(1-row)+32*hf}')
        self.stamp('outst')
        V.put(F, Dr, Di, acc, t, self.aVW, self.aVR, self.aO)
        S.put(*self.sT2); self.A.put(self.R4l, self.R4h)

    def tu_produce(self):
        p, V = self.p, self.V
        a, o, R = V.get(), V.get(), V.get(16)
        t = V.get(); L = self.L; sa, st0, st1 = self.sa, self.st0, self.st1
        p(f"""v_bfe_u32 {a}, {L}, 2, 2
        v_lshlrev_b32 {a}, 7, {a}
        v_lshrrev_b32 {t}, 4, {L}
        v_lshl_add_u32 {a}, {t}, 5, {a}
        v_and_b32 {t}, 3, {L}
        v_lshl_add_u32 {a}, {t}, 3, {a}
        s_lshl_b32 {st0}, {self.sV}, 12
        s_add_u32 {st0}, {st0}, {US}
        v_add_u32 {a}, {st0}, {a}""")
        for b in range(4):
            for h in range(2): p(f'ds_read_b64_tr_b16 {R[4*b+2*h:4*b+2*h+2]}, {a} offset:{1024*b+512*h}')
        p(f"""v_lshlrev_b32 {t}, 4, {t}
        v_lshrrev_b32 {o}, 2, {L}
        v_lshl_add_u32 {o}, {o}, 14, {t}
        s_lshr_b32 {st0}, {self.sC}, 4
        s_lshl_b32 {st0}, {st0}, 18
        s_and_b32 {st1}, {self.sC}, 15
        s_lshl_b32 {st1}, {st1}, 10
        s_add_u32 {st0}, {st0}, {st1}
        s_lshl_b32 {st1}, {self.sV}, 8
        s_add_u32 {st0}, {st0}, {st1}
        s_add_u32 {st0}, {st0}, {TU}""")
        self.addr64(sa, self.ws, st0)
        for b in range(4):
            p(f's_waitcnt lgkmcnt({6-2*b})')
            self.tag4(R[4*b:4*b+4])
            p(f'global_store_dwordx4 {o}, {R[4*b:4*b+4]}, {sa} offset:{64*b} sc1')
        V.put(a, o, R, t)
    def tu_setup(self):
        p, V, S = self.p, self.V, self.S
        self.UL = V.get(16); self.aTU = V.get(); self.sTU = [S.get(2), S.get(2)]
        p(f"""v_lshlrev_b32 {self.aTU}, 6, {self.L}
        s_lshl_b32 {self.st0}, {self.sC}, 14
        s_lshl_b32 {self.st1}, {self.sV}, 4
        s_add_u32 {self.st0}, {self.st0}, {self.st1}
        s_add_u32 {self.st0}, {self.st0}, {TU+4096}""")
        self.addr64(self.sTU[0], self.ws, self.st0)
        self.addr64(self.sTU[1], self.sTU[0], 8192)
    def tu_issue(self):
        for i in range(4): self.p(f'global_load_dwordx4 {self.UL[4*i:4*i+4]}, {self.aTU}, {self.sTU[i>>1]} offset:{-4096*(1-(i&1))} sc1')
    def tu_consume(self, first_wait):
        p, V = self.p, self.V
        acc, t = V.get(), V.get(2)
        self.poll(self.tu_issue, lambda: self.check16(self.UL, acc, t), first_wait)
        p(f'v_add_u32 {acc}, {self.sB}, {self.L16}')
        for i in range(4): p(f'ds_write_b128 {acc}, {self.UL[4*i:4*i+4]} offset:{UT+1024*i}')
        V.put(acc, t, self.UL, self.aTU); self.S.put(*self.sTU)

    def cmul(self, items):
        p = self.p
        for i, (d, x, e) in enumerate(items): p(f'v_pk_mul_f32 {self.CT[2*i:2*i+2]}, {x}, {e} op_sel:[0,0] op_sel_hi:[0,1]')
        for i, (d, x, e) in enumerate(items): p(f'v_pk_fma_f32 {d}, {x}, {e}, {self.CT[2*i:2*i+2]} op_sel:[1,1,0] op_sel_hi:[1,0,1] neg_lo:[0,1,0]')
    def krow(self, row, X, neg=False):
        p = self.p; o = self.KO[2*(row & 1):2*(row & 1)+2]
        for u in range(2): p(f'v_cvt_pk_bf16_f32 {o[u]}, {X[u][0]}, {"-" if neg else ""}{X[u][1]}')
        p(f'ds_write_b64 {self.aKW}, {o} offset:{KT+528*row}')
    def kgen_setup(self):
        p, V, S, L = self.p, self.V, self.S, self.L
        self.sB = S.get(); st0, st1 = self.st0, self.st1
        self.E = {n: [V.get(2), V.get(2)] for n in (1, 8, 128)}
        self.KY = [V.get(2), V.get(2)]; self.KX = [V.get(2), V.get(2)]; self.CT = V.get(4); self.KO = V.get(4)
        self.aKW, self.aKR = V.get(), V.get()
        dt, t0, t1, t2 = V.get(), V.get(), V.get(), V.get(); z = V.get(4)
        LOG2E = math.log2(math.e); hi = struct.unpack('<f', struct.pack('<f', LOG2E))[0]
        p(f"""s_mul_i32 {self.sB}, {self.sV}, {BW}
        s_add_u32 {self.sB}, {self.sB}, {BB}
        s_and_b32 {st0}, {self.sD}, 1
        s_lshl_b32 {st0}, {st0}, 4
        s_lshr_b32 {self.sLD}, {self.sLD}, {st0}
        s_lshl_b32 {self.sLD}, {self.sLD}, 16
        s_lshr_b32 {self.sDS}, {self.sDS}, {st0}
        s_lshl_b32 {self.sDS}, {self.sDS}, 16
        v_mov_b32 {t0}, {fl(hi)}
        v_mul_f32 {t1}, {self.sLD}, {t0}
        v_fma_f32 {t2}, {self.sLD}, {t0}, -{t1}
        v_mov_b32 {t0}, {fl(LOG2E-hi)}
        v_exp_f32 {dt}, {t1}
        v_fmac_f32 {t2}, {self.sLD}, {t0}
        v_mul_f32 {t2}, {fl(math.log(2))}, {t2}
        v_fmac_f32 {dt}, {dt}, {t2}
        v_cvt_pk_bf16_f32 {dt}, {dt}, {dt}
        v_lshlrev_b32 {dt}, 16, {dt}
        v_lshl_add_u32 {self.aKW}, {L}, 3, {self.sB}
        v_mul_u32_u24 {t0}, 528, {self.L15}
        v_lshl_add_u32 {t0}, {self.GK}, 4, {t0}
        v_add_u32 {self.aKR}, {self.sB}, {t0}
        v_mov_b32 {z[0]}, 0
        v_mov_b32 {z[1]}, 0
        v_mov_b32 {z[2]}, 0
        v_mov_b32 {z[3]}, 0
        v_lshl_add_u32 {t0}, {self.L15}, 4, {self.sB}
        ds_write_b128 {t0}, {z}
        v_and_b32 {t0}, 31, {L}
        v_lshl_add_u32 {t0}, {t0}, 4, {self.sB}
        ds_write_b128 {t0}, {z} offset:{UZ}""")
        un = lambda d, src, u: p(f'v_lshlrev_b32 {d}, 16, {src}' if u == 0 else f'v_and_b32 {d}, 0xffff0000, {src}')
        PR = self.PR
        for u in range(2):
            X, Y = self.KX[u], self.KY[u]
            un(X[0], PR[2], u); un(X[1], PR[3], u); un(Y[0], PR[4], u); un(Y[1], PR[5], u)
            p(f'v_mul_f32 {X[0]}, {dt}, {X[0]}\nv_mul_f32 {X[1]}, {dt}, {X[1]}')
        self.cmul([(self.KY[u], self.KY[u], self.KX[u]) for u in range(2)])
        for u in range(2):
            a, b = z[2*u], z[2*u+1]
            un(a, PR[0], u); un(b, PR[1], u)
            p(f"""v_mul_f32 {a}, {dt}, {a}
            v_mul_f32 {b}, {dt}, {b}
            v_mul_f32 {a}, {fl(LOG2E)}, {a}
            v_mul_f32 {b}, {fl(1/(2*math.pi))}, {b}""")
        for n in (1, 8, 128):
            for u in range(2):
                a, b = z[2*u], z[2*u+1]; E = self.E[n][u]
                if n == 1: p(f'v_exp_f32 {t0}, {a}\nv_fract_f32 {t1}, {b}')
                else: p(f'v_mul_f32 {t0}, {fl(n)}, {a}\nv_mul_f32 {t1}, {fl(n)}, {b}\nv_exp_f32 {t0}, {t0}\nv_fract_f32 {t1}, {t1}')
                p(f"""v_cos_f32 {E[0]}, {t1}
                v_sin_f32 {E[1]}, {t1}
                v_mul_f32 {E[0]}, {t0}, {E[0]}
                v_mul_f32 {E[1]}, {t0}, {E[1]}""")
        V.put(dt, t0, t1, t2, z, self.PR)
    def kgen_batch1(self):
        p, A = self.p, self.A; X, Y, E = self.KX, self.KY, self.E
        p(f'v_mov_b32 {self.KO[0]}, 0x3f80\nv_mov_b32 {self.KO[1]}, 0x3f80\nds_write_b64 {self.aKW}, {self.KO[0:2]} offset:{KT}')
        self.krow(1, E[8], True)
        for b in range(2, 16):
            self.cmul([(X[u], E[8][u] if b == 2 else X[u], E[8][u]) for u in range(2)]); self.krow(b, X, True)
        for a in range(2):
            if a: self.cmul([(Y[u], Y[u], E[128][u]) for u in range(2)])
            self.krow(16+8*a, Y)
            for j in range(1, 8):
                self.cmul([(X[u], Y[u] if j == 1 else X[u], E[1][u]) for u in range(2)]); self.krow(16+8*a+j, X)
        self.BF, self.AF = A.get(32), [A.get(32), A.get(32), A.get(32)]
        for t in range(8):
            p(f'ds_read_b128 {self.BF[4*t:4*t+4]}, {self.aKR} offset:{KT+64*t}')
            p(f'ds_read_b128 {self.AF[0][4*t:4*t+4]}, {self.aKR} offset:{KT+16*528+64*t}')
    def kgen_batch2(self):
        p, V = self.p, self.V; X, Y, E = self.KX, self.KY, self.E
        step = lambda: self.cmul([(Y[u], Y[u], E[128][u]) for u in range(2)])
        self.cmul([(E[1][u], E[1][u], E[1][u]) for u in range(2)])
        self.cmul([(E[8][u], E[1][u], E[1][u]) for u in range(2)])
        for a in range(2):
            step(); self.krow(4*a, Y)
            for j in range(1, 4):
                self.cmul([(X[u], Y[u] if j == 1 else X[u], E[1][u]) for u in range(2)]); self.krow(4*a+j, X)
        for a in range(4):
            step(); self.krow(8+2*a, Y)
            self.cmul([(X[u], Y[u], E[8][u]) for u in range(2)]); self.krow(9+2*a, X)
        for a in range(9):
            step(); self.krow(16+a, Y)
        for k in range(1, 3):
            for t in range(8): p(f'ds_read_b128 {self.AF[k][4*t:4*t+4]}, {self.aKR} offset:{KT+16*528*(k-1)+64*t}')
        V.put(*E[1], *E[8], *E[128], *X, *Y, self.CT, self.KO, self.aKW, self.aKR)
    def kgen_mfma(self):
        p, V, L = self.p, self.V, self.L
        KD = V.get(12); a0, a1, a2, a3, t = V.get(), V.get(), V.get(), V.get(), V.get(); O = V.get(6)
        for k in range(3):
            p(f's_waitcnt lgkmcnt({(15, 8, 0)[k]})')
            for i in range(8):
                p(f'v_mfma_f32_16x16x32_bf16 {KD[4*k:4*k+4]}, {self.AF[k][4*i:4*i+4]}, {self.BF[4*i:4*i+4]}, {KD[4*k:4*k+4] if i else 0}')
            if k == 0:
                p(f"""v_lshlrev_b32 {a0}, 8, {self.H}
                v_lshl_add_u32 {a0}, {self.L15}, 4, {a0}
                v_and_b32 {t}, 1, {self.GK}
                v_lshl_add_u32 {a0}, {t}, 3, {a0}
                v_add_u32 {a0}, {self.sB}, {a0}
                v_lshl_add_u32 {a3}, {self.GK}, 7, {self.sB}
                v_sub_u32 {t}, 3, {self.H}
                v_lshlrev_b32 {t}, {t}, {self.L15}
                v_add_u32 {a1}, {a3}, {t}
                v_mul_u32_u24 {t}, 60, {self.H}
                v_add3_u32 {a2}, {a1}, {t}, 4
                v_lshl_add_u32 {a3}, {self.L15}, 1, {a3}
                v_cmp_eq_u32 vcc, 0, {L}
                v_mov_b32 {t}, {self.sDS}
                v_cndmask_b32 {t}, 0, {t}, vcc""")
        p(f'v_add_f32 {KD[0]}, {KD[0]}, {t}')
        for i in range(6): p(f'v_cvt_pk_bf16_f32 {O[i]}, {KD[2*i]}, {KD[2*i+1]}')
        p(f"""ds_write_b64 {a0}, {O[0:2]} offset:{UT}
        ds_write_b32 {a1}, {O[2]} offset:{KC}
        ds_write_b32 {a2}, {O[3]} offset:{KC}
        ds_write_b16 {a3}, {O[4]} offset:{KC+512}
        ds_write_b16_d16_hi {a3}, {O[4]} offset:{KC+512+32}
        ds_write_b16 {a3}, {O[5]} offset:{KC+512+64}
        ds_write_b16_d16_hi {a3}, {O[5]} offset:{KC+512+96}""")
        V.put(KD, a0, a1, a2, a3, t, O); self.A.put(self.BF, *self.AF)
    def kexpand(self):
        p, V, S, L = self.p, self.V, self.S, self.L
        sLO, sHI = S.get(), S.get()
        a, b, c = V.get(), V.get(), V.get(); R = V.get(8); O = V.get(16)
        p(f"""v_and_b32 {c}, 31, {L}
        v_lshl_add_u32 {a}, {c}, 3, {self.sB}
        v_lshl_add_u32 {b}, {L}, 2, {self.sB}
        v_add_u32 {b}, {KC}, {b}
        ds_read_b64 {R[0:2]}, {a} offset:{KC}
        ds_read_b32 {R[2]}, {a} offset:{KC+8}
        ds_read2_b32 {R[4:6]}, {b} offset0:64 offset1:65
        ds_read2_b32 {R[6:8]}, {b} offset0:128 offset1:129
        s_mov_b32 {sLO}, 0x01000100
        s_mov_b32 {sHI}, 0x03020302
        v_lshl_add_u32 {a}, {c}, 4, {self.sB}
        v_add_u32 {b}, {self.sB}, {self.L16}
        v_lshl_add_u32 {c}, {L}, 5, {self.sB}
        s_waitcnt lgkmcnt(2)
        v_perm_b32 {O[0]}, {R[0]}, {R[0]}, {sLO}
        v_alignbit_b32 {O[1]}, {R[1]}, {R[0]}, 16
        v_perm_b32 {O[2]}, {R[1]}, {R[1]}, {sLO}
        v_alignbit_b32 {O[3]}, {R[2]}, {R[1]}, 16
        ds_write_b128 {a}, {O[0:4]} offset:{UT+512}
        s_waitcnt lgkmcnt(2)
        v_perm_b32 {O[4]}, {R[4]}, {R[4]}, {sLO}
        v_mov_b32 {O[5]}, {R[4]}
        v_perm_b32 {O[6]}, {R[4]}, {R[4]}, {sHI}
        v_perm_b32 {O[7]}, {R[5]}, {R[5]}, {sLO}
        ds_write_b128 {b}, {O[4:8]} offset:{UT+1024}
        s_waitcnt lgkmcnt(2)
        v_perm_b32 {O[8]}, {R[6]}, {R[6]}, {sLO}
        v_mov_b32 {O[10]}, {R[6]}
        v_perm_b32 {O[11]}, {R[6]}, {R[6]}, {sHI}
        v_mov_b32 {O[9]}, {O[8]}
        v_perm_b32 {O[14]}, {R[7]}, {R[7]}, {sLO}
        v_mov_b32 {O[12]}, {O[11]}
        v_mov_b32 {O[13]}, {O[11]}
        v_mov_b32 {O[15]}, {O[14]}
        ds_write_b128 {c}, {O[8:12]} offset:{UT+2048}
        ds_write_b128 {c}, {O[12:16]} offset:{UT+2048+16}""")
        V.put(R); R = V.get(24)
        for r in range(4):
            p(f'ds_read_b64 {R[6*r:6*r+2]}, {b} offset:{UT-8+1024*r}\nds_read_b128 {R[6*r+2:6*r+6]}, {b} offset:{UT+1024*r}')
        p(f"""v_lshrrev_b32 {a}, 2, {L}
        v_lshlrev_b32 {a}, 8, {a}
        v_and_b32 {c}, 3, {L}
        v_lshl_add_u32 {a}, {c}, 4, {a}
        v_add_u32 {a}, {self.sB}, {a}""")
        for r in range(4):
            Q = R[6*r:6*r+6]
            p(f's_waitcnt lgkmcnt({min(15, 6-2*r+4*r)})')
            p(f'ds_write_b128 {a}, {Q[2:6]} offset:{KT+4096*r}')
            for k in range(4): p(f'v_alignbit_b32 {O[k]}, {Q[k+2]}, {Q[k+1]}, 16')
            p(f'ds_write_b128 {a}, {O[0:4]} offset:{KT+4096*r+64}')
            for k in range(4): p(f'v_mov_b32 {O[4+k]}, {Q[k+1]}')
            p(f'ds_write_b128 {a}, {O[4:8]} offset:{KT+4096*r+128}')
            for k in range(4): p(f'v_alignbit_b32 {O[8+k]}, {Q[k+1]}, {Q[k]}, 16')
            p(f'ds_write_b128 {a}, {O[8:12]} offset:{KT+4096*r+192}')
        V.put(a, b, c, R, O); S.put(sLO, sHI)
    def conv_setup(self):
        p, V, A, L = self.p, self.V, self.A, self.L
        self.aKA = V.get(2); self.aUB = V.get(); self.aYW = V.get(); self.aYR = V.get(); self.aYO = V.get()
        self.ACC = V.get(32); self.CA = [A.get(32), A.get(32)]; self.CB = [A.get(32), A.get(32)]
        y, t, r4, cc = V.get(), V.get(), V.get(), V.get()
        p(f'v_bfe_u32 {r4}, {L}, 2, 2\nv_and_b32 {cc}, 3, {L}')
        for k in range(2):
            p(f"""v_lshlrev_b32 {y}, 1, {self.GK}
            v_sub_u32 {y}, {cc}, {y}
            v_lshl_add_u32 {y}, {y}, 2, {16-4*k}
            v_ashrrev_i32 {t}, 5, {y}
            v_lshlrev_b32 {t}, 8, {t}
            v_and_b32 {y}, 31, {y}
            v_lshl_add_u32 {y}, {y}, 1, {t}
            v_lshl_add_u32 {y}, {r4}, 6, {y}
            v_add_u32 {self.aKA[k]}, {self.sB}, {y}""")
        p(f"""v_lshlrev_b32 {y}, 4, {self.GK}
        v_lshl_add_u32 {y}, {self.L15}, 5, {y}
        v_add_u32 {self.aUB}, {self.sB}, {y}
        v_add_u32 {y}, {self.GK}, {r4}
        v_and_b32 {y}, 3, {y}
        v_lshlrev_b32 {y}, 3, {y}
        v_lshl_add_u32 {y}, {self.L15}, 5, {y}
        s_mul_i32 {self.st0}, {self.sV}, {YST}
        v_add_u32 {self.aYW}, {self.st0}, {y}
        v_add_u32 {y}, {self.GK}, {cc}
        v_and_b32 {y}, 3, {y}
        v_lshlrev_b32 {y}, 3, {y}
        v_lshl_add_u32 {y}, {self.GK}, 7, {y}
        v_mul_u32_u24 {t}, {YST}, {r4}
        s_lshl_b32 {self.st0}, {self.sV}, 9
        v_add3_u32 {self.aYR}, {y}, {t}, {self.st0}
        v_lshl_add_u32 {y}, {self.GK}, 6, {self.L15}
        v_lshlrev_b32 {self.aYO}, 12, {y}""")
        V.put(y, t, r4, cc)
        self.started = set()
    def conv_reads(self, half, e0):
        n = 4 if half == 0 else 8; buf = e0 & 1; l = []
        for i in range(n):
            for t in range(2): l.append(f'ds_read_b64_tr_b16 {self.CA[buf][4*i+2*t:4*i+2*t+2]}, {self.aKA[t]} offset:{KT+256*(e0+8*i)}')
            l.append(f'ds_read_b128 {self.CB[buf][4*i:4*i+4]}, {self.aUB} offset:{UT-32+512*i-64*e0}')
        return l
    def conv_step(self, half, e0, prefetch):
        p = self.p; buf = e0 & 1; n = 4 if half == 0 else 8
        pairs = [(e1, g) for e1 in range(n) for g in range(n) if 4*half <= e1+g <= 4*half+3]
        pairs.sort(key=lambda x: (max(x), x))
        out = []; last = None
        while pairs:
            k = next((i for i, x in enumerate(pairs) if sum(x) != last), 0)
            x = pairs.pop(k); out.append(x); last = sum(x)
        p('s_waitcnt lgkmcnt(0)')
        pf = list(prefetch)
        for i, (e1, g) in enumerate(out):
            c = e1+g; acc = self.ACC[4*c:4*c+4]
            p(f'v_mfma_f32_16x16x32_bf16 {acc}, {self.CA[buf][4*e1:4*e1+4]}, {self.CB[buf][4*g:4*g+4]}, {acc if c in self.started else 0}')
            self.started.add(c)
            k = -(-len(pf)//max(1, len(out)-i-2)) if pf else 0
            for _ in range(min(k, len(pf))): p(pf.pop(0))
        for x in pf: p(x)
    def conv_run(self, steps, nxt):
        for i, (h, e0) in enumerate(steps):
            n = steps[i+1] if i+1 < len(steps) else nxt
            self.conv_step(h, e0, self.conv_reads(*n) if n else [])
    def y_stage(self, half):
        p, V = self.p, self.V; O = V.get(8)
        for i in range(4):
            c = 4*half+i
            p(f'v_cvt_pk_bf16_f32 {O[2*i]}, {self.ACC[4*c]}, {self.ACC[4*c+1]}\nv_cvt_pk_bf16_f32 {O[2*i+1]}, {self.ACC[4*c+2]}, {self.ACC[4*c+3]}')
            p(f'ds_write_b64 {self.aYW}, {O[2*i:2*i+2]} offset:{YS+512*c}')
        V.put(O)
    def y_read(self, half):
        self.YR = self.V.get(8)
        for k in range(4): self.p(f'ds_read_b64_tr_b16 {self.YR[2*k:2*k+2]}, {self.aYR} offset:{YS+2048*half+32*k}')
    def y_store(self, half):
        p = self.p; sa, st0, st1 = self.sa, self.st0, self.st1
        p(f's_lshl_b32 {st0}, {self.sV}, 20\ns_lshl_b32 {st1}, {self.sC}, 3\ns_add_u32 {st0}, {st0}, {st1}\ns_add_u32 {st0}, {st0}, {2048+(half<<22)}')
        self.addr64(sa, self.out, st0)
        for k in range(4):
            if k: self.addr64(sa, sa, 65536)
            p(f'global_store_dwordx2 {self.aYO}, {self.YR[2*k:2*k+2]}, {sa}')
        self.V.put(self.YR)

    def finish(self):
        p, V = self.p, self.V
        if self.stamps:
            p('s_waitcnt vmcnt(0)')
            self.stamp('end')
            d = V.get(); a = V.get()
            p(f's_lshl_b32 {self.st0}, s2, 2\ns_add_u32 {self.st0}, {self.st0}, {self.sV}\ns_lshl_b32 {self.st0}, {self.st0}, 7\ns_add_u32 {self.st0}, {self.st0}, {DBG}')
            self.addr64(self.sa, self.ws, self.st0)
            p(f'v_mov_b32 {a}, 0\ns_mov_b64 exec, 1')
            for i, (n, r) in enumerate(self.stn):
                p(f'v_mov_b32 {d}, {r[0]}\nglobal_store_dword {a}, {d}, {self.sa} offset:{4*i}\ns_nop 1')
        p('L_end:\ns_endpgm')

    def emit(self):
        pad = self.p.pad(); errs = self.p.verify()
        for e in errs: print('VERIFY', e, file=sys.stderr)
        hdr = open('cdna_kernels/%s.s.ref' % NAME).read().split('; Override launch')[0]
        nv = 256; na = max(8, self.A.hi)
        s = hdr + ('; stamps: ' + ' '.join(n for n, _ in self.stn) + '\n' if self.stamps else '') + f'; @launch grid=(256,1,1) block=(256,1,1) lds={LDS_BYTES}\n'
        s += f'.amdgcn_target "amdgcn-amd-amdhsa--gfx950"\n.text\n.globl {NAME}_kernel\n.p2align 8\n.type {NAME}_kernel,@function\n{NAME}_kernel:\n'
        s += self.p.text()
        s += f'''.section .rodata,"a"
.p2align 6
.amdhsa_kernel {NAME}_kernel
  .amdhsa_next_free_vgpr {nv+na}
  .amdhsa_next_free_sgpr 102
  .amdhsa_accum_offset {nv}
  .amdhsa_group_segment_fixed_size 0
  .amdhsa_kernarg_size 120
  .amdhsa_user_sgpr_count 2
  .amdhsa_user_sgpr_kernarg_segment_ptr 1
  .amdhsa_system_sgpr_workgroup_id_x 1
  .amdhsa_float_denorm_mode_32 3
.end_amdhsa_kernel
'''
        n = sum(1 for i in self.p.ins if i.states)
        print(f'instrs {n} pad {pad} vgpr {self.V.hi} agpr {self.A.hi} sgpr {self.S.hi} errs {len(errs)}', file=sys.stderr)
        return s

def build_a_only(stamps=False):
    g = Gen(stamps)
    g.prologue(); g.consts1()
    g.phase1(16)
    g.p('s_waitcnt vmcnt(5)')
    g.consts2(); g.wstage(); g.mpre()
    g.t1_issue_setup(); g.p('s_sleep 16'); g.t1_issue()
    g.phase2(0)
    g.consts3(); g.p('s_sleep 24'); g.t2_issue()
    g.phase3(0)
    g.finish()
    return g

def build_v1(stamps=False):
    g = Gen(stamps); p = g.p
    g.prologue(); g.consts1()
    g.phase1(16)
    p('s_waitcnt vmcnt(11)')
    g.tu_produce()
    g.stamp('tust')
    g.consts2()
    g.kgen_setup(); g.kgen_batch1()
    g.stamp('kb1')
    g.t1_issue_setup(); g.t1_issue()
    p('s_waitcnt vmcnt(13)')
    g.wstage(); g.kgen_batch2(); g.mpre()
    g.kgen_mfma(); g.kexpand()
    g.tu_setup()
    g.stamp('kdone')
    g.phase2(0, g.tu_issue)
    g.tu_consume(4)
    g.conv_setup(); g.consts3()
    for x in g.conv_reads(0, 0): p(x)
    g.conv_run([(0, e) for e in range(8)], (1, 0))
    g.y_stage(0)
    g.conv_run([(1, 0)], (1, 1))
    g.t2_issue()
    p('s_barrier');
    g.y_read(0); p('s_waitcnt lgkmcnt(0)'); g.y_store(0)
    g.conv_run([(1, e) for e in range(1, 4)], None)
    g.stamp('cv1')
    g.phase3(4)
    for x in g.conv_reads(1, 4): p(x)
    g.conv_run([(1, e) for e in range(4, 8)], None)
    g.y_stage(1)
    p('s_waitcnt lgkmcnt(0)\ns_barrier')
    g.y_read(1); p('s_waitcnt lgkmcnt(0)'); g.y_store(1)
    g.finish()
    return g

if __name__ == '__main__':
    g = globals()['build_' + sys.argv[2]]('-s' in sys.argv)
    open(sys.argv[1], 'w').write(g.emit())
    print([n for n, _ in g.stn], file=sys.stderr)
```

```python
import sys, math, struct
from dsl import *

NAME = "concat_heads__spectral_gfnet__ssm_conv_s4__prompt"
def fl(x): return hex(struct.unpack('<I', struct.pack('<f', x))[0])

T1, T2, TU, T1X, WX, EOFF, DBG = 0, 4 << 20, 8 << 20, 12 << 20, (12 << 20) + (64 << 10), (12 << 20) + (128 << 10), 16 << 20
A0, PL = 0, 4608
US = 18432; EX = US
WS = 34816; YS = WS; YST = 4128
BB, BW = 51456, 23040
KT, KC, UZ = 256, 256 + 16896, 256 + 16896 + 1280
UT = UZ + 512
LDS_BYTES = BB + 4*BW
SPIN_MAX = 4000

class Gen:
    def __init__(self, stamps=False, opts=None):
        self.p = Prog(); self.V = Alloc('v', 256, 1); self.A = Alloc('a', 256); self.S = Alloc('s', 100, 32)
        self.stamps = stamps; self.nst = 0; self.o = opts or {}; self.stn = []
        self.lbl = 0
    def stamp(self, name):
        if not self.stamps: return
        r = self.S.get(2); self.stn.append((name, r))
        self.p(f's_memrealtime {r}\ns_waitcnt lgkmcnt(0)')
    def label(self, base):
        self.lbl += 1; return f'L{base}{self.lbl}'
    def addr64(self, dst, base, off):
        self.p(f's_add_u32 {dst[0]}, {base[0]}, {off}\ns_addc_u32 {dst[1]}, {base[1]}, 0')

    def prologue(self):
        p, V, S = self.p, self.V, self.S
        P = lambda b: Reg('s', b, 2)
        self.x, self.wr, self.wi, self.u = P(4), P(6), P(8), P(10)
        self.par = [P(12), P(14), P(16), P(18), P(20), P(22)]
        self.ldt, self.dsk, self.out, self.ws = P(24), P(26), P(28), P(30)
        self.sV, self.sC, self.sR, self.sG = S.get(), S.get(), S.get(), S.get()
        self.L = L = V.get(); t = V.get()
        self.st0, self.st1 = S.get(), S.get(); self.sa = S.get(2); self.sb = S.get(2)
        st0, st1, sa, sb = self.st0, self.st1, self.sa, self.sb
        sV, sC, sR, sG = self.sV, self.sC, self.sR, self.sG
        if self.stamps:
            r = S.get(2); self.stn.append(('start', r)); p(f's_memrealtime {r}')
        p(f'''s_cmp_ge_u32 s2, 256
        s_cbranch_scc1 L_end
        s_load_dwordx16 s[4:19], s[0:1], 0
        s_load_dwordx8 s[20:27], s[0:1], 64
        s_load_dwordx2 s[28:29], s[0:1], 96
        s_load_dwordx2 s[30:31], s[0:1], 112
        v_lshrrev_b32 {t}, 6, v0
        v_and_b32 {L}, 63, v0
        v_readfirstlane_b32 {sV}, {t}
        s_and_b32 {sC}, s2, 7
        s_lshl_b32 {sC}, {sC}, 5
        s_lshr_b32 {st0}, s2, 3
        s_add_u32 {sC}, {sC}, {st0}
        s_lshr_b32 {sR}, {sC}, 6
        s_and_b32 {sG}, {sC}, 63''')
        self.L16 = V.get()
        p(f'v_lshlrev_b32 {self.L16}, 4, {L}')
        p(f'''s_lshl_b32 {st0}, {sV}, 8
        s_add_u32 {st0}, {st0}, {sC}
        s_lshl_b32 {st0}, {st0}, 12
        s_mul_i32 {st1}, {sV}, {PL}
        s_mov_b32 m0, {st1}
        s_waitcnt lgkmcnt(0)''')
        self.stamp('karg')
        self.addr64(sa, self.x, st0)
        self.sE = S.get(); self.sLD = S.get(); self.sDS = S.get()
        p(f'''global_load_lds_dwordx4 {self.L16}, {sa}
        global_load_lds_dwordx4 {self.L16}, {sa} offset:1024
        s_add_u32 m0, {st1}, 128
        s_load_dword {self.sE}, {self.ws}, {EOFF & 0xfffff}  ; placeholder
        global_load_lds_dwordx4 {self.L16}, {sa} offset:2048
        global_load_lds_dwordx4 {self.L16}, {sa} offset:3072''')
        self.p.ins = [i for i in self.p.ins if 'placeholder' not in i.text]
        self.addr64(sb, self.ws, EOFF)
        p(f's_load_dword {self.sE}, {sb}, 0')
        self.sD = S.get()
        self.PR = V.get(6)
        p(f'''s_lshl_b32 {self.sD}, {sC}, 2
        s_add_u32 {self.sD}, {self.sD}, {sV}
        s_lshl_b32 {st0}, {self.sD}, 8
        v_lshl_add_u32 {t}, {L}, 2, {st0}
        s_lshr_b32 {st1}, {self.sD}, 1
        s_lshl_b32 {st1}, {st1}, 2
        s_load_dword {self.sLD}, {self.ldt}, {st1}
        s_load_dword {self.sDS}, {self.dsk}, {st1}''')
        for i in range(6): p(f'global_load_dword {self.PR[i]}, {t}, {self.par[i]}')
        t2 = V.get()
        p(f'''v_lshrrev_b32 {t}, 3, {L}
        v_and_b32 {t2}, 7, {L}
        v_lshlrev_b32 {t2}, 4, {t2}
        v_lshl_add_u32 {t}, {t}, 11, {t2}
        s_and_b32 {st0}, {sC}, 15
        s_lshl_b32 {st0}, {st0}, 2
        s_add_u32 {st0}, {st0}, {sV}
        s_lshl_b32 {st0}, {st0}, 16
        s_lshr_b32 {st1}, {sC}, 4
        s_lshl_b32 {st1}, {st1}, 7
        s_add_u32 {st0}, {st0}, {st1}''')
        self.addr64(sa, self.u, st0)
        p(f's_lshl_b32 {st1}, {sV}, 12\ns_add_u32 {st1}, {st1}, {US}')
        for i in range(4):
            p(f's_add_u32 m0, {st1}, {1024*i}')
            if i: self.addr64(sa, sa, 16384)
            p(f'global_load_lds_dwordx4 {t}, {sa}')
        self.WXV = V.get()
        lb = self.label('nowx')
        t3 = V.get()
        p(f'''v_bfe_u32 {t}, {L}, 2, 1
        v_lshlrev_b32 {t}, 10, {t}
        v_lshrrev_b32 {t2}, 4, {L}
        v_add_u32 {t}, {t}, {t2}
        s_lshl_b32 {st0}, {sC}, 2
        v_add_u32 {t}, {st0}, {t}
        v_sub_u32 {t2}, 0x800, {t}
        v_and_b32 {t2}, 0x7ff, {t2}
        v_and_b32 {t3}, 1, {L}
        v_cmp_eq_u32 vcc, 1, {t3}
        v_cndmask_b32 {t}, {t}, {t2}, vcc
        v_mul_u32_u24 {t}, 1026, {t}
        v_bfe_u32 {t2}, {L}, 3, 1
        v_lshl_add_u32 {t}, {t2}, 10, {t}
        s_mov_b32 exec_lo, 0x33333333
        s_mov_b32 exec_hi, 0x33333333
        global_load_ushort {self.WXV}, {t}, {self.wr}
        s_not_b64 exec, exec
        global_load_ushort {self.WXV}, {t}, {self.wi} ; nocheck
        s_mov_b64 exec, -1''')
        self.WL = V.get(16)
        p(f'''v_and_b32 {t}, 15, {L}
        v_lshrrev_b32 {t2}, 4, {L}
        v_lshlrev_b32 {t2}, 8, {t2}
        v_lshl_add_u32 {t}, {t}, 2, {t2}
        v_mul_u32_u24 {t}, 1026, {t}
        s_bitcmp1_b32 {sV}, 0
        s_cselect_b32 {sa[0]}, {self.wi[0]}, {self.wr[0]}
        s_cselect_b32 {sa[1]}, {self.wi[1]}, {self.wr[1]}
        s_lshr_b32 {st0}, {sV}, 1
        s_lshl_b32 {st0}, {st0}, 10
        s_add_u32 {st0}, {st0}, {sR}
        s_mul_i32 {st0}, {st0}, 1026
        s_lshl_b32 {st1}, {sG}, 4
        s_add_u32 {st0}, {st0}, {st1}''')
        self.addr64(sa, sa, st0)
        for i in range(4):
            if i: self.addr64(sa, sa, 64*1026)
            p(f'global_load_dwordx4 {self.WL[4*i:4*i+4]}, {t}, {sa}')
        V.put(t, t2, t3)

    def consts1(self):
        p, V, A, S, L = self.p, self.V, self.A, self.S, self.L
        self.CFr, self.CFi = A.get(16), A.get(16)
        self.TWc, self.TWs = V.get(16), V.get(16)
        k, b, an, c, s, d = V.get(), V.get(), V.get(), V.get(), V.get(), V.get()
        self.PI = V.get()
        self.H = V.get()
        p(f'''v_and_b32 {k}, 0x13, {L}
        v_bfe_u32 {b}, {L}, 2, 1
        v_lshl_or_b32 {k}, {b}, 3, {k}
        v_bfe_u32 {b}, {L}, 3, 1
        v_lshl_or_b32 {self.PI}, {b}, 2, {k}
        v_lshrrev_b32 {self.H}, 5, {L}
        v_cvt_f32_u32 {k}, {self.PI}
        v_cvt_f32_u32 {b}, {self.H}
        v_mul_f32 {k}, {fl(1/32)}, {k}
        v_mul_f32 {b}, {b}, {k}
        v_mul_f32 {b}, 4.0, {b}''')
        for f in range(4):
            for jj in range(4):
                i = 4*f + jj
                p(f'''v_fmamk_f32 {an}, {k}, {fl(8*f+jj)}, {b}
                v_cos_f32 {c}, {an}
                v_sin_f32 {s}, {an}
                v_mul_f32 {an}, {fl(1/32)}, {an}
                v_cvt_pk_bf16_f32 {d}, {c}, {s}
                v_cos_f32 {self.TWc[i]}, {an}
                v_accvgpr_write_b32 {self.CFr[i]}, {d}
                v_cvt_pk_bf16_f32 {d}, -{s}, {c}
                v_sin_f32 {self.TWs[i]}, {an}
                v_accvgpr_write_b32 {self.CFi[i]}, {d}''')
        self.R4a, self.R4b = A.get(4), A.get(4)
        m1, m2 = S.get(2), S.get(2)
        sg = V.get()
        p(f'''v_bfe_u32 {k}, {L}, 2, 2
        v_cvt_f32_u32 {k}, {k}
        v_mul_f32 {k}, {fl(1/1024)}, {k}
        v_cvt_f32_u32 {b}, {self.sC}
        v_mul_f32 {b}, {b}, {k}
        v_and_b32 {c}, 1, {L}
        v_cvt_f32_u32 {c}, {c}
        v_fmamk_f32 {b}, {c}, {fl(0.25)}, {b}
        v_lshlrev_b32 {sg}, 30, {L}
        v_and_b32 {sg}, 0x80000000, {sg}
        v_and_b32 {c}, 2, {L}
        v_lshrrev_b32 {s}, 4, {L}
        v_cmp_eq_u32 {m1}, {c}, {s}
        v_add_u32 {c}, 1, {c}
        v_cmp_eq_u32 {m2}, {c}, {s}''')
        for m in range(4):
            p(f'''v_fmamk_f32 {an}, {k}, {fl(256*m)}, {b}
            v_cos_f32 {c}, {an}
            v_sin_f32 {s}, {an}
            v_xor_b32 {s}, {sg}, {s}
            v_cvt_pk_bf16_f32 {d}, {c}, {s}
            v_cndmask_b32 {c}, 0, {d}, {m1}
            v_cndmask_b32 {s}, 0, {d}, {m2}
            v_accvgpr_write_b32 {self.R4a[m]}, {c}
            v_accvgpr_write_b32 {self.R4b[m]}, {s}''')
        S.put(m1, m2); V.put(sg)
        self.aXR = V.get(); self.aZW = V.get(); self.aZR = V.get(4); self.aC = V.get(); self.aZX = V.get()
        st0 = self.st0
        p(f'''s_mul_i32 {st0}, {self.sV}, {PL}
        v_bfe_u32 {k}, {L}, 2, 1
        v_mul_u32_u24 {k}, 2176, {k}
        v_bfe_u32 {b}, {L}, 3, 1
        v_lshl_add_u32 {b}, {self.H}, 2, {b}
        v_lshl_add_u32 {k}, {b}, 6, {k}
        v_bfe_u32 {b}, {L}, 4, 1
        v_lshl_add_u32 {k}, {b}, 5, {k}
        v_and_b32 {b}, 3, {L}
        v_lshl_add_u32 {k}, {b}, 3, {k}
        v_add_u32 {self.aXR}, {st0}, {k}
        v_and_b32 {k}, 31, {L}
        v_mul_u32_u24 {k}, 144, {k}
        v_lshl_add_u32 {k}, {self.H}, 5, {k}
        v_add_u32 {self.aZW}, {st0}, {k}
        v_and_b32 {k}, 15, {L}
        v_lshlrev_b32 {k}, 1, {k}
        v_bfe_u32 {b}, {L}, 4, 1
        v_add_u32 {k}, {k}, {b}
        s_lshl_b32 {st0}, {self.sV}, 7
        v_add_u32 {k}, {st0}, {k}
        v_cmp_lt_u32 vcc, 31, {L}''')
        def zaddr(dst, q):
            p(f'''v_lshrrev_b32 {c}, 5, {q}
            v_and_b32 {s}, 0x13, {c}
            v_bfe_u32 {d}, {c}, 2, 1
            v_lshl_or_b32 {s}, {d}, 3, {s}
            v_bfe_u32 {d}, {c}, 3, 1
            v_lshl_or_b32 {s}, {d}, 2, {s}
            v_mul_u32_u24 {s}, 144, {s}
            v_and_b32 {c}, 31, {q}
            v_lshl_add_u32 {dst}, {c}, 2, {s}''')
        m1 = S.get(2)
        for t in range(4):
            p(f'''v_add_u32 {b}, {32*t}, {k}
            v_sub_u32 {an}, 0x400, {b}''')
            if t == 0:
                p(f'''v_cmp_eq_u32 {m1}, 0, {b}
                v_mov_b32 {c}, 0x200
                v_cndmask_b32 {an}, {an}, {c}, {m1}''')
            p(f'v_cndmask_b32 {b}, {b}, {an}, vcc')
            zaddr(self.aZR[t], b)
        S.put(m1)
        p(f'''v_mov_b32 {c}, {16*144}
        v_cndmask_b32 {self.aZX}, {c}, 0, vcc
        v_lshrrev_b32 {k}, 4, {L}
        v_bfe_u32 {b}, {L}, 2, 2
        v_lshl_add_u32 {k}, {k}, 6, {b}
        v_and_b32 {b}, 3, {L}
        v_lshlrev_b32 {b}, 4, {b}
        v_lshl_add_u32 {self.aC}, {k}, 14, {b}''')
        V.put(k, b, an, c, s, d)
        self.TG = S.get(4); self.sN = S.get(); self.MK = V.get()
        st0, st1, sE = self.st0, self.st1, self.sE
        p(f'''v_mov_b32 {self.MK}, 0xfffefffe
        s_waitcnt lgkmcnt(0)
        s_not_b32 {self.sN}, {sE}
        s_mul_i32 {st0}, {sE}, 0x9e3779b1
        s_lshr_b32 {st1}, {st0}, 15
        s_and_b32 {self.TG[1]}, {st1}, 0x10001
        s_lshr_b32 {st1}, {st0}, 14
        s_and_b32 {self.TG[2]}, {st1}, 0x10001
        s_lshr_b32 {st1}, {st0}, 13
        s_and_b32 {self.TG[3]}, {st1}, 0x10001
        s_lshr_b32 {st1}, {st0}, 12
        s_and_b32 {st1}, {st1}, 0x10000
        s_and_b32 {self.TG[0]}, {self.sN}, 1
        s_or_b32 {self.TG[0]}, {self.TG[0]}, {st1}''')

    def fft1024(self, FA, Dr, Di):
        p, V = self.p, self.V
        for f in range(4):
            p(f'v_mfma_f32_32x32x16_bf16 {Dr}, {FA[4*f:4*f+4]}, {self.CFr[4*f:4*f+4]}, {Dr if f else 0}')
            p(f'v_mfma_f32_32x32x16_bf16 {Di}, {FA[4*f:4*f+4]}, {self.CFi[4*f:4*f+4]}, {Di if f else 0}')
        self.twiddle(Dr, Di, self.TWc, self.TWs, FA)
        for f in range(4):
            p(f'v_mfma_f32_32x32x16_bf16 {Dr}, {FA[4*f:4*f+4]}, {self.CFr[4*f:4*f+4]}, {Dr if f else 0}')
            p(f'v_mfma_f32_32x32x16_bf16 {Di}, {FA[4*f:4*f+4]}, {self.CFi[4*f:4*f+4]}, {Di if f else 0}')
    def twiddle(self, Dr, Di, Tc, Ts, F):
        p, V = self.p, self.V
        T = V.get(8)
        n = Dr.n//2
        for k0 in range(0, n, 2):
            ks = (k0, k0+1)
            tt = {k: (T[4*(k-k0):4*(k-k0)+2], T[4*(k-k0)+2:4*(k-k0)+4]) for k in ks}
            s2 = lambda R, k: R[(2*k) % R.n:(2*k) % R.n+2]
            for k in ks: p(f'v_pk_mul_f32 {tt[k][0]}, {s2(Dr,k)}, {s2(Tc,k)}\nv_pk_mul_f32 {tt[k][1]}, {s2(Di,k)}, {s2(Tc,k)}')
            for k in ks: p(f'v_pk_fma_f32 {tt[k][0]}, {s2(Di,k)}, {s2(Ts,k)}, {tt[k][0]}\nv_pk_fma_f32 {tt[k][1]}, {s2(Dr,k)}, {s2(Ts,k)}, {tt[k][1]} neg_lo:[1,0,0] neg_hi:[1,0,0]')
            for k in ks:
                for e in range(2): p(f'v_cvt_pk_bf16_f32 {F[2*k+e]}, {tt[k][0][e]}, {tt[k][1][e]}')
        V.put(T)
    def fft256(self, F, Dr, Di):
        p = self.p; n = F.n//4
        q = lambda R, s: R[4*s:4*s+4]
        for s in range(n):
            p(f'v_mfma_f32_16x16x32_bf16 {q(Dr,s)}, {q(F,s)}, {self.C16r}, 0\nv_mfma_f32_16x16x32_bf16 {q(Di,s)}, {q(F,s)}, {self.C16i}, 0')
        self.twiddle(Dr, Di, self.T16c, self.T16s, F)
        for s in range(n):
            p(f'v_mfma_f32_16x16x32_bf16 {q(Dr,s)}, {self.C16r}, {q(F,s)}, 0\nv_mfma_f32_16x16x32_bf16 {q(Di,s)}, {self.C16i}, {q(F,s)}, 0')
    def tag4(self, R):
        for d in range(4): self.p(f'v_bfi_b32 {R[d]}, {self.MK}, {R[d]}, {self.TG[d]}')
    def check16(self, R, acc, t):
        p = self.p
        for d in range(4):
            p(f'v_bitop3_b32 {t[0]}, {R[d]}, {R[4+d]}, {self.TG[d]} bitop3:0x7e')
            p(f'v_bitop3_b32 {t[1]}, {R[8+d]}, {R[12+d]}, {self.TG[d]} bitop3:0x7e')
            p(f'v_or3_b32 {acc}, {t[0]}, {t[1]}, {acc if d else 0}')
        p(f'v_and_b32 {acc}, 0x10001, {acc}\nv_cmp_ne_u32 vcc, 0, {acc}')
    def poll(self, issue, check, first_wait):
        p = self.p; ok, re_ = self.label('ok'), self.label('re')
        cnt = self.st1
        p(f's_waitcnt vmcnt({first_wait})')
        check()
        p(f's_cbranch_vccz {ok}\ns_movk_i32 {cnt}, {SPIN_MAX}\n{re_}:\ns_sleep 4')
        issue()
        p('s_waitcnt vmcnt(0)')
        check()
        p(f's_cbranch_vccz {ok}\ns_sub_u32 {cnt}, {cnt}, 1\ns_cmp_lg_u32 {cnt}, 0\ns_cbranch_scc1 {re_}\n{ok}:')

    def phase1(self, vm_after_x):
        p, V, S = self.p, self.V, self.S
        FA, Dr, Di = V.get(16), V.get(16), V.get(16)
        p(f's_waitcnt vmcnt({vm_after_x})')
        self.stamp('xland')
        for f in range(4):
            for t in range(2): p(f'ds_read_b64_tr_b16 {FA[4*f+2*t:4*f+2*t+2]}, {self.aXR} offset:{512*f+128*t}')
        p('s_waitcnt lgkmcnt(0)')
        self.fft1024(FA, Dr, Di)
        for g in range(4):
            for jj in range(4): p(f'v_cvt_pk_bf16_f32 {FA[4*g+jj]}, {Dr[4*g+jj]}, {Di[4*g+jj]}')
            p(f'ds_write_b128 {self.aZW}, {FA[4*g:4*g+4]} offset:{64*(g>>1)+16*(g&1)}')
        sa, st0, st1 = self.sa, self.st0, self.st1
        p(f'''s_lshl_b32 {st0}, {self.sV}, 18
        s_lshl_b32 {st1}, {self.sC}, 6
        s_add_u32 {st0}, {st0}, {st1}''')
        self.addr64(sa, self.ws, st0)
        p('s_waitcnt lgkmcnt(0)\ns_barrier')
        for t in range(4):
            p(f'ds_read2st64_b32 {FA[4*t:4*t+2]}, {self.aZR[t]} offset0:0 offset1:18\nds_read2st64_b32 {FA[4*t+2:4*t+4]}, {self.aZR[t]} offset0:36 offset1:54')
        for t in range(4):
            p(f's_waitcnt lgkmcnt({6-2*t})')
            p(f'v_mfma_f32_16x16x32_bf16 {Dr[4*t:4*t+4]}, {self.R4a}, {FA[4*t:4*t+4]}, 0\nv_mfma_f32_16x16x32_bf16 {Di[4*t:4*t+4]}, {self.R4b}, {FA[4*t:4*t+4]}, 0')
        for t in range(4):
            o = FA[4*t:4*t+4]
            p(f'''v_cvt_pk_bf16_f32 {o[0]}, {Dr[4*t]}, {Dr[4*t+1]}
            v_cvt_pk_bf16_f32 {o[1]}, {Dr[4*t+2]}, {Dr[4*t+3]}
            v_cvt_pk_bf16_f32 {o[2]}, {Di[4*t]}, {Di[4*t+1]}
            v_cvt_pk_bf16_f32 {o[3]}, {Di[4*t+2]}, {Di[4*t+3]}''')
            self.tag4(o)
            if t: self.addr64(sa, sa, 4*16384)
            p(f'global_store_dwordx4 {self.aC}, {o}, {sa} sc1')
        self.stamp('t1st')
        l0, l1 = self.label('x0'), self.label('x1')
        t = Dr
        p(f'''s_cmp_lg_u32 {self.sV}, 0
        s_cbranch_scc1 {l0}
        ds_read2st64_b32 {t[0:2]}, {self.aZX} offset0:0 offset1:18
        ds_read2st64_b32 {t[2:4]}, {self.aZX} offset0:36 offset1:54
        v_lshrrev_b32 {t[8]}, 4, {self.L}
        v_lshlrev_b32 {t[8]}, 12, {t[8]}
        s_lshl_b32 {st0}, {self.sC}, 4
        s_add_u32 {st0}, {st0}, {T1X}''')
        self.addr64(sa, self.ws, st0)
        p(f'''s_waitcnt lgkmcnt(0)
        v_mfma_f32_16x16x32_bf16 {t[4:8]}, {self.R4a}, {t[0:4]}, 0
        v_cvt_pk_bf16_f32 {t[0]}, {t[4]}, {t[5]}
        v_cvt_pk_bf16_f32 {t[2]}, {t[6]}, {t[7]}
        v_mov_b32 {t[1]}, {self.sN}
        v_mov_b32 {t[3]}, {self.sN}
        s_mov_b32 exec_lo, 0x00010001
        s_mov_b32 exec_hi, 0x00010001
        global_store_dwordx4 {t[8]}, {t[0:4]}, {sa} sc1
        s_mov_b64 exec, -1
        s_branch {l1}
        {l0}:
        s_waitcnt vmcnt(8)
        v_lshlrev_b32 {t[10]}, 16, {self.WXV}
        v_and_b32 {t[11]}, 3, {self.L}
        v_cmp_eq_u32 vcc, 3, {t[11]}
        v_cndmask_b32 {t[10]}, {t[10]}, -{t[10]}, vcc
        v_add_f32_dpp {t[11]}, {t[10]}, {t[10]} quad_perm:[1,0,3,2] row_mask:0xf bank_mask:0xf
        v_mul_f32 {t[11]}, 0.5, {t[11]}
        v_mov_b32_dpp {t[10]}, {t[11]} quad_perm:[2,3,0,1] row_mask:0xf bank_mask:0xf
        v_cvt_pk_bf16_f32 {t[10]}, {t[11]}, {t[10]}
        v_and_b32 {t[12]}, 1, {self.L}
        v_cmp_eq_u32 vcc, 1, {t[12]}
        v_mov_b32 {t[11]}, {self.sN}
        v_cndmask_b32 {t[10]}, {t[10]}, {t[11]}, vcc
        v_bfe_u32 {t[11]}, {self.L}, 2, 2
        v_lshlrev_b32 {t[11]}, 3, {t[11]}
        v_lshl_add_u32 {t[11]}, {t[12]}, 2, {t[11]}
        v_lshrrev_b32 {t[12]}, 4, {self.L}
        v_lshl_add_u32 {t[11]}, {t[12]}, 13, {t[11]}
        s_lshl_b32 {st0}, {self.sC}, 5
        s_add_u32 {st0}, {st0}, {WX}''')
        self.addr64(sa, self.ws, st0)
        p(f'''s_mov_b32 exec_lo, 0x33333333
        s_mov_b32 exec_hi, 0x33333333
        global_store_dword {t[11]}, {t[10]}, {sa} sc1
        s_mov_b64 exec, -1
        {l1}:''')
        V.put(FA, Dr, Di, self.aXR, self.aZW, self.aZR, self.aZX, self.WXV)
        self.A.put(self.R4a, self.R4b)

    def wstage(self):
        p, V = self.p, self.V
        a = V.get()
        p(f's_lshl_b32 {self.st0}, {self.sV}, 10\ns_add_u32 {self.st0}, {self.st0}, {WS}\nv_add_u32 {a}, {self.st0}, {self.L16}')
        for rho in range(4):
            for s in range(4): p(f'ds_write_b32 {a}, {self.WL[4*rho+s]} offset:{4096*s+4*rho}')
        p('s_waitcnt lgkmcnt(0)\ns_barrier')
        V.put(a)
    def consts2(self):
        p, V, A, L = self.p, self.V, self.A, self.L
        self.C16r, self.C16i = A.get(4), A.get(4)
        self.T16c, self.T16s, self.Cm, self.Sm = V.get(4), V.get(4), V.get(4), V.get(4)
        k, b, an, c, s, d = V.get(), V.get(), V.get(), V.get(), V.get(), V.get()
        self.L15 = V.get(); self.GK = V.get()
        p(f'''v_and_b32 {self.L15}, 15, {L}
        v_lshrrev_b32 {self.GK}, 4, {L}
        v_cvt_f32_u32 {k}, {self.L15}
        v_cvt_f32_u32 {b}, {self.GK}
        v_mul_f32 {k}, {fl(1/16)}, {k}
        v_mul_f32 {d}, {b}, {k}
        v_mul_f32 {d}, 4.0, {d}''')
        e = V.get()
        for jj in range(4):
            p(f'''v_fmamk_f32 {an}, {k}, {fl(jj)}, {d}
            v_cos_f32 {c}, {an}
            v_sin_f32 {s}, {an}
            v_mul_f32 {an}, {fl(1/16)}, {an}
            v_cvt_pk_bf16_f32 {e}, {c}, {s}
            v_cos_f32 {self.T16c[jj]}, {an}
            v_accvgpr_write_b32 {self.C16r[jj]}, {e}
            v_cvt_pk_bf16_f32 {e}, -{s}, {c}
            v_sin_f32 {self.T16s[jj]}, {an}
            v_accvgpr_write_b32 {self.C16i[jj]}, {e}''')
        p(f'''v_lshlrev_b32 {c}, 8, {self.GK}
        v_lshl_add_u32 {c}, {self.L15}, 2, {c}
        v_add_u32 {c}, {self.sR}, {c}
        v_cvt_f32_u32 {c}, {c}
        v_mul_f32 {c}, {fl(1/2048)}, {c}''')
        for rho in range(4):
            p(f'''v_add_f32 {an}, {fl(rho/32)}, {c}
            v_sin_f32 {self.Cm[rho]}, {an}
            v_cos_f32 {self.Sm[rho]}, {an}''')
        self.aT1 = V.get(); self.aEW = V.get(); self.aT2s = V.get()
        p(f'''v_lshlrev_b32 {c}, 12, {self.GK}
        v_lshl_add_u32 {self.aT1}, {self.L15}, 6, {c}
        v_bfe_u32 {s}, {L}, 1, 3
        v_add_u32 {s}, {self.sV}, {s}
        v_and_b32 {s}, 3, {s}
        v_lshl_add_u32 {s}, {s}, 4, {self.aT1}
        v_add_u32 {self.aEW}, {EX}, {s}
        v_lshrrev_b32 {c}, 3, {L}
        v_sub_u32 {c}, {L}, {c}
        v_and_b32 {c}, 3, {c}
        v_lshlrev_b32 {c}, 4, {c}
        v_lshrrev_b32 {s}, 2, {L}
        v_lshl_add_u32 {self.aT2s}, {s}, 14, {c}''')
        V.put(k, b, an, c, s, d, e)
    def mcalc(self, M, W0r, W0i, W1r, W1i):
        p = self.p
        for h in range(2):
            s2 = lambda R: R[2*h:2*h+2]
            for (a, b, pp, mm, nn) in ((W0r, W1r, M[0], M[2], M[4]), (W0i, W1i, M[1], M[3], M[5])):
                p(f'''v_pk_add_f32 {s2(nn)}, {s2(a)}, {s2(b)} neg_lo:[0,1] neg_hi:[0,1]
                v_pk_add_f32 {s2(a)}, {s2(a)}, {s2(b)}
                v_pk_fma_f32 {s2(pp)}, {s2(self.Cm)}, {s2(nn)}, {s2(a)} neg_lo:[1,0,0] neg_hi:[1,0,0]
                v_pk_fma_f32 {s2(mm)}, {s2(self.Cm)}, {s2(nn)}, {s2(a)}
                v_pk_mul_f32 {s2(nn)}, {s2(self.Sm)}, {s2(nn)}''')
    def mpre(self):
        p, V, S = self.p, self.V, self.S
        a = V.get(); R = self.WL
        p(f's_lshl_b32 {self.st0}, {self.sV}, 12\ns_add_u32 {self.st0}, {self.st0}, {WS}\nv_add_u32 {a}, {self.st0}, {self.L16}')
        for ah in range(4): p(f'ds_read_b128 {R[4*ah:4*ah+4]}, {a} offset:{1024*ah}')
        self.M = [[V.get(4) for _ in range(6)] for _ in range(2)]
        U = V.get(16)
        p('s_waitcnt lgkmcnt(0)')
        for u in range(2):
            for i in range(16):
                p(f'v_lshlrev_b32 {U[i]}, 16, {R[i]}' if u == 0 else f'v_and_b32 {U[i]}, 0xffff0000, {R[i]}')
            self.mcalc(self.M[u], U[0:4], U[4:8], U[8:12], U[12:16])
        self.N2 = [V.get(4), V.get(4)]
        self.sSP = S.get()
        lb = self.label('nosp')
        X = V.get(32); acc = V.get(); junk = [V.get(4), V.get(4)]
        p(f'''s_or_b32 {self.sSP}, {self.sG}, {self.sV}
        s_cmp_lg_u32 {self.sSP}, 0
        s_cbranch_scc1 {lb}
        s_lshl_b32 {self.st0}, {self.sR}, 13
        s_add_u32 {self.st0}, {self.st0}, {WX}
        v_lshrrev_b32 {a}, 1, {self.aT1}''')
        self.addr64(self.sa, self.ws, self.st0)
        def issue():
            for i in range(4):
                for h in range(2): p(f'global_load_dwordx4 {X[8*i+4*h:8*i+4*h+4]}, {a}, {self.sa} offset:{512*i+16*h} sc1')
        def check():
            for i in range(8):
                p(f'v_bitop3_b32 {U[0]}, {X[4*i+1]}, {X[4*i+3]}, {self.sN} bitop3:0x7e')
                p(f'v_or_b32 {acc}, {U[0]}, {acc}' if i else f'v_mov_b32 {acc}, {U[0]}')
            p(f'v_cmp_ne_u32 vcc, 0, {acc}')
        issue(); self.poll(issue, check, 0)
        M0 = self.M[0]
        for col in range(2):
            for half in range(2):
                for i in range(4):
                    src = X[8*i+4*col+2*half]
                    p(f'v_lshlrev_b32 {U[8*half+i]}, 16, {src}\nv_and_b32 {U[8*half+4+i]}, 0xffff0000, {src}')
            MM = [M0[0], M0[1], junk[0], junk[1], M0[4], M0[5]] if col == 0 else [junk[0], junk[1], M0[2], M0[3], self.N2[0], self.N2[1]]
            self.mcalc(MM, U[0:4], U[4:8], U[8:12], U[12:16])
        p(f'{lb}:')
        V.put(a, U, X, acc, *junk, self.WL, self.Cm, self.Sm)

    def t1_issue_setup(self):
        S, V = self.S, self.V
        self.sT1 = S.get(2); self.TL = V.get(16)
        self.p(f's_lshl_b32 {self.st0}, {self.sC}, 14\ns_lshl_b32 {self.st1}, {self.sV}, 4\ns_add_u32 {self.st0}, {self.st0}, {self.st1}')
        self.addr64(self.sT1, self.ws, self.st0)
    def t1_issue(self):
        for i in range(4): self.p(f'global_load_dwordx4 {self.TL[4*i:4*i+4]}, {self.aT1}, {self.sT1} offset:{1024*i} sc1')
    def middle(self, M, Pr, Pi, Qr, Qi, Fp, Fm, Pxr=None, Pxi=None, Qxr=None, Qxi=None, N2=None):
        p, V = self.p, self.V
        ppr, ppi, mmr, mmi, nr, ni = M
        n2r, n2i = N2 or (nr, ni)
        Pxr, Pxi, Qxr, Qxi = Pxr or Pr, Pxi or Pi, Qxr or Qr, Qxi or Qi
        T = V.get(8)
        N = ' neg_lo:[1,0,0] neg_hi:[1,0,0]'
        for h in range(2):
            s = lambda R: R[2*h:2*h+2]
            a, b, c, d = T[0:2], T[2:4], T[4:6], T[6:8]
            p(f'''v_pk_mul_f32 {a}, {s(ppr)}, {s(Pr)}
            v_pk_mul_f32 {b}, {s(ppr)}, {s(Pi)}
            v_pk_mul_f32 {c}, {s(mmr)}, {s(Qr)}
            v_pk_mul_f32 {d}, {s(mmr)}, {s(Qi)}
            v_pk_fma_f32 {a}, {s(ppi)}, {s(Pi)}, {a}{N}
            v_pk_fma_f32 {b}, {s(ppi)}, {s(Pr)}, {b}
            v_pk_fma_f32 {c}, {s(mmi)}, {s(Qi)}, {c}{N}
            v_pk_fma_f32 {d}, {s(mmi)}, {s(Qr)}, {d}
            v_pk_fma_f32 {a}, {s(ni)}, {s(Qxr)}, {a}{N}
            v_pk_fma_f32 {b}, {s(nr)}, {s(Qxr)}, {b}
            v_pk_fma_f32 {c}, {s(n2r)}, {s(Pxi)}, {c}
            v_pk_fma_f32 {d}, {s(n2r)}, {s(Pxr)}, {d}{N}
            v_pk_fma_f32 {a}, {s(nr)}, {s(Qxi)}, {a}{N}
            v_pk_fma_f32 {b}, {s(ni)}, {s(Qxi)}, {b}{N}
            v_pk_fma_f32 {c}, {s(n2i)}, {s(Pxr)}, {c}
            v_pk_fma_f32 {d}, {s(n2i)}, {s(Pxi)}, {d}''')
            for e in range(2):
                p(f'v_cvt_pk_bf16_f32 {Fp[2*h+e]}, {b[e]}, {a[e]}\nv_cvt_pk_bf16_f32 {Fm[2*h+e]}, {d[e]}, {c[e]}')
        V.put(T)
    def phase2(self, first_wait, after_check=None):
        p, V, S = self.p, self.V, self.S
        TL = self.TL; F, Dr, Di = V.get(16), V.get(16), V.get(16)
        acc = V.get(); t = V.get(2)
        self.poll(self.t1_issue, lambda: self.check16(TL, acc, t), first_wait)
        self.stamp('t1ok')
        lb = self.label('ep')
        p(f'''s_or_b32 {self.st0}, {self.sC}, {self.sV}
        s_cmp_lg_u32 {self.st0}, 0
        s_cbranch_scc1 {lb}
        s_add_u32 {self.st0}, {self.sE}, 1
        v_mov_b32 {t[0]}, {self.st0}
        v_mov_b32 {t[1]}, 0
        s_mov_b64 exec, 1
        global_store_dword {t[1]}, {t[0]}, {self.sb}
        s_mov_b64 exec, -1
        s_waitcnt vmcnt(0)
        {lb}:''')
        if after_check: after_check()
        q = lambda R, s: R[4*s:4*s+4]
        for s in range(4):
            for i in range(4): p(f'v_mov_b32 {F[4*s+i]}, {TL[4*i+s]}')
        self.fft256(F, Dr, Di)
        lsp, ldone = self.label('sp'), self.label('spd')
        p(f's_cmp_eq_u32 {self.sSP}, 0\ns_cbranch_scc1 {lsp}')
        self.middle(self.M[0], q(Dr,0), q(Di,0), q(Dr,1), q(Di,1), q(F,0), q(F,1))
        p(f's_branch {ldone}\n{lsp}:')
        X, FX, Xr, Xi = TL, V.get(8), V.get(8), V.get(8); a = V.get()
        p(f's_lshl_b32 {self.st0}, {self.sR}, 12\ns_add_u32 {self.st0}, {self.st0}, {T1X}\nv_lshrrev_b32 {a}, 2, {self.aT1}')
        self.addr64(self.sa, self.ws, self.st0)
        def issue():
            for i in range(4): p(f'global_load_dwordx4 {X[4*i:4*i+4]}, {a}, {self.sa} offset:{256*i} sc1')
        def check():
            for i in range(4):
                p(f'v_bitop3_b32 {t[0]}, {X[4*i+1]}, {X[4*i+3]}, {self.sN} bitop3:0x7e')
                p(f'v_or_b32 {acc}, {t[0]}, {acc}' if i else f'v_mov_b32 {acc}, {t[0]}')
            p(f'v_cmp_ne_u32 vcc, 0, {acc}')
        issue(); self.poll(issue, check, 0)
        for s in range(2):
            for i in range(4): p(f'v_mov_b32 {FX[4*s+i]}, {X[4*i+2*s]}')
        self.fft256(FX, Xr, Xi)
        self.middle(self.M[0], q(Dr,0), q(Di,0), q(Dr,1), q(Di,1), q(F,0), q(F,1), q(Xr,0), q(Xi,0), q(Xr,1), q(Xi,1), self.N2)
        p(f'{ldone}:\ns_nop 7')
        V.put(FX, Xr, Xi, a)
        self.middle(self.M[1], q(Dr,2), q(Di,2), q(Dr,3), q(Di,3), q(F,2), q(F,3))
        self.fft256(F, Dr, Di)
        for rho in range(4):
            o = F[4*rho:4*rho+4]
            for s in range(4): p(f'v_cvt_pk_bf16_f32 {o[s]}, {Di[4*s+rho]}, {Dr[4*s+rho]}')
            self.tag4(o)
            p(f'ds_write_b128 {self.aEW}, {o} offset:{1024*rho}')
        sa, st0, st1 = self.sa, self.st0, self.st1
        p(f'''s_lshl_b32 {st0}, {self.sV}, 12
        s_add_u32 {st0}, {st0}, {EX}
        v_add_u32 {acc}, {st0}, {self.L16}
        s_lshl_b32 {st0}, {self.sV}, 20
        s_lshl_b32 {st1}, {self.sC}, 6
        s_add_u32 {st0}, {st0}, {st1}
        s_add_u32 {st0}, {st0}, {T2}''')
        self.addr64(sa, self.ws, st0)
        p('s_waitcnt lgkmcnt(0)\ns_barrier')
        for i in range(4): p(f'ds_read_b128 {Dr[4*i:4*i+4]}, {acc} offset:{1024*i}')
        for i in range(4):
            if i: self.addr64(sa, sa, 16*16384)
            p(f's_waitcnt lgkmcnt({3-i})\nglobal_store_dwordx4 {self.aT2s}, {Dr[4*i:4*i+4]}, {sa} sc1')
        self.stamp('t2st')
        V.put(F, Dr, Di, acc, t, self.aT1, self.aEW, self.aT2s, self.T16c, self.T16s, *self.M[0], *self.M[1], *self.N2)
        self.A.put(self.C16r, self.C16i); S.put(self.sT1)

    def consts3(self):
        p, V, A, S, L = self.p, self.V, self.A, self.S, self.L
        self.R4l, self.R4h = A.get(4), A.get(4)
        k, b, an, c, s, d = V.get(), V.get(), V.get(), V.get(), V.get(), V.get()
        m1, m2 = S.get(2), S.get(2)
        p(f'''v_bfe_u32 {k}, {L}, 3, 1
        v_bfe_u32 {b}, {L}, 1, 1
        v_lshl_add_u32 {k}, {k}, 1, {b}
        v_lshlrev_b32 {k}, 8, {k}
        v_add_u32 {k}, {self.sC}, {k}
        v_cvt_f32_u32 {k}, {k}
        v_mul_f32 {k}, {fl(1/1024)}, {k}
        v_and_b32 {b}, 1, {L}
        v_cvt_f32_u32 {b}, {b}
        v_mul_f32 {b}, {fl(-0.25)}, {b}
        v_bfe_u32 {c}, {L}, 2, 1
        v_cmp_eq_u32 {m1}, {c}, {self.GK}
        v_add_u32 {c}, 2, {c}
        v_cmp_eq_u32 {m2}, {c}, {self.GK}''')
        for r in range(4):
            p(f'''v_fmamk_f32 {an}, {k}, {fl(r)}, {b}
            v_cos_f32 {c}, {an}
            v_sin_f32 {s}, {an}
            v_mul_f32 {c}, {fl(2.0**-21)}, {c}
            v_mul_f32 {s}, {fl(-2.0**-21)}, {s}
            v_cvt_pk_bf16_f32 {d}, {c}, {s}
            v_cndmask_b32 {c}, 0, {d}, {m1}
            v_cndmask_b32 {s}, 0, {d}, {m2}
            v_accvgpr_write_b32 {self.R4l[r]}, {c}
            v_accvgpr_write_b32 {self.R4h[r]}, {s}''')
        S.put(m1, m2)
        self.aVW = V.get(4); self.aVR = V.get(4); self.aO = V.get()
        def vaddr(dst, q):
            p(f'''v_and_b32 {c}, 31, {q}
            v_lshrrev_b32 {s}, 5, {q}
            v_bfe_u32 {d}, {q}, 1, 3
            v_lshlrev_b32 {d}, 2, {d}
            v_xor_b32 {s}, {s}, {d}
            v_lshlrev_b32 {s}, 2, {s}
            v_lshl_add_u32 {s}, {c}, 7, {s}
            v_add_u32 {dst}, {s}, {b}''')
        m1 = S.get(2)
        p(f'''v_and_b32 {k}, 1, {self.GK}
        v_lshlrev_b32 {k}, 5, {k}
        v_lshl_add_u32 {k}, {self.L15}, 1, {k}
        s_lshl_b32 {self.st0}, {self.sV}, 7
        v_add_u32 {k}, {self.st0}, {k}
        v_lshlrev_b32 {b}, 13, {self.H}''')
        vaddr(self.aVW[0], k)
        p(f'v_sub_u32 {an}, {1024-1-64}, {k}'); vaddr(self.aVW[1], an)
        p(f'v_sub_u32 {an}, {1024-64}, {k}'); vaddr(self.aVW[3], an)
        p(f'''v_sub_u32 {an}, 0x400, {k}
        v_cmp_eq_u32 {m1}, 0, {k}
        v_mov_b32 {c}, 0x200
        v_cndmask_b32 {an}, {an}, {c}, {m1}''')
        vaddr(self.aVW[2], an)
        S.put(m1)
        p(f'''v_and_b32 {k}, 31, {L}
        v_bfe_u32 {c}, {L}, 1, 3
        v_xor_b32 {c}, {c}, {self.H}
        v_lshlrev_b32 {c}, 4, {c}
        v_lshl_add_u32 {k}, {k}, 7, {c}
        s_lshl_b32 {self.st0}, {self.sV}, 12
        v_add_u32 {self.aVR[0]}, {self.st0}, {k}''')
        for f in range(1, 4): p(f'v_xor_b32 {self.aVR[f]}, {32*f}, {self.aVR[0]}')
        p(f'v_lshlrev_b32 {k}, 4, {self.H}\nv_lshl_add_u32 {self.aO}, {self.PI}, 6, {k}')
        V.put(k, b, an, c, s, d)
        self.sT2 = [S.get(2), S.get(2)]
        p(f's_lshl_b32 {self.st0}, {self.sC}, 14\ns_lshl_b32 {self.st1}, {self.sV}, 10\ns_add_u32 {self.st0}, {self.st0}, {self.st1}\ns_add_u32 {self.st0}, {self.st0}, {T2+4096}')
        self.addr64(self.sT2[0], self.ws, self.st0)
        self.addr64(self.sT2[1], self.sT2[0], 8192)
    def t2_issue(self):
        for r in range(4): self.p(f'global_load_dwordx4 {self.TL[4*r:4*r+4]}, {self.L16}, {self.sT2[r>>1]} offset:{-4096*(1-(r&1))} sc1')
    def phase3(self, first_wait):
        p, V, S = self.p, self.V, self.S
        TL = self.TL; F, Dr, Di = V.get(16), V.get(16), V.get(16)
        acc = V.get(); t = V.get(2)
        self.poll(self.t2_issue, lambda: self.check16(TL, acc, t), first_wait)
        self.stamp('t2ok')
        for s in range(4):
            for i in range(4): p(f'v_mov_b32 {F[4*s+i]}, {TL[4*i+s]}')
        for s in range(4):
            p(f'v_mfma_f32_16x16x32_bf16 {Dr[4*s:4*s+4]}, {self.R4l}, {F[4*s:4*s+4]}, 0\nv_mfma_f32_16x16x32_bf16 {Di[4*s:4*s+4]}, {self.R4h}, {F[4*s:4*s+4]}, 0')
        for s in range(4):
            e, up = s >> 1, s & 1
            for hi, D in ((0, Dr), (1, Di)):
                for ml in range(2):
                    o = TL[4*s+2*hi+ml]
                    p(f'v_cvt_pk_bf16_f32 {o}, {"-" if up else ""}{D[4*s+2*ml+1]}, {D[4*s+2*ml]}')
                    if not up: a, off = self.aVW[0], 128*e + 8*hi
                    elif e: a, off = self.aVW[1], 8*(1-hi)
                    else: a, off = self.aVW[2+hi], 0
                    p(f'ds_write_b32 {a}, {o} offset:{off + 4096*ml}')
        sa, st0 = self.sa, self.st0
        p(f's_lshl_b32 {st0}, {self.sV}, 8\ns_add_u32 {st0}, {st0}, {self.sC}\ns_lshl_b32 {st0}, {st0}, 13\ns_add_u32 {st0}, {st0}, 4096')
        self.addr64(sa, self.out, st0)
        p('s_waitcnt lgkmcnt(0)\ns_barrier')
        for f in range(4): p(f'ds_read_b128 {F[4*f:4*f+4]}, {self.aVR[f]}')
        p('s_waitcnt lgkmcnt(0)')
        self.fft1024(F, Dr, Di)
        for row, D in ((0, Di), (1, Dr)):
            for hf in range(2):
                o = F[8*row+4*hf:8*row+4*hf+4]
                for k in range(4): p(f'v_cvt_pk_bf16_f32 {o[k]}, {D[8*hf+2*k]}, {D[8*hf+2*k+1]}')
                p(f'global_store_dwordx4 {self.aO}, {o}, {sa} offset:{-4096*(1-row)+32*hf}')
        self.stamp('outst')
        V.put(F, Dr, Di, acc, t, self.aVW, self.aVR, self.aO)
        S.put(*self.sT2); self.A.put(self.R4l, self.R4h)

    def tu_produce(self):
        p, V = self.p, self.V
        a, o, R = V.get(), V.get(), V.get(16)
        t = V.get(); L = self.L; sa, st0, st1 = self.sa, self.st0, self.st1
        p(f"""v_bfe_u32 {a}, {L}, 2, 2
        v_lshlrev_b32 {a}, 7, {a}
        v_lshrrev_b32 {t}, 4, {L}
        v_lshl_add_u32 {a}, {t}, 5, {a}
        v_and_b32 {t}, 3, {L}
        v_lshl_add_u32 {a}, {t}, 3, {a}
        s_lshl_b32 {st0}, {self.sV}, 12
        s_add_u32 {st0}, {st0}, {US}
        v_add_u32 {a}, {st0}, {a}""")
        for b in range(4):
            for h in range(2): p(f'ds_read_b64_tr_b16 {R[4*b+2*h:4*b+2*h+2]}, {a} offset:{1024*b+512*h}')
        p(f"""v_lshlrev_b32 {t}, 4, {t}
        v_lshrrev_b32 {o}, 2, {L}
        v_lshl_add_u32 {o}, {o}, 14, {t}
        s_lshr_b32 {st0}, {self.sC}, 4
        s_lshl_b32 {st0}, {st0}, 18
        s_and_b32 {st1}, {self.sC}, 15
        s_lshl_b32 {st1}, {st1}, 10
        s_add_u32 {st0}, {st0}, {st1}
        s_lshl_b32 {st1}, {self.sV}, 8
        s_add_u32 {st0}, {st0}, {st1}
        s_add_u32 {st0}, {st0}, {TU}""")
        self.addr64(sa, self.ws, st0)
        for b in range(4):
            p(f's_waitcnt lgkmcnt({6-2*b})')
            self.tag4(R[4*b:4*b+4])
            p(f'global_store_dwordx4 {o}, {R[4*b:4*b+4]}, {sa} offset:{64*b} sc1')
        V.put(a, o, R, t)
    def tu_setup(self):
        p, V, S = self.p, self.V, self.S
        self.UL = V.get(16); self.aTU = V.get(); self.sTU = [S.get(2), S.get(2)]
        p(f"""v_lshlrev_b32 {self.aTU}, 6, {self.L}
        s_lshl_b32 {self.st0}, {self.sC}, 14
        s_lshl_b32 {self.st1}, {self.sV}, 4
        s_add_u32 {self.st0}, {self.st0}, {self.st1}
        s_add_u32 {self.st0}, {self.st0}, {TU+4096}""")
        self.addr64(self.sTU[0], self.ws, self.st0)
        self.addr64(self.sTU[1], self.sTU[0], 8192)
    def tu_issue(self):
        for i in range(4): self.p(f'global_load_dwordx4 {self.UL[4*i:4*i+4]}, {self.aTU}, {self.sTU[i>>1]} offset:{-4096*(1-(i&1))} sc1')
    def tu_consume(self, first_wait):
        p, V = self.p, self.V
        acc, t = V.get(), V.get(2)
        self.poll(self.tu_issue, lambda: self.check16(self.UL, acc, t), first_wait)
        p(f'v_add_u32 {acc}, {self.sB}, {self.L16}')
        for i in range(4): p(f'ds_write_b128 {acc}, {self.UL[4*i:4*i+4]} offset:{UT+1024*i}')
        V.put(acc, t, self.UL, self.aTU); self.S.put(*self.sTU)

    def cmul(self, items):
        p = self.p
        for i, (d, x, e) in enumerate(items): p(f'v_pk_mul_f32 {self.CT[2*i:2*i+2]}, {x}, {e} op_sel:[0,0] op_sel_hi:[0,1]')
        for i, (d, x, e) in enumerate(items): p(f'v_pk_fma_f32 {d}, {x}, {e}, {self.CT[2*i:2*i+2]} op_sel:[1,1,0] op_sel_hi:[1,0,1] neg_lo:[0,1,0]')
    def krow(self, row, X, neg=False):
        p = self.p; o = self.KO[2*(row & 1):2*(row & 1)+2]
        for u in range(2): p(f'v_cvt_pk_bf16_f32 {o[u]}, {X[u][0]}, {"-" if neg else ""}{X[u][1]}')
        p(f'ds_write_b64 {self.aKW}, {o} offset:{KT+528*row}')
    def kgen_setup(self):
        p, V, S, L = self.p, self.V, self.S, self.L
        self.sB = S.get(); st0, st1 = self.st0, self.st1
        self.E = {n: [V.get(2), V.get(2)] for n in (1, 8, 128)}
        self.KY = [V.get(2), V.get(2)]; self.KX = [V.get(2), V.get(2)]; self.CT = V.get(4); self.KO = V.get(4)
        self.aKW, self.aKR = V.get(), V.get()
        dt, t0, t1, t2 = V.get(), V.get(), V.get(), V.get(); z = V.get(4)
        LOG2E = math.log2(math.e); hi = struct.unpack('<f', struct.pack('<f', LOG2E))[0]
        p(f"""s_mul_i32 {self.sB}, {self.sV}, {BW}
        s_add_u32 {self.sB}, {self.sB}, {BB}
        s_and_b32 {st0}, {self.sD}, 1
        s_lshl_b32 {st0}, {st0}, 4
        s_lshr_b32 {self.sLD}, {self.sLD}, {st0}
        s_lshl_b32 {self.sLD}, {self.sLD}, 16
        s_lshr_b32 {self.sDS}, {self.sDS}, {st0}
        s_lshl_b32 {self.sDS}, {self.sDS}, 16
        v_mov_b32 {t0}, {fl(hi)}
        v_mul_f32 {t1}, {self.sLD}, {t0}
        v_fma_f32 {t2}, {self.sLD}, {t0}, -{t1}
        v_mov_b32 {t0}, {fl(LOG2E-hi)}
        v_exp_f32 {dt}, {t1}
        v_fmac_f32 {t2}, {self.sLD}, {t0}
        v_mul_f32 {t2}, {fl(math.log(2))}, {t2}
        v_fmac_f32 {dt}, {dt}, {t2}
        v_cvt_pk_bf16_f32 {dt}, {dt}, {dt}
        v_lshlrev_b32 {dt}, 16, {dt}
        v_lshl_add_u32 {self.aKW}, {L}, 3, {self.sB}
        v_mul_u32_u24 {t0}, 528, {self.L15}
        v_lshl_add_u32 {t0}, {self.GK}, 4, {t0}
        v_add_u32 {self.aKR}, {self.sB}, {t0}
        v_mov_b32 {z[0]}, 0
        v_mov_b32 {z[1]}, 0
        v_mov_b32 {z[2]}, 0
        v_mov_b32 {z[3]}, 0
        v_lshl_add_u32 {t0}, {self.L15}, 4, {self.sB}
        ds_write_b128 {t0}, {z}
        v_and_b32 {t0}, 31, {L}
        v_lshl_add_u32 {t0}, {t0}, 4, {self.sB}
        ds_write_b128 {t0}, {z} offset:{UZ}""")
        un = lambda d, src, u: p(f'v_lshlrev_b32 {d}, 16, {src}' if u == 0 else f'v_and_b32 {d}, 0xffff0000, {src}')
        PR = self.PR
        for u in range(2):
            X, Y = self.KX[u], self.KY[u]
            un(X[0], PR[2], u); un(X[1], PR[3], u); un(Y[0], PR[4], u); un(Y[1], PR[5], u)
            p(f'v_mul_f32 {X[0]}, {dt}, {X[0]}\nv_mul_f32 {X[1]}, {dt}, {X[1]}')
        self.cmul([(self.KY[u], self.KY[u], self.KX[u]) for u in range(2)])
        for u in range(2):
            a, b = z[2*u], z[2*u+1]
            un(a, PR[0], u); un(b, PR[1], u)
            p(f"""v_mul_f32 {a}, {dt}, {a}
            v_mul_f32 {b}, {dt}, {b}
            v_mul_f32 {a}, {fl(LOG2E)}, {a}
            v_mul_f32 {b}, {fl(1/(2*math.pi))}, {b}""")
        for n in (1, 8, 128):
            for u in range(2):
                a, b = z[2*u], z[2*u+1]; E = self.E[n][u]
                if n == 1: p(f'v_exp_f32 {t0}, {a}\nv_fract_f32 {t1}, {b}')
                else: p(f'v_mul_f32 {t0}, {fl(n)}, {a}\nv_mul_f32 {t1}, {fl(n)}, {b}\nv_exp_f32 {t0}, {t0}\nv_fract_f32 {t1}, {t1}')
                p(f"""v_cos_f32 {E[0]}, {t1}
                v_sin_f32 {E[1]}, {t1}
                v_mul_f32 {E[0]}, {t0}, {E[0]}
                v_mul_f32 {E[1]}, {t0}, {E[1]}""")
        V.put(dt, t0, t1, t2, z, self.PR)
    def kgen_batch1(self):
        p, A = self.p, self.A; X, Y, E = self.KX, self.KY, self.E
        p(f'v_mov_b32 {self.KO[0]}, 0x3f80\nv_mov_b32 {self.KO[1]}, 0x3f80\nds_write_b64 {self.aKW}, {self.KO[0:2]} offset:{KT}')
        self.krow(1, E[8], True)
        for b in range(2, 16):
            self.cmul([(X[u], E[8][u] if b == 2 else X[u], E[8][u]) for u in range(2)]); self.krow(b, X, True)
        for a in range(2):
            if a: self.cmul([(Y[u], Y[u], E[128][u]) for u in range(2)])
            self.krow(16+8*a, Y)
            for j in range(1, 8):
                self.cmul([(X[u], Y[u] if j == 1 else X[u], E[1][u]) for u in range(2)]); self.krow(16+8*a+j, X)
        self.BF, self.AF = A.get(32), [A.get(32), A.get(32), A.get(32)]
        for t in range(8):
            p(f'ds_read_b128 {self.BF[4*t:4*t+4]}, {self.aKR} offset:{KT+64*t}')
            p(f'ds_read_b128 {self.AF[0][4*t:4*t+4]}, {self.aKR} offset:{KT+16*528+64*t}')
    def kgen_batch2(self):
        p, V = self.p, self.V; X, Y, E = self.KX, self.KY, self.E
        step = lambda: self.cmul([(Y[u], Y[u], E[128][u]) for u in range(2)])
        self.cmul([(E[1][u], E[1][u], E[1][u]) for u in range(2)])
        self.cmul([(E[8][u], E[1][u], E[1][u]) for u in range(2)])
        for a in range(2):
            step(); self.krow(4*a, Y)
            for j in range(1, 4):
                self.cmul([(X[u], Y[u] if j == 1 else X[u], E[1][u]) for u in range(2)]); self.krow(4*a+j, X)
        for a in range(4):
            step(); self.krow(8+2*a, Y)
            self.cmul([(X[u], Y[u], E[8][u]) for u in range(2)]); self.krow(9+2*a, X)
        for a in range(9):
            step(); self.krow(16+a, Y)
        for k in range(1, 3):
            for t in range(8): p(f'ds_read_b128 {self.AF[k][4*t:4*t+4]}, {self.aKR} offset:{KT+16*528*(k-1)+64*t}')
        V.put(*E[1], *E[8], *E[128], *X, *Y, self.CT, self.KO, self.aKW, self.aKR)
    def kgen_mfma(self):
        p, V, L = self.p, self.V, self.L
        KD = V.get(12); a0, a1, a2, a3, t = V.get(), V.get(), V.get(), V.get(), V.get(); O = V.get(6)
        for k in range(3):
            p(f's_waitcnt lgkmcnt({(15, 8, 0)[k]})')
            for i in range(8):
                p(f'v_mfma_f32_16x16x32_bf16 {KD[4*k:4*k+4]}, {self.AF[k][4*i:4*i+4]}, {self.BF[4*i:4*i+4]}, {KD[4*k:4*k+4] if i else 0}')
            if k == 0:
                p(f"""v_lshlrev_b32 {a0}, 8, {self.H}
                v_lshl_add_u32 {a0}, {self.L15}, 4, {a0}
                v_and_b32 {t}, 1, {self.GK}
                v_lshl_add_u32 {a0}, {t}, 3, {a0}
                v_add_u32 {a0}, {self.sB}, {a0}
                v_lshl_add_u32 {a3}, {self.GK}, 7, {self.sB}
                v_sub_u32 {t}, 3, {self.H}
                v_lshlrev_b32 {t}, {t}, {self.L15}
                v_add_u32 {a1}, {a3}, {t}
                v_mul_u32_u24 {t}, 60, {self.H}
                v_add3_u32 {a2}, {a1}, {t}, 4
                v_lshl_add_u32 {a3}, {self.L15}, 1, {a3}
                v_cmp_eq_u32 vcc, 0, {L}
                v_mov_b32 {t}, {self.sDS}
                v_cndmask_b32 {t}, 0, {t}, vcc""")
        p(f'v_add_f32 {KD[0]}, {KD[0]}, {t}')
        for i in range(6): p(f'v_cvt_pk_bf16_f32 {O[i]}, {KD[2*i]}, {KD[2*i+1]}')
        p(f"""ds_write_b64 {a0}, {O[0:2]} offset:{UT}
        ds_write_b32 {a1}, {O[2]} offset:{KC}
        ds_write_b32 {a2}, {O[3]} offset:{KC}
        ds_write_b16 {a3}, {O[4]} offset:{KC+512}
        ds_write_b16_d16_hi {a3}, {O[4]} offset:{KC+512+32}
        ds_write_b16 {a3}, {O[5]} offset:{KC+512+64}
        ds_write_b16_d16_hi {a3}, {O[5]} offset:{KC+512+96}""")
        V.put(KD, a0, a1, a2, a3, t, O); self.A.put(self.BF, *self.AF)
    def kexpand(self):
        p, V, S, L = self.p, self.V, self.S, self.L
        sLO, sHI = S.get(), S.get()
        a, b, c = V.get(), V.get(), V.get(); R = V.get(8); O = V.get(16)
        p(f"""v_and_b32 {c}, 31, {L}
        v_lshl_add_u32 {a}, {c}, 3, {self.sB}
        v_lshl_add_u32 {b}, {L}, 2, {self.sB}
        v_add_u32 {b}, {KC}, {b}
        ds_read_b64 {R[0:2]}, {a} offset:{KC}
        ds_read_b32 {R[2]}, {a} offset:{KC+8}
        ds_read2_b32 {R[4:6]}, {b} offset0:64 offset1:65
        ds_read2_b32 {R[6:8]}, {b} offset0:128 offset1:129
        s_mov_b32 {sLO}, 0x01000100
        s_mov_b32 {sHI}, 0x03020302
        v_lshl_add_u32 {a}, {c}, 4, {self.sB}
        v_add_u32 {b}, {self.sB}, {self.L16}
        v_lshl_add_u32 {c}, {L}, 5, {self.sB}
        s_waitcnt lgkmcnt(2)
        v_perm_b32 {O[0]}, {R[0]}, {R[0]}, {sLO}
        v_alignbit_b32 {O[1]}, {R[1]}, {R[0]}, 16
        v_perm_b32 {O[2]}, {R[1]}, {R[1]}, {sLO}
        v_alignbit_b32 {O[3]}, {R[2]}, {R[1]}, 16
        ds_write_b128 {a}, {O[0:4]} offset:{UT+512}
        s_waitcnt lgkmcnt(2)
        v_perm_b32 {O[4]}, {R[4]}, {R[4]}, {sLO}
        v_mov_b32 {O[5]}, {R[4]}
        v_perm_b32 {O[6]}, {R[4]}, {R[4]}, {sHI}
        v_perm_b32 {O[7]}, {R[5]}, {R[5]}, {sLO}
        ds_write_b128 {b}, {O[4:8]} offset:{UT+1024}
        s_waitcnt lgkmcnt(2)
        v_perm_b32 {O[8]}, {R[6]}, {R[6]}, {sLO}
        v_mov_b32 {O[10]}, {R[6]}
        v_perm_b32 {O[11]}, {R[6]}, {R[6]}, {sHI}
        v_mov_b32 {O[9]}, {O[8]}
        v_perm_b32 {O[14]}, {R[7]}, {R[7]}, {sLO}
        v_mov_b32 {O[12]}, {O[11]}
        v_mov_b32 {O[13]}, {O[11]}
        v_mov_b32 {O[15]}, {O[14]}
        ds_write_b128 {c}, {O[8:12]} offset:{UT+2048}
        ds_write_b128 {c}, {O[12:16]} offset:{UT+2048+16}""")
        V.put(R); R = V.get(24)
        for r in range(4):
            p(f'ds_read_b64 {R[6*r:6*r+2]}, {b} offset:{UT-8+1024*r}\nds_read_b128 {R[6*r+2:6*r+6]}, {b} offset:{UT+1024*r}')
        p(f"""v_lshrrev_b32 {a}, 2, {L}
        v_lshlrev_b32 {a}, 8, {a}
        v_and_b32 {c}, 3, {L}
        v_lshl_add_u32 {a}, {c}, 4, {a}
        v_add_u32 {a}, {self.sB}, {a}""")
        for r in range(4):
            Q = R[6*r:6*r+6]
            p(f's_waitcnt lgkmcnt({min(15, 6-2*r+4*r)})')
            p(f'ds_write_b128 {a}, {Q[2:6]} offset:{KT+4096*r}')
            for k in range(4): p(f'v_alignbit_b32 {O[k]}, {Q[k+2]}, {Q[k+1]}, 16')
            p(f'ds_write_b128 {a}, {O[0:4]} offset:{KT+4096*r+64}')
            for k in range(4): p(f'v_mov_b32 {O[4+k]}, {Q[k+1]}')
            p(f'ds_write_b128 {a}, {O[4:8]} offset:{KT+4096*r+128}')
            for k in range(4): p(f'v_alignbit_b32 {O[8+k]}, {Q[k+1]}, {Q[k]}, 16')
            p(f'ds_write_b128 {a}, {O[8:12]} offset:{KT+4096*r+192}')
        V.put(a, b, c, R, O); S.put(sLO, sHI)
    def conv_setup(self):
        p, V, A, L = self.p, self.V, self.A, self.L
        self.aKA = V.get(2); self.aUB = V.get(); self.aYW = V.get(); self.aYR = V.get(); self.aYO = V.get()
        self.ACC = V.get(32); self.CA = [A.get(32), A.get(32)]; self.CB = [A.get(32), A.get(32)]
        y, t, r4, cc = V.get(), V.get(), V.get(), V.get()
        p(f'v_bfe_u32 {r4}, {L}, 2, 2\nv_and_b32 {cc}, 3, {L}')
        for k in range(2):
            p(f"""v_lshlrev_b32 {y}, 1, {self.GK}
            v_sub_u32 {y}, {cc}, {y}
            v_lshl_add_u32 {y}, {y}, 2, {16-4*k}
            v_ashrrev_i32 {t}, 5, {y}
            v_lshlrev_b32 {t}, 8, {t}
            v_and_b32 {y}, 31, {y}
            v_lshl_add_u32 {y}, {y}, 1, {t}
            v_lshl_add_u32 {y}, {r4}, 6, {y}
            v_add_u32 {self.aKA[k]}, {self.sB}, {y}""")
        p(f"""v_lshlrev_b32 {y}, 4, {self.GK}
        v_lshl_add_u32 {y}, {self.L15}, 5, {y}
        v_add_u32 {self.aUB}, {self.sB}, {y}
        v_add_u32 {y}, {self.GK}, {r4}
        v_and_b32 {y}, 3, {y}
        v_lshlrev_b32 {y}, 3, {y}
        v_lshl_add_u32 {y}, {self.L15}, 5, {y}
        s_mul_i32 {self.st0}, {self.sV}, {YST}
        v_add_u32 {self.aYW}, {self.st0}, {y}
        v_add_u32 {y}, {self.GK}, {cc}
        v_and_b32 {y}, 3, {y}
        v_lshlrev_b32 {y}, 3, {y}
        v_lshl_add_u32 {y}, {self.GK}, 7, {y}
        v_mul_u32_u24 {t}, {YST}, {r4}
        s_lshl_b32 {self.st0}, {self.sV}, 9
        v_add3_u32 {self.aYR}, {y}, {t}, {self.st0}
        v_lshl_add_u32 {y}, {self.GK}, 6, {self.L15}
        v_lshlrev_b32 {self.aYO}, 12, {y}""")
        V.put(y, t, r4, cc)
        self.started = set()
    def conv_reads(self, half, e0):
        n = 4 if half == 0 else 8; buf = e0 & 1; l = []
        for i in range(n):
            for t in range(2): l.append(f'ds_read_b64_tr_b16 {self.CA[buf][4*i+2*t:4*i+2*t+2]}, {self.aKA[t]} offset:{KT+256*(e0+8*i)}')
            l.append(f'ds_read_b128 {self.CB[buf][4*i:4*i+4]}, {self.aUB} offset:{UT-32+512*i-64*e0}')
        return l
    def conv_step(self, half, e0, prefetch):
        p = self.p; buf = e0 & 1; n = 4 if half == 0 else 8
        pairs = [(e1, g) for e1 in range(n) for g in range(n) if 4*half <= e1+g <= 4*half+3]
        pairs.sort(key=lambda x: (max(x), x))
        out = []; last = None
        while pairs:
            k = next((i for i, x in enumerate(pairs) if sum(x) != last), 0)
            x = pairs.pop(k); out.append(x); last = sum(x)
        p('s_waitcnt lgkmcnt(0)')
        pf = list(prefetch)
        for i, (e1, g) in enumerate(out):
            c = e1+g; acc = self.ACC[4*c:4*c+4]
            p(f'v_mfma_f32_16x16x32_bf16 {acc}, {self.CA[buf][4*e1:4*e1+4]}, {self.CB[buf][4*g:4*g+4]}, {acc if c in self.started else 0}')
            self.started.add(c)
            k = -(-len(pf)//max(1, len(out)-i-2)) if pf else 0
            for _ in range(min(k, len(pf))): p(pf.pop(0))
        for x in pf: p(x)
    def conv_run(self, steps, nxt):
        for i, (h, e0) in enumerate(steps):
            n = steps[i+1] if i+1 < len(steps) else nxt
            self.conv_step(h, e0, self.conv_reads(*n) if n else [])
    def y_stage(self, half):
        p, V = self.p, self.V; O = V.get(8)
        for i in range(4):
            c = 4*half+i
            p(f'v_cvt_pk_bf16_f32 {O[2*i]}, {self.ACC[4*c]}, {self.ACC[4*c+1]}\nv_cvt_pk_bf16_f32 {O[2*i+1]}, {self.ACC[4*c+2]}, {self.ACC[4*c+3]}')
            p(f'ds_write_b64 {self.aYW}, {O[2*i:2*i+2]} offset:{YS+512*c}')
        V.put(O)
    def y_read(self, half):
        self.YR = self.V.get(8)
        for k in range(4): self.p(f'ds_read_b64_tr_b16 {self.YR[2*k:2*k+2]}, {self.aYR} offset:{YS+2048*half+32*k}')
    def y_store(self, half):
        p = self.p; sa, st0, st1 = self.sa, self.st0, self.st1
        p(f's_lshl_b32 {st0}, {self.sV}, 20\ns_lshl_b32 {st1}, {self.sC}, 3\ns_add_u32 {st0}, {st0}, {st1}\ns_add_u32 {st0}, {st0}, {2048+(half<<22)}')
        self.addr64(sa, self.out, st0)
        for k in range(4):
            if k: self.addr64(sa, sa, 65536)
            p(f'global_store_dwordx2 {self.aYO}, {self.YR[2*k:2*k+2]}, {sa}')
        self.V.put(self.YR)

    def finish(self):
        p, V = self.p, self.V
        if self.stamps:
            p('s_waitcnt vmcnt(0)')
            self.stamp('end')
            d = V.get(); a = V.get()
            p(f's_lshl_b32 {self.st0}, s2, 2\ns_add_u32 {self.st0}, {self.st0}, {self.sV}\ns_lshl_b32 {self.st0}, {self.st0}, 7\ns_add_u32 {self.st0}, {self.st0}, {DBG}')
            self.addr64(self.sa, self.ws, self.st0)
            p(f'v_mov_b32 {a}, 0\ns_mov_b64 exec, 1')
            for i, (n, r) in enumerate(self.stn):
                p(f'v_mov_b32 {d}, {r[0]}\nglobal_store_dword {a}, {d}, {self.sa} offset:{4*i}\ns_nop 1')
            if self.o.get('dbgstamps'):
                p(f's_load_dwordx2 {self.sa}, s[0:1], 104\ns_waitcnt lgkmcnt(0)')
                for i, (n, r) in enumerate(self.stn):
                    p(f'v_mov_b32 {d}, {r[0]}\nglobal_atomic_umax {a}, {d}, {self.sa} offset:{4*i}\ns_nop 1')
                p(f's_not_b32 {self.st0}, {self.stn[0][1][0]}\nv_mov_b32 {d}, {self.st0}\nglobal_atomic_umax {a}, {d}, {self.sa} offset:60')
            amp = [k for k in self.o if k.startswith('amp=')]
            if amp:
                _, nm, wg = amp[0].split('=')
                r = dict(self.stn)[nm]; e = dict(self.stn)['end']; t = self.sb
                p(f'''s_lshl_b32 {self.st0}, s2, 2
                s_add_u32 {self.st0}, {self.st0}, {self.sV}
                s_cmp_lg_u32 {self.st0}, {4*int(wg)}
                s_cbranch_scc1 L_end
                s_sub_u32 {self.st0}, {r[0]}, {self.stn[0][1][0]}
                s_min_u32 {self.st0}, {self.st0}, 10000
                s_mul_i32 {self.st0}, {self.st0}, 20
                L_amp:
                s_sleep 8
                s_memrealtime {t}
                s_waitcnt lgkmcnt(0)
                s_sub_u32 {self.st1}, {t[0]}, {e[0]}
                s_cmp_lt_u32 {self.st1}, {self.st0}
                s_cbranch_scc1 L_amp''')
        p('L_end:\ns_endpgm')

    def emit(self):
        pad = self.p.pad(); errs = self.p.verify()
        for e in errs: print('VERIFY', e, file=sys.stderr)
        hdr = open('cdna_kernels/%s.s.ref' % NAME).read().split('; Override launch')[0]
        nv = 256; na = max(8, self.A.hi)
        s = hdr + ('; stamps: ' + ' '.join(n for n, _ in self.stn) + '\n' if self.stamps else '') + f'; @launch grid=(256,1,1) block=(256,1,1) lds={LDS_BYTES}\n'
        s += f'.amdgcn_target "amdgcn-amd-amdhsa--gfx950"\n.text\n.globl {NAME}_kernel\n.p2align 8\n.type {NAME}_kernel,@function\n{NAME}_kernel:\n'
        s += self.p.text()
        s += f'''.section .rodata,"a"
.p2align 6
.amdhsa_kernel {NAME}_kernel
  .amdhsa_next_free_vgpr {nv+na}
  .amdhsa_next_free_sgpr 102
  .amdhsa_accum_offset {nv}
  .amdhsa_group_segment_fixed_size 0
  .amdhsa_kernarg_size 120
  .amdhsa_user_sgpr_count 2
  .amdhsa_user_sgpr_kernarg_segment_ptr 1
  .amdhsa_system_sgpr_workgroup_id_x 1
  .amdhsa_float_denorm_mode_32 3
.end_amdhsa_kernel
'''
        n = sum(1 for i in self.p.ins if i.states)
        print(f'instrs {n} pad {pad} vgpr {self.V.hi} agpr {self.A.hi} sgpr {self.S.hi} errs {len(errs)}', file=sys.stderr)
        return s

def build_a_only(stamps=False):
    g = Gen(stamps)
    g.prologue(); g.consts1()
    g.phase1(16)
    g.p('s_waitcnt vmcnt(5)')
    g.consts2(); g.wstage(); g.mpre()
    g.t1_issue_setup(); g.p('s_sleep 16'); g.t1_issue()
    g.phase2(0)
    g.consts3(); g.p('s_sleep 24'); g.t2_issue()
    g.phase3(0)
    g.finish()
    return g

def build_v1(stamps=False, opts=None):
    g = Gen(stamps, opts); p = g.p
    g.prologue(); g.consts1()
    g.phase1(16)
    p('s_waitcnt vmcnt(11)')
    g.tu_produce()
    g.stamp('tust')
    g.consts2()
    g.kgen_setup(); g.kgen_batch1()
    g.stamp('kb1')
    g.t1_issue_setup(); g.t1_issue()
    p('s_waitcnt vmcnt(13)')
    g.wstage(); g.kgen_batch2(); g.mpre()
    g.kgen_mfma(); g.kexpand()
    g.tu_setup()
    g.stamp('kdone')
    g.phase2(0, g.tu_issue)
    g.tu_consume(4)
    g.conv_setup(); g.consts3()
    for x in g.conv_reads(0, 0): p(x)
    g.conv_run([(0, e) for e in range(8)], (1, 0))
    g.y_stage(0)
    g.conv_run([(1, 0)], (1, 1))
    g.t2_issue()
    p('s_barrier');
    g.y_read(0); p('s_waitcnt lgkmcnt(0)'); g.y_store(0)
    g.conv_run([(1, e) for e in range(1, 4)], None)
    g.stamp('cv1')
    g.phase3(4)
    for x in g.conv_reads(1, 4): p(x)
    g.conv_run([(1, e) for e in range(4, 8)], None)
    g.y_stage(1)
    p('s_waitcnt lgkmcnt(0)\ns_barrier')
    g.y_read(1); p('s_waitcnt lgkmcnt(0)'); g.y_store(1)
    g.finish()
    return g

if __name__ == '__main__':
    g = globals()['build_' + sys.argv[2]]('-s' in sys.argv, {k: True for k in sys.argv[3:]})
    open(sys.argv[1], 'w').write(g.emit())
    print([n for n, _ in g.stn], file=sys.stderr)
```

```python
import sys, math, struct
from dsl import *

NAME = "concat_heads__spectral_gfnet__ssm_conv_s4__prompt"
def fl(x): return hex(struct.unpack('<I', struct.pack('<f', x))[0])

T1, T2, TU, T1X, WX, EOFF, DBG = 0, 4 << 20, 8 << 20, 12 << 20, (12 << 20) + (64 << 10), (12 << 20) + (128 << 10), 16 << 20
A0, PL = 0, 4608
US = 18432; EX = US
WS = 34816; YS = WS; YST = 4128
BB, BW = 51456, 23040
KT, KC, UZ = 256, 256 + 16896, 256 + 16896 + 1280
UT = UZ + 512
LDS_BYTES = BB + 4*BW
SPIN_MAX = 4000

class Gen:
    def __init__(self, stamps=False, opts=None):
        self.p = Prog(); self.V = Alloc('v', 256, 1); self.A = Alloc('a', 256); self.S = Alloc('s', 100, 32)
        self.stamps = stamps; self.nst = 0; self.o = opts or {}; self.stn = []
        self.lbl = 0
    def stamp(self, name):
        if not self.stamps: return
        r = self.S.get(2); self.stn.append((name, r))
        self.p(f's_memrealtime {r}')
    def label(self, base):
        self.lbl += 1; return f'L{base}{self.lbl}'
    def addr64(self, dst, base, off):
        self.p(f's_add_u32 {dst[0]}, {base[0]}, {off}\ns_addc_u32 {dst[1]}, {base[1]}, 0')

    def prologue(self):
        p, V, S = self.p, self.V, self.S
        P = lambda b: Reg('s', b, 2)
        self.x, self.wr, self.wi, self.u = P(4), P(6), P(8), P(10)
        self.par = [P(12), P(14), P(16), P(18), P(20), P(22)]
        self.ldt, self.dsk, self.out, self.ws = P(24), P(26), P(28), P(30)
        self.sV, self.sC, self.sR, self.sG = S.get(), S.get(), S.get(), S.get()
        self.L = L = V.get(); t = V.get()
        self.st0, self.st1 = S.get(), S.get(); self.sa = S.get(2); self.sb = S.get(2)
        st0, st1, sa, sb = self.st0, self.st1, self.sa, self.sb
        sV, sC, sR, sG = self.sV, self.sC, self.sR, self.sG
        if self.stamps:
            r = S.get(2); self.stn.append(('start', r)); p(f's_memrealtime {r}')
        p(f'''s_cmp_ge_u32 s2, 256
        s_cbranch_scc1 L_end
        s_load_dwordx16 s[4:19], s[0:1], 0
        s_load_dwordx8 s[20:27], s[0:1], 64
        s_load_dwordx2 s[28:29], s[0:1], 96
        s_load_dwordx2 s[30:31], s[0:1], 112
        v_lshrrev_b32 {t}, 6, v0
        v_and_b32 {L}, 63, v0
        v_readfirstlane_b32 {sV}, {t}
        s_and_b32 {sC}, s2, 7
        s_lshl_b32 {sC}, {sC}, 5
        s_lshr_b32 {st0}, s2, 3
        s_add_u32 {sC}, {sC}, {st0}
        s_lshr_b32 {sR}, {sC}, 6
        s_and_b32 {sG}, {sC}, 63''')
        self.L16 = V.get()
        p(f'v_lshlrev_b32 {self.L16}, 4, {L}')
        p(f'''s_lshl_b32 {st0}, {sV}, 8
        s_add_u32 {st0}, {st0}, {sC}
        s_lshl_b32 {st0}, {st0}, 12
        s_mul_i32 {st1}, {sV}, {PL}
        s_mov_b32 m0, {st1}
        s_waitcnt lgkmcnt(0)''')
        self.stamp('karg')
        self.addr64(sa, self.x, st0)
        self.sE = S.get(); self.sLD = S.get(); self.sDS = S.get()
        p(f'''global_load_lds_dwordx4 {self.L16}, {sa}
        global_load_lds_dwordx4 {self.L16}, {sa} offset:1024
        s_add_u32 m0, {st1}, 128
        s_load_dword {self.sE}, {self.ws}, {EOFF & 0xfffff}  ; placeholder
        global_load_lds_dwordx4 {self.L16}, {sa} offset:2048
        global_load_lds_dwordx4 {self.L16}, {sa} offset:3072''')
        self.p.ins = [i for i in self.p.ins if 'placeholder' not in i.text]
        self.addr64(sb, self.ws, EOFF)
        p(f's_load_dword {self.sE}, {sb}, 0')
        self.sD = S.get()
        self.PR = V.get(6)
        p(f'''s_lshl_b32 {self.sD}, {sC}, 2
        s_add_u32 {self.sD}, {self.sD}, {sV}
        s_lshl_b32 {st0}, {self.sD}, 8
        v_lshl_add_u32 {t}, {L}, 2, {st0}
        s_lshr_b32 {st1}, {self.sD}, 1
        s_lshl_b32 {st1}, {st1}, 2
        s_load_dword {self.sLD}, {self.ldt}, {st1}
        s_load_dword {self.sDS}, {self.dsk}, {st1}''')
        for i in range(6): p(f'global_load_dword {self.PR[i]}, {t}, {self.par[i]}')
        t2 = V.get()
        p(f'''v_lshrrev_b32 {t}, 3, {L}
        v_and_b32 {t2}, 7, {L}
        v_lshlrev_b32 {t2}, 4, {t2}
        v_lshl_add_u32 {t}, {t}, 11, {t2}
        s_and_b32 {st0}, {sC}, 15
        s_lshl_b32 {st0}, {st0}, 2
        s_add_u32 {st0}, {st0}, {sV}
        s_lshl_b32 {st0}, {st0}, 16
        s_lshr_b32 {st1}, {sC}, 4
        s_lshl_b32 {st1}, {st1}, 7
        s_add_u32 {st0}, {st0}, {st1}''')
        self.addr64(sa, self.u, st0)
        p(f's_lshl_b32 {st1}, {sV}, 12\ns_add_u32 {st1}, {st1}, {US}')
        for i in range(4):
            p(f's_add_u32 m0, {st1}, {1024*i}')
            if i: self.addr64(sa, sa, 16384)
            p(f'global_load_lds_dwordx4 {t}, {sa}')
        self.WXV = V.get()
        lb = self.label('nowx')
        t3 = V.get()
        p(f'''v_bfe_u32 {t}, {L}, 2, 1
        v_lshlrev_b32 {t}, 10, {t}
        v_lshrrev_b32 {t2}, 4, {L}
        v_add_u32 {t}, {t}, {t2}
        s_lshl_b32 {st0}, {sC}, 2
        v_add_u32 {t}, {st0}, {t}
        v_sub_u32 {t2}, 0x800, {t}
        v_and_b32 {t2}, 0x7ff, {t2}
        v_and_b32 {t3}, 1, {L}
        v_cmp_eq_u32 vcc, 1, {t3}
        v_cndmask_b32 {t}, {t}, {t2}, vcc
        v_mul_u32_u24 {t}, 1026, {t}
        v_bfe_u32 {t2}, {L}, 3, 1
        v_lshl_add_u32 {t}, {t2}, 10, {t}
        s_mov_b32 exec_lo, 0x33333333
        s_mov_b32 exec_hi, 0x33333333
        global_load_ushort {self.WXV}, {t}, {self.wr}
        s_not_b64 exec, exec
        global_load_ushort {self.WXV}, {t}, {self.wi} ; nocheck
        s_mov_b64 exec, -1''')
        self.WL = V.get(16)
        p(f'''v_and_b32 {t}, 15, {L}
        v_lshrrev_b32 {t2}, 4, {L}
        v_lshlrev_b32 {t2}, 8, {t2}
        v_lshl_add_u32 {t}, {t}, 2, {t2}
        v_mul_u32_u24 {t}, 1026, {t}
        s_bitcmp1_b32 {sV}, 0
        s_cselect_b32 {sa[0]}, {self.wi[0]}, {self.wr[0]}
        s_cselect_b32 {sa[1]}, {self.wi[1]}, {self.wr[1]}
        s_lshr_b32 {st0}, {sV}, 1
        s_lshl_b32 {st0}, {st0}, 10
        s_add_u32 {st0}, {st0}, {sR}
        s_mul_i32 {st0}, {st0}, 1026
        s_lshl_b32 {st1}, {sG}, 4
        s_add_u32 {st0}, {st0}, {st1}''')
        self.addr64(sa, sa, st0)
        for i in range(4):
            if i: self.addr64(sa, sa, 64*1026)
            p(f'global_load_dwordx4 {self.WL[4*i:4*i+4]}, {t}, {sa}')
        V.put(t, t2, t3)

    def consts1(self):
        p, V, A, S, L = self.p, self.V, self.A, self.S, self.L
        self.CFr, self.CFi = A.get(16), A.get(16)
        self.TWc, self.TWs = V.get(16), V.get(16)
        k, b, an, c, s, d = V.get(), V.get(), V.get(), V.get(), V.get(), V.get()
        self.PI = V.get()
        self.H = V.get()
        p(f'''v_and_b32 {k}, 0x13, {L}
        v_bfe_u32 {b}, {L}, 2, 1
        v_lshl_or_b32 {k}, {b}, 3, {k}
        v_bfe_u32 {b}, {L}, 3, 1
        v_lshl_or_b32 {self.PI}, {b}, 2, {k}
        v_lshrrev_b32 {self.H}, 5, {L}
        v_cvt_f32_u32 {k}, {self.PI}
        v_cvt_f32_u32 {b}, {self.H}
        v_mul_f32 {k}, {fl(1/32)}, {k}
        v_mul_f32 {b}, {b}, {k}
        v_mul_f32 {b}, 4.0, {b}''')
        for f in range(4):
            for jj in range(4):
                i = 4*f + jj
                p(f'''v_fmamk_f32 {an}, {k}, {fl(8*f+jj)}, {b}
                v_cos_f32 {c}, {an}
                v_sin_f32 {s}, {an}
                v_mul_f32 {an}, {fl(1/32)}, {an}
                v_cvt_pk_bf16_f32 {d}, {c}, {s}
                v_cos_f32 {self.TWc[i]}, {an}
                v_accvgpr_write_b32 {self.CFr[i]}, {d}
                v_cvt_pk_bf16_f32 {d}, -{s}, {c}
                v_sin_f32 {self.TWs[i]}, {an}
                v_accvgpr_write_b32 {self.CFi[i]}, {d}''')
        self.R4a, self.R4b = A.get(4), A.get(4)
        m1, m2 = S.get(2), S.get(2)
        sg = V.get()
        p(f'''v_bfe_u32 {k}, {L}, 2, 2
        v_cvt_f32_u32 {k}, {k}
        v_mul_f32 {k}, {fl(1/1024)}, {k}
        v_cvt_f32_u32 {b}, {self.sC}
        v_mul_f32 {b}, {b}, {k}
        v_and_b32 {c}, 1, {L}
        v_cvt_f32_u32 {c}, {c}
        v_fmamk_f32 {b}, {c}, {fl(0.25)}, {b}
        v_lshlrev_b32 {sg}, 30, {L}
        v_and_b32 {sg}, 0x80000000, {sg}
        v_and_b32 {c}, 2, {L}
        v_lshrrev_b32 {s}, 4, {L}
        v_cmp_eq_u32 {m1}, {c}, {s}
        v_add_u32 {c}, 1, {c}
        v_cmp_eq_u32 {m2}, {c}, {s}''')
        for m in range(4):
            p(f'''v_fmamk_f32 {an}, {k}, {fl(256*m)}, {b}
            v_cos_f32 {c}, {an}
            v_sin_f32 {s}, {an}
            v_xor_b32 {s}, {sg}, {s}
            v_cvt_pk_bf16_f32 {d}, {c}, {s}
            v_cndmask_b32 {c}, 0, {d}, {m1}
            v_cndmask_b32 {s}, 0, {d}, {m2}
            v_accvgpr_write_b32 {self.R4a[m]}, {c}
            v_accvgpr_write_b32 {self.R4b[m]}, {s}''')
        S.put(m1, m2); V.put(sg)
        self.aXR = V.get(); self.aZW = V.get(); self.aZR = V.get(4); self.aC = V.get(); self.aZX = V.get()
        st0 = self.st0
        p(f'''s_mul_i32 {st0}, {self.sV}, {PL}
        v_bfe_u32 {k}, {L}, 2, 1
        v_mul_u32_u24 {k}, 2176, {k}
        v_bfe_u32 {b}, {L}, 3, 1
        v_lshl_add_u32 {b}, {self.H}, 2, {b}
        v_lshl_add_u32 {k}, {b}, 6, {k}
        v_bfe_u32 {b}, {L}, 4, 1
        v_lshl_add_u32 {k}, {b}, 5, {k}
        v_and_b32 {b}, 3, {L}
        v_lshl_add_u32 {k}, {b}, 3, {k}
        v_add_u32 {self.aXR}, {st0}, {k}
        v_and_b32 {k}, 31, {L}
        v_mul_u32_u24 {k}, 144, {k}
        v_lshl_add_u32 {k}, {self.H}, 5, {k}
        v_add_u32 {self.aZW}, {st0}, {k}
        v_and_b32 {k}, 15, {L}
        v_lshlrev_b32 {k}, 1, {k}
        v_bfe_u32 {b}, {L}, 4, 1
        v_add_u32 {k}, {k}, {b}
        s_lshl_b32 {st0}, {self.sV}, 7
        v_add_u32 {k}, {st0}, {k}
        v_cmp_lt_u32 vcc, 31, {L}''')
        def zaddr(dst, q):
            p(f'''v_lshrrev_b32 {c}, 5, {q}
            v_and_b32 {s}, 0x13, {c}
            v_bfe_u32 {d}, {c}, 2, 1
            v_lshl_or_b32 {s}, {d}, 3, {s}
            v_bfe_u32 {d}, {c}, 3, 1
            v_lshl_or_b32 {s}, {d}, 2, {s}
            v_mul_u32_u24 {s}, 144, {s}
            v_and_b32 {c}, 31, {q}
            v_lshl_add_u32 {dst}, {c}, 2, {s}''')
        m1 = S.get(2)
        for t in range(4):
            p(f'''v_add_u32 {b}, {32*t}, {k}
            v_sub_u32 {an}, 0x400, {b}''')
            if t == 0:
                p(f'''v_cmp_eq_u32 {m1}, 0, {b}
                v_mov_b32 {c}, 0x200
                v_cndmask_b32 {an}, {an}, {c}, {m1}''')
            p(f'v_cndmask_b32 {b}, {b}, {an}, vcc')
            zaddr(self.aZR[t], b)
        S.put(m1)
        p(f'''v_mov_b32 {c}, {16*144}
        v_cndmask_b32 {self.aZX}, {c}, 0, vcc
        v_lshrrev_b32 {k}, 4, {L}
        v_bfe_u32 {b}, {L}, 2, 2
        v_lshl_add_u32 {k}, {k}, 6, {b}
        v_and_b32 {b}, 3, {L}
        v_lshlrev_b32 {b}, 4, {b}
        v_lshl_add_u32 {self.aC}, {k}, 14, {b}''')
        V.put(k, b, an, c, s, d)
        self.TG = S.get(4); self.sN = S.get(); self.MK = V.get()
        st0, st1, sE = self.st0, self.st1, self.sE
        p(f'''v_mov_b32 {self.MK}, 0xfffefffe
        s_waitcnt lgkmcnt(0)
        s_not_b32 {self.sN}, {sE}
        s_mul_i32 {st0}, {sE}, 0x9e3779b1
        s_lshr_b32 {st1}, {st0}, 15
        s_and_b32 {self.TG[1]}, {st1}, 0x10001
        s_lshr_b32 {st1}, {st0}, 14
        s_and_b32 {self.TG[2]}, {st1}, 0x10001
        s_lshr_b32 {st1}, {st0}, 13
        s_and_b32 {self.TG[3]}, {st1}, 0x10001
        s_lshr_b32 {st1}, {st0}, 12
        s_and_b32 {st1}, {st1}, 0x10000
        s_and_b32 {self.TG[0]}, {self.sN}, 1
        s_or_b32 {self.TG[0]}, {self.TG[0]}, {st1}''')

    def fft1024(self, FA, Dr, Di):
        p, V = self.p, self.V
        for f in range(4):
            p(f'v_mfma_f32_32x32x16_bf16 {Dr}, {FA[4*f:4*f+4]}, {self.CFr[4*f:4*f+4]}, {Dr if f else 0}')
            p(f'v_mfma_f32_32x32x16_bf16 {Di}, {FA[4*f:4*f+4]}, {self.CFi[4*f:4*f+4]}, {Di if f else 0}')
        self.twiddle(Dr, Di, self.TWc, self.TWs, FA)
        for f in range(4):
            p(f'v_mfma_f32_32x32x16_bf16 {Dr}, {FA[4*f:4*f+4]}, {self.CFr[4*f:4*f+4]}, {Dr if f else 0}')
            p(f'v_mfma_f32_32x32x16_bf16 {Di}, {FA[4*f:4*f+4]}, {self.CFi[4*f:4*f+4]}, {Di if f else 0}')
    def twiddle(self, Dr, Di, Tc, Ts, F):
        p, V = self.p, self.V
        T = V.get(8)
        n = Dr.n//2
        for k0 in range(0, n, 2):
            ks = (k0, k0+1)
            tt = {k: (T[4*(k-k0):4*(k-k0)+2], T[4*(k-k0)+2:4*(k-k0)+4]) for k in ks}
            s2 = lambda R, k: R[(2*k) % R.n:(2*k) % R.n+2]
            for k in ks: p(f'v_pk_mul_f32 {tt[k][0]}, {s2(Dr,k)}, {s2(Tc,k)}\nv_pk_mul_f32 {tt[k][1]}, {s2(Di,k)}, {s2(Tc,k)}')
            for k in ks: p(f'v_pk_fma_f32 {tt[k][0]}, {s2(Di,k)}, {s2(Ts,k)}, {tt[k][0]}\nv_pk_fma_f32 {tt[k][1]}, {s2(Dr,k)}, {s2(Ts,k)}, {tt[k][1]} neg_lo:[1,0,0] neg_hi:[1,0,0]')
            for k in ks:
                for e in range(2): p(f'v_cvt_pk_bf16_f32 {F[2*k+e]}, {tt[k][0][e]}, {tt[k][1][e]}')
        V.put(T)
    def fft256(self, F, Dr, Di):
        p = self.p; n = F.n//4
        q = lambda R, s: R[4*s:4*s+4]
        for s in range(n):
            p(f'v_mfma_f32_16x16x32_bf16 {q(Dr,s)}, {q(F,s)}, {self.C16r}, 0\nv_mfma_f32_16x16x32_bf16 {q(Di,s)}, {q(F,s)}, {self.C16i}, 0')
        self.twiddle(Dr, Di, self.T16c, self.T16s, F)
        for s in range(n):
            p(f'v_mfma_f32_16x16x32_bf16 {q(Dr,s)}, {self.C16r}, {q(F,s)}, 0\nv_mfma_f32_16x16x32_bf16 {q(Di,s)}, {self.C16i}, {q(F,s)}, 0')
    def tag4(self, R):
        for d in range(4): self.p(f'v_bfi_b32 {R[d]}, {self.MK}, {R[d]}, {self.TG[d]}')
    def check16(self, R, acc, t):
        p = self.p
        for d in range(4):
            p(f'v_bitop3_b32 {t[0]}, {R[d]}, {R[4+d]}, {self.TG[d]} bitop3:0x7e')
            p(f'v_bitop3_b32 {t[1]}, {R[8+d]}, {R[12+d]}, {self.TG[d]} bitop3:0x7e')
            p(f'v_or3_b32 {acc}, {t[0]}, {t[1]}, {acc if d else 0}')
        p(f'v_and_b32 {acc}, 0x10001, {acc}\nv_cmp_ne_u32 vcc, 0, {acc}')
    def poll(self, issue, check, first_wait):
        p = self.p; ok, re_ = self.label('ok'), self.label('re')
        cnt = self.st1
        p(f's_waitcnt vmcnt({first_wait})')
        check()
        p(f's_cbranch_vccz {ok}\ns_movk_i32 {cnt}, {SPIN_MAX}\n{re_}:\ns_sleep 4')
        issue()
        p('s_waitcnt vmcnt(0)')
        check()
        p(f's_cbranch_vccz {ok}\ns_sub_u32 {cnt}, {cnt}, 1\ns_cmp_lg_u32 {cnt}, 0\ns_cbranch_scc1 {re_}\n{ok}:')

    def phase1(self, vm_after_x):
        p, V, S = self.p, self.V, self.S
        FA, Dr, Di = V.get(16), V.get(16), V.get(16)
        p(f's_waitcnt vmcnt({vm_after_x})')
        self.stamp('xland')
        for f in range(4):
            for t in range(2): p(f'ds_read_b64_tr_b16 {FA[4*f+2*t:4*f+2*t+2]}, {self.aXR} offset:{512*f+128*t}')
        p('s_waitcnt lgkmcnt(0)')
        self.fft1024(FA, Dr, Di)
        for g in range(4):
            for jj in range(4): p(f'v_cvt_pk_bf16_f32 {FA[4*g+jj]}, {Dr[4*g+jj]}, {Di[4*g+jj]}')
            p(f'ds_write_b128 {self.aZW}, {FA[4*g:4*g+4]} offset:{64*(g>>1)+16*(g&1)}')
        sa, st0, st1 = self.sa, self.st0, self.st1
        p(f'''s_lshl_b32 {st0}, {self.sV}, 18
        s_lshl_b32 {st1}, {self.sC}, 6
        s_add_u32 {st0}, {st0}, {st1}''')
        self.addr64(sa, self.ws, st0)
        p('s_waitcnt lgkmcnt(0)\ns_barrier')
        for t in range(4):
            p(f'ds_read2st64_b32 {FA[4*t:4*t+2]}, {self.aZR[t]} offset0:0 offset1:18\nds_read2st64_b32 {FA[4*t+2:4*t+4]}, {self.aZR[t]} offset0:36 offset1:54')
        for t in range(4):
            p(f's_waitcnt lgkmcnt({6-2*t})')
            p(f'v_mfma_f32_16x16x32_bf16 {Dr[4*t:4*t+4]}, {self.R4a}, {FA[4*t:4*t+4]}, 0\nv_mfma_f32_16x16x32_bf16 {Di[4*t:4*t+4]}, {self.R4b}, {FA[4*t:4*t+4]}, 0')
        for t in range(4):
            o = FA[4*t:4*t+4]
            p(f'''v_cvt_pk_bf16_f32 {o[0]}, {Dr[4*t]}, {Dr[4*t+1]}
            v_cvt_pk_bf16_f32 {o[1]}, {Dr[4*t+2]}, {Dr[4*t+3]}
            v_cvt_pk_bf16_f32 {o[2]}, {Di[4*t]}, {Di[4*t+1]}
            v_cvt_pk_bf16_f32 {o[3]}, {Di[4*t+2]}, {Di[4*t+3]}''')
            self.tag4(o)
            if t: self.addr64(sa, sa, 4*16384)
            p(f'global_store_dwordx4 {self.aC}, {o}, {sa} sc1')
        self.stamp('t1st')
        l0, l1 = self.label('x0'), self.label('x1')
        t = Dr
        p(f'''s_cmp_lg_u32 {self.sV}, 0
        s_cbranch_scc1 {l0}
        ds_read2st64_b32 {t[0:2]}, {self.aZX} offset0:0 offset1:18
        ds_read2st64_b32 {t[2:4]}, {self.aZX} offset0:36 offset1:54
        v_lshrrev_b32 {t[8]}, 4, {self.L}
        v_lshlrev_b32 {t[8]}, 12, {t[8]}
        s_lshl_b32 {st0}, {self.sC}, 4
        s_add_u32 {st0}, {st0}, {T1X}''')
        self.addr64(sa, self.ws, st0)
        p(f'''s_waitcnt lgkmcnt(0)
        v_mfma_f32_16x16x32_bf16 {t[4:8]}, {self.R4a}, {t[0:4]}, 0
        v_cvt_pk_bf16_f32 {t[0]}, {t[4]}, {t[5]}
        v_cvt_pk_bf16_f32 {t[2]}, {t[6]}, {t[7]}
        v_mov_b32 {t[1]}, {self.sN}
        v_mov_b32 {t[3]}, {self.sN}
        s_mov_b32 exec_lo, 0x00010001
        s_mov_b32 exec_hi, 0x00010001
        global_store_dwordx4 {t[8]}, {t[0:4]}, {sa} sc1
        s_mov_b64 exec, -1
        s_branch {l1}
        {l0}:
        s_waitcnt vmcnt(8)
        v_lshlrev_b32 {t[10]}, 16, {self.WXV}
        v_and_b32 {t[11]}, 3, {self.L}
        v_cmp_eq_u32 vcc, 3, {t[11]}
        v_cndmask_b32 {t[10]}, {t[10]}, -{t[10]}, vcc
        v_add_f32_dpp {t[11]}, {t[10]}, {t[10]} quad_perm:[1,0,3,2] row_mask:0xf bank_mask:0xf
        v_mul_f32 {t[11]}, 0.5, {t[11]}
        v_mov_b32_dpp {t[10]}, {t[11]} quad_perm:[2,3,0,1] row_mask:0xf bank_mask:0xf
        v_cvt_pk_bf16_f32 {t[10]}, {t[11]}, {t[10]}
        v_and_b32 {t[12]}, 1, {self.L}
        v_cmp_eq_u32 vcc, 1, {t[12]}
        v_mov_b32 {t[11]}, {self.sN}
        v_cndmask_b32 {t[10]}, {t[10]}, {t[11]}, vcc
        v_bfe_u32 {t[11]}, {self.L}, 2, 2
        v_lshlrev_b32 {t[11]}, 3, {t[11]}
        v_lshl_add_u32 {t[11]}, {t[12]}, 2, {t[11]}
        v_lshrrev_b32 {t[12]}, 4, {self.L}
        v_lshl_add_u32 {t[11]}, {t[12]}, 13, {t[11]}
        s_lshl_b32 {st0}, {self.sC}, 5
        s_add_u32 {st0}, {st0}, {WX}''')
        self.addr64(sa, self.ws, st0)
        p(f'''s_mov_b32 exec_lo, 0x33333333
        s_mov_b32 exec_hi, 0x33333333
        global_store_dword {t[11]}, {t[10]}, {sa} sc1
        s_mov_b64 exec, -1
        {l1}:''')
        V.put(FA, Dr, Di, self.aXR, self.aZW, self.aZR, self.aZX, self.WXV)
        self.A.put(self.R4a, self.R4b)

    def wstage(self):
        p, V = self.p, self.V
        a = V.get()
        p(f's_lshl_b32 {self.st0}, {self.sV}, 10\ns_add_u32 {self.st0}, {self.st0}, {WS}\nv_add_u32 {a}, {self.st0}, {self.L16}')
        for rho in range(4):
            for s in range(4): p(f'ds_write_b32 {a}, {self.WL[4*rho+s]} offset:{4096*s+4*rho}')
        p('s_waitcnt lgkmcnt(0)\ns_barrier')
        V.put(a)
    def consts2(self):
        p, V, A, L = self.p, self.V, self.A, self.L
        self.C16r, self.C16i = A.get(4), A.get(4)
        self.T16c, self.T16s, self.Cm, self.Sm = V.get(4), V.get(4), V.get(4), V.get(4)
        k, b, an, c, s, d = V.get(), V.get(), V.get(), V.get(), V.get(), V.get()
        self.L15 = V.get(); self.GK = V.get()
        p(f'''v_and_b32 {self.L15}, 15, {L}
        v_lshrrev_b32 {self.GK}, 4, {L}
        v_cvt_f32_u32 {k}, {self.L15}
        v_cvt_f32_u32 {b}, {self.GK}
        v_mul_f32 {k}, {fl(1/16)}, {k}
        v_mul_f32 {d}, {b}, {k}
        v_mul_f32 {d}, 4.0, {d}''')
        e = V.get()
        for jj in range(4):
            p(f'''v_fmamk_f32 {an}, {k}, {fl(jj)}, {d}
            v_cos_f32 {c}, {an}
            v_sin_f32 {s}, {an}
            v_mul_f32 {an}, {fl(1/16)}, {an}
            v_cvt_pk_bf16_f32 {e}, {c}, {s}
            v_cos_f32 {self.T16c[jj]}, {an}
            v_accvgpr_write_b32 {self.C16r[jj]}, {e}
            v_cvt_pk_bf16_f32 {e}, -{s}, {c}
            v_sin_f32 {self.T16s[jj]}, {an}
            v_accvgpr_write_b32 {self.C16i[jj]}, {e}''')
        p(f'''v_lshlrev_b32 {c}, 8, {self.GK}
        v_lshl_add_u32 {c}, {self.L15}, 2, {c}
        v_add_u32 {c}, {self.sR}, {c}
        v_cvt_f32_u32 {c}, {c}
        v_mul_f32 {c}, {fl(1/2048)}, {c}''')
        for rho in range(4):
            p(f'''v_add_f32 {an}, {fl(rho/32)}, {c}
            v_sin_f32 {self.Cm[rho]}, {an}
            v_cos_f32 {self.Sm[rho]}, {an}''')
        self.aT1 = V.get(); self.aEW = V.get(); self.aT2s = V.get()
        p(f'''v_lshlrev_b32 {c}, 12, {self.GK}
        v_lshl_add_u32 {self.aT1}, {self.L15}, 6, {c}
        v_bfe_u32 {s}, {L}, 1, 3
        v_add_u32 {s}, {self.sV}, {s}
        v_and_b32 {s}, 3, {s}
        v_lshl_add_u32 {s}, {s}, 4, {self.aT1}
        v_add_u32 {self.aEW}, {EX}, {s}
        v_lshrrev_b32 {c}, 3, {L}
        v_sub_u32 {c}, {L}, {c}
        v_and_b32 {c}, 3, {c}
        v_lshlrev_b32 {c}, 4, {c}
        v_lshrrev_b32 {s}, 2, {L}
        v_lshl_add_u32 {self.aT2s}, {s}, 14, {c}''')
        V.put(k, b, an, c, s, d, e)
    def mcalc(self, M, W0r, W0i, W1r, W1i):
        p = self.p
        for h in range(2):
            s2 = lambda R: R[2*h:2*h+2]
            for (a, b, pp, mm, nn) in ((W0r, W1r, M[0], M[2], M[4]), (W0i, W1i, M[1], M[3], M[5])):
                p(f'''v_pk_add_f32 {s2(nn)}, {s2(a)}, {s2(b)} neg_lo:[0,1] neg_hi:[0,1]
                v_pk_add_f32 {s2(a)}, {s2(a)}, {s2(b)}
                v_pk_fma_f32 {s2(pp)}, {s2(self.Cm)}, {s2(nn)}, {s2(a)} neg_lo:[1,0,0] neg_hi:[1,0,0]
                v_pk_fma_f32 {s2(mm)}, {s2(self.Cm)}, {s2(nn)}, {s2(a)}
                v_pk_mul_f32 {s2(nn)}, {s2(self.Sm)}, {s2(nn)}''')
    def mpre(self):
        p, V, S = self.p, self.V, self.S
        a = V.get(); R = self.WL
        p(f's_lshl_b32 {self.st0}, {self.sV}, 12\ns_add_u32 {self.st0}, {self.st0}, {WS}\nv_add_u32 {a}, {self.st0}, {self.L16}')
        for ah in range(4): p(f'ds_read_b128 {R[4*ah:4*ah+4]}, {a} offset:{1024*ah}')
        self.M = [[V.get(4) for _ in range(6)] for _ in range(2)]
        U = V.get(16)
        p('s_waitcnt lgkmcnt(0)')
        for u in range(2):
            for i in range(16):
                p(f'v_lshlrev_b32 {U[i]}, 16, {R[i]}' if u == 0 else f'v_and_b32 {U[i]}, 0xffff0000, {R[i]}')
            self.mcalc(self.M[u], U[0:4], U[4:8], U[8:12], U[12:16])
        self.N2 = [V.get(4), V.get(4)]
        self.sSP = S.get()
        lb = self.label('nosp')
        X = V.get(32); acc = V.get(); junk = [V.get(4), V.get(4)]
        p(f'''s_or_b32 {self.sSP}, {self.sG}, {self.sV}
        s_cmp_lg_u32 {self.sSP}, 0
        s_cbranch_scc1 {lb}
        s_lshl_b32 {self.st0}, {self.sR}, 13
        s_add_u32 {self.st0}, {self.st0}, {WX}
        v_lshrrev_b32 {a}, 1, {self.aT1}''')
        self.addr64(self.sa, self.ws, self.st0)
        def issue():
            for i in range(4):
                for h in range(2): p(f'global_load_dwordx4 {X[8*i+4*h:8*i+4*h+4]}, {a}, {self.sa} offset:{512*i+16*h} sc1')
        def check():
            for i in range(8):
                p(f'v_bitop3_b32 {U[0]}, {X[4*i+1]}, {X[4*i+3]}, {self.sN} bitop3:0x7e')
                p(f'v_or_b32 {acc}, {U[0]}, {acc}' if i else f'v_mov_b32 {acc}, {U[0]}')
            p(f'v_cmp_ne_u32 vcc, 0, {acc}')
        issue(); self.poll(issue, check, 0)
        M0 = self.M[0]
        for col in range(2):
            for half in range(2):
                for i in range(4):
                    src = X[8*i+4*col+2*half]
                    p(f'v_lshlrev_b32 {U[8*half+i]}, 16, {src}\nv_and_b32 {U[8*half+4+i]}, 0xffff0000, {src}')
            MM = [M0[0], M0[1], junk[0], junk[1], M0[4], M0[5]] if col == 0 else [junk[0], junk[1], M0[2], M0[3], self.N2[0], self.N2[1]]
            self.mcalc(MM, U[0:4], U[4:8], U[8:12], U[12:16])
        p(f'{lb}:')
        V.put(a, U, X, acc, *junk, self.WL, self.Cm, self.Sm)

    def t1_issue_setup(self):
        S, V = self.S, self.V
        self.sT1 = S.get(2); self.TL = V.get(16)
        self.p(f's_lshl_b32 {self.st0}, {self.sC}, 14\ns_lshl_b32 {self.st1}, {self.sV}, 4\ns_add_u32 {self.st0}, {self.st0}, {self.st1}')
        self.addr64(self.sT1, self.ws, self.st0)
    def t1_issue(self):
        for i in range(4): self.p(f'global_load_dwordx4 {self.TL[4*i:4*i+4]}, {self.aT1}, {self.sT1} offset:{1024*i} sc1')
    def middle(self, M, Pr, Pi, Qr, Qi, Fp, Fm, Pxr=None, Pxi=None, Qxr=None, Qxi=None, N2=None):
        p, V = self.p, self.V
        ppr, ppi, mmr, mmi, nr, ni = M
        n2r, n2i = N2 or (nr, ni)
        Pxr, Pxi, Qxr, Qxi = Pxr or Pr, Pxi or Pi, Qxr or Qr, Qxi or Qi
        T = V.get(8)
        N = ' neg_lo:[1,0,0] neg_hi:[1,0,0]'
        for h in range(2):
            s = lambda R: R[2*h:2*h+2]
            a, b, c, d = T[0:2], T[2:4], T[4:6], T[6:8]
            p(f'''v_pk_mul_f32 {a}, {s(ppr)}, {s(Pr)}
            v_pk_mul_f32 {b}, {s(ppr)}, {s(Pi)}
            v_pk_mul_f32 {c}, {s(mmr)}, {s(Qr)}
            v_pk_mul_f32 {d}, {s(mmr)}, {s(Qi)}
            v_pk_fma_f32 {a}, {s(ppi)}, {s(Pi)}, {a}{N}
            v_pk_fma_f32 {b}, {s(ppi)}, {s(Pr)}, {b}
            v_pk_fma_f32 {c}, {s(mmi)}, {s(Qi)}, {c}{N}
            v_pk_fma_f32 {d}, {s(mmi)}, {s(Qr)}, {d}
            v_pk_fma_f32 {a}, {s(ni)}, {s(Qxr)}, {a}{N}
            v_pk_fma_f32 {b}, {s(nr)}, {s(Qxr)}, {b}
            v_pk_fma_f32 {c}, {s(n2r)}, {s(Pxi)}, {c}
            v_pk_fma_f32 {d}, {s(n2r)}, {s(Pxr)}, {d}{N}
            v_pk_fma_f32 {a}, {s(nr)}, {s(Qxi)}, {a}{N}
            v_pk_fma_f32 {b}, {s(ni)}, {s(Qxi)}, {b}{N}
            v_pk_fma_f32 {c}, {s(n2i)}, {s(Pxr)}, {c}
            v_pk_fma_f32 {d}, {s(n2i)}, {s(Pxi)}, {d}''')
            for e in range(2):
                p(f'v_cvt_pk_bf16_f32 {Fp[2*h+e]}, {b[e]}, {a[e]}\nv_cvt_pk_bf16_f32 {Fm[2*h+e]}, {d[e]}, {c[e]}')
        V.put(T)
    def phase2(self, first_wait, after_check=None):
        p, V, S = self.p, self.V, self.S
        TL = self.TL; F, Dr, Di = V.get(16), V.get(16), V.get(16)
        acc = V.get(); t = V.get(2)
        self.poll(self.t1_issue, lambda: self.check16(TL, acc, t), first_wait)
        self.stamp('t1ok')
        lb = self.label('ep')
        p(f'''s_or_b32 {self.st0}, {self.sC}, {self.sV}
        s_cmp_lg_u32 {self.st0}, 0
        s_cbranch_scc1 {lb}
        s_add_u32 {self.st0}, {self.sE}, 1
        v_mov_b32 {t[0]}, {self.st0}
        v_mov_b32 {t[1]}, 0
        s_mov_b64 exec, 1
        global_store_dword {t[1]}, {t[0]}, {self.sb}
        s_mov_b64 exec, -1
        s_waitcnt vmcnt(0)
        {lb}:''')
        if after_check: after_check()
        q = lambda R, s: R[4*s:4*s+4]
        for s in range(4):
            for i in range(4): p(f'v_mov_b32 {F[4*s+i]}, {TL[4*i+s]}')
        self.fft256(F, Dr, Di)
        lsp, ldone = self.label('sp'), self.label('spd')
        p(f's_cmp_eq_u32 {self.sSP}, 0\ns_cbranch_scc1 {lsp}')
        self.middle(self.M[0], q(Dr,0), q(Di,0), q(Dr,1), q(Di,1), q(F,0), q(F,1))
        p(f's_branch {ldone}\n{lsp}:')
        X, FX, Xr, Xi = TL, V.get(8), V.get(8), V.get(8); a = V.get()
        p(f's_lshl_b32 {self.st0}, {self.sR}, 12\ns_add_u32 {self.st0}, {self.st0}, {T1X}\nv_lshrrev_b32 {a}, 2, {self.aT1}')
        self.addr64(self.sa, self.ws, self.st0)
        def issue():
            for i in range(4): p(f'global_load_dwordx4 {X[4*i:4*i+4]}, {a}, {self.sa} offset:{256*i} sc1')
        def check():
            for i in range(4):
                p(f'v_bitop3_b32 {t[0]}, {X[4*i+1]}, {X[4*i+3]}, {self.sN} bitop3:0x7e')
                p(f'v_or_b32 {acc}, {t[0]}, {acc}' if i else f'v_mov_b32 {acc}, {t[0]}')
            p(f'v_cmp_ne_u32 vcc, 0, {acc}')
        issue(); self.poll(issue, check, 0)
        for s in range(2):
            for i in range(4): p(f'v_mov_b32 {FX[4*s+i]}, {X[4*i+2*s]}')
        self.fft256(FX, Xr, Xi)
        self.middle(self.M[0], q(Dr,0), q(Di,0), q(Dr,1), q(Di,1), q(F,0), q(F,1), q(Xr,0), q(Xi,0), q(Xr,1), q(Xi,1), self.N2)
        p(f'{ldone}:\ns_nop 7')
        V.put(FX, Xr, Xi, a)
        self.middle(self.M[1], q(Dr,2), q(Di,2), q(Dr,3), q(Di,3), q(F,2), q(F,3))
        self.fft256(F, Dr, Di)
        for rho in range(4):
            o = F[4*rho:4*rho+4]
            for s in range(4): p(f'v_cvt_pk_bf16_f32 {o[s]}, {Di[4*s+rho]}, {Dr[4*s+rho]}')
            self.tag4(o)
            p(f'ds_write_b128 {self.aEW}, {o} offset:{1024*rho}')
        sa, st0, st1 = self.sa, self.st0, self.st1
        p(f'''s_lshl_b32 {st0}, {self.sV}, 12
        s_add_u32 {st0}, {st0}, {EX}
        v_add_u32 {acc}, {st0}, {self.L16}
        s_lshl_b32 {st0}, {self.sV}, 20
        s_lshl_b32 {st1}, {self.sC}, 6
        s_add_u32 {st0}, {st0}, {st1}
        s_add_u32 {st0}, {st0}, {T2}''')
        self.addr64(sa, self.ws, st0)
        p('s_waitcnt lgkmcnt(0)\ns_barrier')
        for i in range(4): p(f'ds_read_b128 {Dr[4*i:4*i+4]}, {acc} offset:{1024*i}')
        for i in range(4):
            if i: self.addr64(sa, sa, 16*16384)
            p(f's_waitcnt lgkmcnt({3-i})\nglobal_store_dwordx4 {self.aT2s}, {Dr[4*i:4*i+4]}, {sa} sc1')
        self.stamp('t2st')
        V.put(F, Dr, Di, acc, t, self.aT1, self.aEW, self.aT2s, self.T16c, self.T16s, *self.M[0], *self.M[1], *self.N2)
        self.A.put(self.C16r, self.C16i); S.put(self.sT1)

    def consts3(self):
        p, V, A, S, L = self.p, self.V, self.A, self.S, self.L
        self.R4l, self.R4h = A.get(4), A.get(4)
        k, b, an, c, s, d = V.get(), V.get(), V.get(), V.get(), V.get(), V.get()
        m1, m2 = S.get(2), S.get(2)
        p(f'''v_bfe_u32 {k}, {L}, 3, 1
        v_bfe_u32 {b}, {L}, 1, 1
        v_lshl_add_u32 {k}, {k}, 1, {b}
        v_lshlrev_b32 {k}, 8, {k}
        v_add_u32 {k}, {self.sC}, {k}
        v_cvt_f32_u32 {k}, {k}
        v_mul_f32 {k}, {fl(1/1024)}, {k}
        v_and_b32 {b}, 1, {L}
        v_cvt_f32_u32 {b}, {b}
        v_mul_f32 {b}, {fl(-0.25)}, {b}
        v_bfe_u32 {c}, {L}, 2, 1
        v_cmp_eq_u32 {m1}, {c}, {self.GK}
        v_add_u32 {c}, 2, {c}
        v_cmp_eq_u32 {m2}, {c}, {self.GK}''')
        for r in range(4):
            p(f'''v_fmamk_f32 {an}, {k}, {fl(r)}, {b}
            v_cos_f32 {c}, {an}
            v_sin_f32 {s}, {an}
            v_mul_f32 {c}, {fl(2.0**-21)}, {c}
            v_mul_f32 {s}, {fl(-2.0**-21)}, {s}
            v_cvt_pk_bf16_f32 {d}, {c}, {s}
            v_cndmask_b32 {c}, 0, {d}, {m1}
            v_cndmask_b32 {s}, 0, {d}, {m2}
            v_accvgpr_write_b32 {self.R4l[r]}, {c}
            v_accvgpr_write_b32 {self.R4h[r]}, {s}''')
        S.put(m1, m2)
        self.aVW = V.get(4); self.aVR = V.get(4); self.aO = V.get()
        def vaddr(dst, q):
            p(f'''v_and_b32 {c}, 31, {q}
            v_lshrrev_b32 {s}, 5, {q}
            v_bfe_u32 {d}, {q}, 1, 3
            v_lshlrev_b32 {d}, 2, {d}
            v_xor_b32 {s}, {s}, {d}
            v_lshlrev_b32 {s}, 2, {s}
            v_lshl_add_u32 {s}, {c}, 7, {s}
            v_add_u32 {dst}, {s}, {b}''')
        m1 = S.get(2)
        p(f'''v_and_b32 {k}, 1, {self.GK}
        v_lshlrev_b32 {k}, 5, {k}
        v_lshl_add_u32 {k}, {self.L15}, 1, {k}
        s_lshl_b32 {self.st0}, {self.sV}, 7
        v_add_u32 {k}, {self.st0}, {k}
        v_lshlrev_b32 {b}, 13, {self.H}''')
        vaddr(self.aVW[0], k)
        p(f'v_sub_u32 {an}, {1024-1-64}, {k}'); vaddr(self.aVW[1], an)
        p(f'v_sub_u32 {an}, {1024-64}, {k}'); vaddr(self.aVW[3], an)
        p(f'''v_sub_u32 {an}, 0x400, {k}
        v_cmp_eq_u32 {m1}, 0, {k}
        v_mov_b32 {c}, 0x200
        v_cndmask_b32 {an}, {an}, {c}, {m1}''')
        vaddr(self.aVW[2], an)
        S.put(m1)
        p(f'''v_and_b32 {k}, 31, {L}
        v_bfe_u32 {c}, {L}, 1, 3
        v_xor_b32 {c}, {c}, {self.H}
        v_lshlrev_b32 {c}, 4, {c}
        v_lshl_add_u32 {k}, {k}, 7, {c}
        s_lshl_b32 {self.st0}, {self.sV}, 12
        v_add_u32 {self.aVR[0]}, {self.st0}, {k}''')
        for f in range(1, 4): p(f'v_xor_b32 {self.aVR[f]}, {32*f}, {self.aVR[0]}')
        p(f'v_lshlrev_b32 {k}, 4, {self.H}\nv_lshl_add_u32 {self.aO}, {self.PI}, 6, {k}')
        V.put(k, b, an, c, s, d)
        self.sT2 = [S.get(2), S.get(2)]
        p(f's_lshl_b32 {self.st0}, {self.sC}, 14\ns_lshl_b32 {self.st1}, {self.sV}, 10\ns_add_u32 {self.st0}, {self.st0}, {self.st1}\ns_add_u32 {self.st0}, {self.st0}, {T2+4096}')
        self.addr64(self.sT2[0], self.ws, self.st0)
        self.addr64(self.sT2[1], self.sT2[0], 8192)
    def t2_issue(self):
        for r in range(4): self.p(f'global_load_dwordx4 {self.TL[4*r:4*r+4]}, {self.L16}, {self.sT2[r>>1]} offset:{-4096*(1-(r&1))} sc1')
    def phase3(self, first_wait):
        p, V, S = self.p, self.V, self.S
        TL = self.TL; F, Dr, Di = V.get(16), V.get(16), V.get(16)
        acc = V.get(); t = V.get(2)
        self.poll(self.t2_issue, lambda: self.check16(TL, acc, t), first_wait)
        self.stamp('t2ok')
        for s in range(4):
            for i in range(4): p(f'v_mov_b32 {F[4*s+i]}, {TL[4*i+s]}')
        for s in range(4):
            p(f'v_mfma_f32_16x16x32_bf16 {Dr[4*s:4*s+4]}, {self.R4l}, {F[4*s:4*s+4]}, 0\nv_mfma_f32_16x16x32_bf16 {Di[4*s:4*s+4]}, {self.R4h}, {F[4*s:4*s+4]}, 0')
        for s in range(4):
            e, up = s >> 1, s & 1
            for hi, D in ((0, Dr), (1, Di)):
                for ml in range(2):
                    o = TL[4*s+2*hi+ml]
                    p(f'v_cvt_pk_bf16_f32 {o}, {"-" if up else ""}{D[4*s+2*ml+1]}, {D[4*s+2*ml]}')
                    if not up: a, off = self.aVW[0], 128*e + 8*hi
                    elif e: a, off = self.aVW[1], 8*(1-hi)
                    else: a, off = self.aVW[2+hi], 0
                    p(f'ds_write_b32 {a}, {o} offset:{off + 4096*ml}')
        sa, st0 = self.sa, self.st0
        p(f's_lshl_b32 {st0}, {self.sV}, 8\ns_add_u32 {st0}, {st0}, {self.sC}\ns_lshl_b32 {st0}, {st0}, 13\ns_add_u32 {st0}, {st0}, 4096')
        self.addr64(sa, self.out, st0)
        p('s_waitcnt lgkmcnt(0)\ns_barrier')
        for f in range(4): p(f'ds_read_b128 {F[4*f:4*f+4]}, {self.aVR[f]}')
        p('s_waitcnt lgkmcnt(0)')
        self.fft1024(F, Dr, Di)
        for row, D in ((0, Di), (1, Dr)):
            for hf in range(2):
                o = F[8*row+4*hf:8*row+4*hf+4]
                for k in range(4): p(f'v_cvt_pk_bf16_f32 {o[k]}, {D[8*hf+2*k]}, {D[8*hf+2*k+1]}')
                p(f'global_store_dwordx4 {self.aO}, {o}, {sa} offset:{-4096*(1-row)+32*hf}')
        self.stamp('outst')
        V.put(F, Dr, Di, acc, t, self.aVW, self.aVR, self.aO)
        S.put(*self.sT2); self.A.put(self.R4l, self.R4h)

    def tu_produce(self):
        p, V = self.p, self.V
        a, o, R = V.get(), V.get(), V.get(16)
        t = V.get(); L = self.L; sa, st0, st1 = self.sa, self.st0, self.st1
        p(f"""v_bfe_u32 {a}, {L}, 2, 2
        v_lshlrev_b32 {a}, 7, {a}
        v_lshrrev_b32 {t}, 4, {L}
        v_lshl_add_u32 {a}, {t}, 5, {a}
        v_and_b32 {t}, 3, {L}
        v_lshl_add_u32 {a}, {t}, 3, {a}
        s_lshl_b32 {st0}, {self.sV}, 12
        s_add_u32 {st0}, {st0}, {US}
        v_add_u32 {a}, {st0}, {a}""")
        for b in range(4):
            for h in range(2): p(f'ds_read_b64_tr_b16 {R[4*b+2*h:4*b+2*h+2]}, {a} offset:{1024*b+512*h}')
        p(f"""v_lshlrev_b32 {t}, 4, {t}
        v_lshrrev_b32 {o}, 2, {L}
        v_lshl_add_u32 {o}, {o}, 14, {t}
        s_lshr_b32 {st0}, {self.sC}, 4
        s_lshl_b32 {st0}, {st0}, 18
        s_and_b32 {st1}, {self.sC}, 15
        s_lshl_b32 {st1}, {st1}, 10
        s_add_u32 {st0}, {st0}, {st1}
        s_lshl_b32 {st1}, {self.sV}, 8
        s_add_u32 {st0}, {st0}, {st1}
        s_add_u32 {st0}, {st0}, {TU}""")
        self.addr64(sa, self.ws, st0)
        for b in range(4):
            p(f's_waitcnt lgkmcnt({6-2*b})')
            self.tag4(R[4*b:4*b+4])
            p(f'global_store_dwordx4 {o}, {R[4*b:4*b+4]}, {sa} offset:{64*b} sc1')
        V.put(a, o, R, t)
    def tu_setup(self):
        p, V, S = self.p, self.V, self.S
        self.UL = V.get(16); self.aTU = V.get(); self.sTU = [S.get(2), S.get(2)]
        p(f"""v_lshlrev_b32 {self.aTU}, 6, {self.L}
        s_lshl_b32 {self.st0}, {self.sC}, 14
        s_lshl_b32 {self.st1}, {self.sV}, 4
        s_add_u32 {self.st0}, {self.st0}, {self.st1}
        s_add_u32 {self.st0}, {self.st0}, {TU+4096}""")
        self.addr64(self.sTU[0], self.ws, self.st0)
        self.addr64(self.sTU[1], self.sTU[0], 8192)
    def tu_issue(self):
        for i in range(4): self.p(f'global_load_dwordx4 {self.UL[4*i:4*i+4]}, {self.aTU}, {self.sTU[i>>1]} offset:{-4096*(1-(i&1))} sc1')
    def tu_consume(self, first_wait):
        p, V = self.p, self.V
        acc, t = V.get(), V.get(2)
        self.poll(self.tu_issue, lambda: self.check16(self.UL, acc, t), first_wait)
        p(f'v_add_u32 {acc}, {self.sB}, {self.L16}')
        for i in range(4): p(f'ds_write_b128 {acc}, {self.UL[4*i:4*i+4]} offset:{UT+1024*i}')
        V.put(acc, t, self.UL, self.aTU); self.S.put(*self.sTU)

    def cmul(self, items):
        p = self.p
        for i, (d, x, e) in enumerate(items): p(f'v_pk_mul_f32 {self.CT[2*i:2*i+2]}, {x}, {e} op_sel:[0,0] op_sel_hi:[0,1]')
        for i, (d, x, e) in enumerate(items): p(f'v_pk_fma_f32 {d}, {x}, {e}, {self.CT[2*i:2*i+2]} op_sel:[1,1,0] op_sel_hi:[1,0,1] neg_lo:[0,1,0]')
    def krow(self, row, X, neg=False):
        p = self.p; o = self.KO[2*(row & 1):2*(row & 1)+2]
        for u in range(2): p(f'v_cvt_pk_bf16_f32 {o[u]}, {X[u][0]}, {"-" if neg else ""}{X[u][1]}')
        p(f'ds_write_b64 {self.aKW}, {o} offset:{KT+528*row}')
    def kgen_setup(self):
        p, V, S, L = self.p, self.V, self.S, self.L
        self.sB = S.get(); st0, st1 = self.st0, self.st1
        self.E = {n: [V.get(2), V.get(2)] for n in (1, 8, 128)}
        self.KY = [V.get(2), V.get(2)]; self.KX = [V.get(2), V.get(2)]; self.CT = V.get(4); self.KO = V.get(4)
        self.aKW, self.aKR = V.get(), V.get()
        dt, t0, t1, t2 = V.get(), V.get(), V.get(), V.get(); z = V.get(4)
        LOG2E = math.log2(math.e); hi = struct.unpack('<f', struct.pack('<f', LOG2E))[0]
        p(f"""s_mul_i32 {self.sB}, {self.sV}, {BW}
        s_add_u32 {self.sB}, {self.sB}, {BB}
        s_and_b32 {st0}, {self.sD}, 1
        s_lshl_b32 {st0}, {st0}, 4
        s_lshr_b32 {self.sLD}, {self.sLD}, {st0}
        s_lshl_b32 {self.sLD}, {self.sLD}, 16
        s_lshr_b32 {self.sDS}, {self.sDS}, {st0}
        s_lshl_b32 {self.sDS}, {self.sDS}, 16
        v_mov_b32 {t0}, {fl(hi)}
        v_mul_f32 {t1}, {self.sLD}, {t0}
        v_fma_f32 {t2}, {self.sLD}, {t0}, -{t1}
        v_mov_b32 {t0}, {fl(LOG2E-hi)}
        v_exp_f32 {dt}, {t1}
        v_fmac_f32 {t2}, {self.sLD}, {t0}
        v_mul_f32 {t2}, {fl(math.log(2))}, {t2}
        v_fmac_f32 {dt}, {dt}, {t2}
        v_cvt_pk_bf16_f32 {dt}, {dt}, {dt}
        v_lshlrev_b32 {dt}, 16, {dt}
        v_lshl_add_u32 {self.aKW}, {L}, 3, {self.sB}
        v_mul_u32_u24 {t0}, 528, {self.L15}
        v_lshl_add_u32 {t0}, {self.GK}, 4, {t0}
        v_add_u32 {self.aKR}, {self.sB}, {t0}
        v_mov_b32 {z[0]}, 0
        v_mov_b32 {z[1]}, 0
        v_mov_b32 {z[2]}, 0
        v_mov_b32 {z[3]}, 0
        v_lshl_add_u32 {t0}, {self.L15}, 4, {self.sB}
        ds_write_b128 {t0}, {z}
        v_and_b32 {t0}, 31, {L}
        v_lshl_add_u32 {t0}, {t0}, 4, {self.sB}
        ds_write_b128 {t0}, {z} offset:{UZ}""")
        un = lambda d, src, u: p(f'v_lshlrev_b32 {d}, 16, {src}' if u == 0 else f'v_and_b32 {d}, 0xffff0000, {src}')
        PR = self.PR
        for u in range(2):
            X, Y = self.KX[u], self.KY[u]
            un(X[0], PR[2], u); un(X[1], PR[3], u); un(Y[0], PR[4], u); un(Y[1], PR[5], u)
            p(f'v_mul_f32 {X[0]}, {dt}, {X[0]}\nv_mul_f32 {X[1]}, {dt}, {X[1]}')
        self.cmul([(self.KY[u], self.KY[u], self.KX[u]) for u in range(2)])
        for u in range(2):
            a, b = z[2*u], z[2*u+1]
            un(a, PR[0], u); un(b, PR[1], u)
            p(f"""v_mul_f32 {a}, {dt}, {a}
            v_mul_f32 {b}, {dt}, {b}
            v_mul_f32 {a}, {fl(LOG2E)}, {a}
            v_mul_f32 {b}, {fl(1/(2*math.pi))}, {b}""")
        for n in (1, 8, 128):
            for u in range(2):
                a, b = z[2*u], z[2*u+1]; E = self.E[n][u]
                if n == 1: p(f'v_exp_f32 {t0}, {a}\nv_fract_f32 {t1}, {b}')
                else: p(f'v_mul_f32 {t0}, {fl(n)}, {a}\nv_mul_f32 {t1}, {fl(n)}, {b}\nv_exp_f32 {t0}, {t0}\nv_fract_f32 {t1}, {t1}')
                p(f"""v_cos_f32 {E[0]}, {t1}
                v_sin_f32 {E[1]}, {t1}
                v_mul_f32 {E[0]}, {t0}, {E[0]}
                v_mul_f32 {E[1]}, {t0}, {E[1]}""")
        V.put(dt, t0, t1, t2, z, self.PR)
    def kgen_batch1(self):
        p, A = self.p, self.A; X, Y, E = self.KX, self.KY, self.E
        p(f'v_mov_b32 {self.KO[0]}, 0x3f80\nv_mov_b32 {self.KO[1]}, 0x3f80\nds_write_b64 {self.aKW}, {self.KO[0:2]} offset:{KT}')
        self.krow(1, E[8], True)
        for b in range(2, 16):
            self.cmul([(X[u], E[8][u] if b == 2 else X[u], E[8][u]) for u in range(2)]); self.krow(b, X, True)
        for a in range(2):
            if a: self.cmul([(Y[u], Y[u], E[128][u]) for u in range(2)])
            self.krow(16+8*a, Y)
            for j in range(1, 8):
                self.cmul([(X[u], Y[u] if j == 1 else X[u], E[1][u]) for u in range(2)]); self.krow(16+8*a+j, X)
        self.BF, self.AF = A.get(32), [A.get(32), A.get(32), A.get(32)]
        for t in range(8):
            p(f'ds_read_b128 {self.BF[4*t:4*t+4]}, {self.aKR} offset:{KT+64*t}')
            p(f'ds_read_b128 {self.AF[0][4*t:4*t+4]}, {self.aKR} offset:{KT+16*528+64*t}')
    def kgen_batch2(self):
        p, V = self.p, self.V; X, Y, E = self.KX, self.KY, self.E
        step = lambda: self.cmul([(Y[u], Y[u], E[128][u]) for u in range(2)])
        self.cmul([(E[1][u], E[1][u], E[1][u]) for u in range(2)])
        self.cmul([(E[8][u], E[1][u], E[1][u]) for u in range(2)])
        for a in range(2):
            step(); self.krow(4*a, Y)
            for j in range(1, 4):
                self.cmul([(X[u], Y[u] if j == 1 else X[u], E[1][u]) for u in range(2)]); self.krow(4*a+j, X)
        for a in range(4):
            step(); self.krow(8+2*a, Y)
            self.cmul([(X[u], Y[u], E[8][u]) for u in range(2)]); self.krow(9+2*a, X)
        for a in range(9):
            step(); self.krow(16+a, Y)
        for k in range(1, 3):
            for t in range(8): p(f'ds_read_b128 {self.AF[k][4*t:4*t+4]}, {self.aKR} offset:{KT+16*528*(k-1)+64*t}')
        V.put(*E[1], *E[8], *E[128], *X, *Y, self.CT, self.KO, self.aKW, self.aKR)
    def kgen_mfma(self):
        p, V, L = self.p, self.V, self.L
        KD = V.get(12); a0, a1, a2, a3, t = V.get(), V.get(), V.get(), V.get(), V.get(); O = V.get(6)
        for k in range(3):
            p(f's_waitcnt lgkmcnt({(15, 8, 0)[k]})')
            for i in range(8):
                p(f'v_mfma_f32_16x16x32_bf16 {KD[4*k:4*k+4]}, {self.AF[k][4*i:4*i+4]}, {self.BF[4*i:4*i+4]}, {KD[4*k:4*k+4] if i else 0}')
            if k == 0:
                p(f"""v_lshlrev_b32 {a0}, 8, {self.H}
                v_lshl_add_u32 {a0}, {self.L15}, 4, {a0}
                v_and_b32 {t}, 1, {self.GK}
                v_lshl_add_u32 {a0}, {t}, 3, {a0}
                v_add_u32 {a0}, {self.sB}, {a0}
                v_lshl_add_u32 {a3}, {self.GK}, 7, {self.sB}
                v_sub_u32 {t}, 3, {self.H}
                v_lshlrev_b32 {t}, {t}, {self.L15}
                v_add_u32 {a1}, {a3}, {t}
                v_mul_u32_u24 {t}, 60, {self.H}
                v_add3_u32 {a2}, {a1}, {t}, 4
                v_lshl_add_u32 {a3}, {self.L15}, 1, {a3}
                v_cmp_eq_u32 vcc, 0, {L}
                v_mov_b32 {t}, {self.sDS}
                v_cndmask_b32 {t}, 0, {t}, vcc""")
        p(f'v_add_f32 {KD[0]}, {KD[0]}, {t}')
        for i in range(6): p(f'v_cvt_pk_bf16_f32 {O[i]}, {KD[2*i]}, {KD[2*i+1]}')
        p(f"""ds_write_b64 {a0}, {O[0:2]} offset:{UT}
        ds_write_b32 {a1}, {O[2]} offset:{KC}
        ds_write_b32 {a2}, {O[3]} offset:{KC}
        ds_write_b16 {a3}, {O[4]} offset:{KC+512}
        ds_write_b16_d16_hi {a3}, {O[4]} offset:{KC+512+32}
        ds_write_b16 {a3}, {O[5]} offset:{KC+512+64}
        ds_write_b16_d16_hi {a3}, {O[5]} offset:{KC+512+96}""")
        V.put(KD, a0, a1, a2, a3, t, O); self.A.put(self.BF, *self.AF)
    def kexpand(self):
        p, V, S, L = self.p, self.V, self.S, self.L
        sLO, sHI = S.get(), S.get()
        a, b, c = V.get(), V.get(), V.get(); R = V.get(8); O = V.get(16)
        p(f"""v_and_b32 {c}, 31, {L}
        v_lshl_add_u32 {a}, {c}, 3, {self.sB}
        v_lshl_add_u32 {b}, {L}, 2, {self.sB}
        v_add_u32 {b}, {KC}, {b}
        ds_read_b64 {R[0:2]}, {a} offset:{KC}
        ds_read_b32 {R[2]}, {a} offset:{KC+8}
        ds_read2_b32 {R[4:6]}, {b} offset0:64 offset1:65
        ds_read2_b32 {R[6:8]}, {b} offset0:128 offset1:129
        s_mov_b32 {sLO}, 0x01000100
        s_mov_b32 {sHI}, 0x03020302
        v_lshl_add_u32 {a}, {c}, 4, {self.sB}
        v_add_u32 {b}, {self.sB}, {self.L16}
        v_lshl_add_u32 {c}, {L}, 5, {self.sB}
        s_waitcnt lgkmcnt(2)
        v_perm_b32 {O[0]}, {R[0]}, {R[0]}, {sLO}
        v_alignbit_b32 {O[1]}, {R[1]}, {R[0]}, 16
        v_perm_b32 {O[2]}, {R[1]}, {R[1]}, {sLO}
        v_alignbit_b32 {O[3]}, {R[2]}, {R[1]}, 16
        ds_write_b128 {a}, {O[0:4]} offset:{UT+512}
        s_waitcnt lgkmcnt(2)
        v_perm_b32 {O[4]}, {R[4]}, {R[4]}, {sLO}
        v_mov_b32 {O[5]}, {R[4]}
        v_perm_b32 {O[6]}, {R[4]}, {R[4]}, {sHI}
        v_perm_b32 {O[7]}, {R[5]}, {R[5]}, {sLO}
        ds_write_b128 {b}, {O[4:8]} offset:{UT+1024}
        s_waitcnt lgkmcnt(2)
        v_perm_b32 {O[8]}, {R[6]}, {R[6]}, {sLO}
        v_mov_b32 {O[10]}, {R[6]}
        v_perm_b32 {O[11]}, {R[6]}, {R[6]}, {sHI}
        v_mov_b32 {O[9]}, {O[8]}
        v_perm_b32 {O[14]}, {R[7]}, {R[7]}, {sLO}
        v_mov_b32 {O[12]}, {O[11]}
        v_mov_b32 {O[13]}, {O[11]}
        v_mov_b32 {O[15]}, {O[14]}
        ds_write_b128 {c}, {O[8:12]} offset:{UT+2048}
        ds_write_b128 {c}, {O[12:16]} offset:{UT+2048+16}""")
        V.put(R); R = V.get(24)
        for r in range(4):
            p(f'ds_read_b64 {R[6*r:6*r+2]}, {b} offset:{UT-8+1024*r}\nds_read_b128 {R[6*r+2:6*r+6]}, {b} offset:{UT+1024*r}')
        p(f"""v_lshrrev_b32 {a}, 2, {L}
        v_lshlrev_b32 {a}, 8, {a}
        v_and_b32 {c}, 3, {L}
        v_lshl_add_u32 {a}, {c}, 4, {a}
        v_add_u32 {a}, {self.sB}, {a}""")
        for r in range(4):
            Q = R[6*r:6*r+6]
            p(f's_waitcnt lgkmcnt({min(15, 6-2*r+4*r)})')
            p(f'ds_write_b128 {a}, {Q[2:6]} offset:{KT+4096*r}')
            for k in range(4): p(f'v_alignbit_b32 {O[k]}, {Q[k+2]}, {Q[k+1]}, 16')
            p(f'ds_write_b128 {a}, {O[0:4]} offset:{KT+4096*r+64}')
            for k in range(4): p(f'v_mov_b32 {O[4+k]}, {Q[k+1]}')
            p(f'ds_write_b128 {a}, {O[4:8]} offset:{KT+4096*r+128}')
            for k in range(4): p(f'v_alignbit_b32 {O[8+k]}, {Q[k+1]}, {Q[k]}, 16')
            p(f'ds_write_b128 {a}, {O[8:12]} offset:{KT+4096*r+192}')
        V.put(a, b, c, R, O); S.put(sLO, sHI)
    def conv_setup(self):
        p, V, A, L = self.p, self.V, self.A, self.L
        self.aKA = V.get(2); self.aUB = V.get(); self.aYW = V.get(); self.aYR = V.get(); self.aYO = V.get()
        self.ACC = V.get(32); self.CA = [A.get(32), A.get(32)]; self.CB = [A.get(32), A.get(32)]
        y, t, r4, cc = V.get(), V.get(), V.get(), V.get()
        p(f'v_bfe_u32 {r4}, {L}, 2, 2\nv_and_b32 {cc}, 3, {L}')
        for k in range(2):
            p(f"""v_lshlrev_b32 {y}, 1, {self.GK}
            v_sub_u32 {y}, {cc}, {y}
            v_lshl_add_u32 {y}, {y}, 2, {16-4*k}
            v_ashrrev_i32 {t}, 5, {y}
            v_lshlrev_b32 {t}, 8, {t}
            v_and_b32 {y}, 31, {y}
            v_lshl_add_u32 {y}, {y}, 1, {t}
            v_lshl_add_u32 {y}, {r4}, 6, {y}
            v_add_u32 {self.aKA[k]}, {self.sB}, {y}""")
        p(f"""v_lshlrev_b32 {y}, 4, {self.GK}
        v_lshl_add_u32 {y}, {self.L15}, 5, {y}
        v_add_u32 {self.aUB}, {self.sB}, {y}
        v_add_u32 {y}, {self.GK}, {r4}
        v_and_b32 {y}, 3, {y}
        v_lshlrev_b32 {y}, 3, {y}
        v_lshl_add_u32 {y}, {self.L15}, 5, {y}
        s_mul_i32 {self.st0}, {self.sV}, {YST}
        v_add_u32 {self.aYW}, {self.st0}, {y}
        v_add_u32 {y}, {self.GK}, {cc}
        v_and_b32 {y}, 3, {y}
        v_lshlrev_b32 {y}, 3, {y}
        v_lshl_add_u32 {y}, {self.GK}, 7, {y}
        v_mul_u32_u24 {t}, {YST}, {r4}
        s_lshl_b32 {self.st0}, {self.sV}, 9
        v_add3_u32 {self.aYR}, {y}, {t}, {self.st0}
        v_lshl_add_u32 {y}, {self.GK}, 6, {self.L15}
        v_lshlrev_b32 {self.aYO}, 12, {y}""")
        V.put(y, t, r4, cc)
        self.started = set()
    def conv_reads(self, half, e0):
        n = 4 if half == 0 else 8; buf = e0 & 1; l = []
        for i in range(n):
            for t in range(2): l.append(f'ds_read_b64_tr_b16 {self.CA[buf][4*i+2*t:4*i+2*t+2]}, {self.aKA[t]} offset:{KT+256*(e0+8*i)}')
            l.append(f'ds_read_b128 {self.CB[buf][4*i:4*i+4]}, {self.aUB} offset:{UT-32+512*i-64*e0}')
        return l
    def conv_step(self, half, e0, prefetch):
        p = self.p; buf = e0 & 1; n = 4 if half == 0 else 8
        pairs = [(e1, g) for e1 in range(n) for g in range(n) if 4*half <= e1+g <= 4*half+3]
        pairs.sort(key=lambda x: (max(x), x))
        out = []; last = None
        while pairs:
            k = next((i for i, x in enumerate(pairs) if sum(x) != last), 0)
            x = pairs.pop(k); out.append(x); last = sum(x)
        p('s_waitcnt lgkmcnt(0)')
        pf = list(prefetch)
        for i, (e1, g) in enumerate(out):
            c = e1+g; acc = self.ACC[4*c:4*c+4]
            p(f'v_mfma_f32_16x16x32_bf16 {acc}, {self.CA[buf][4*e1:4*e1+4]}, {self.CB[buf][4*g:4*g+4]}, {acc if c in self.started else 0}')
            self.started.add(c)
            k = -(-len(pf)//max(1, len(out)-i-2)) if pf else 0
            for _ in range(min(k, len(pf))): p(pf.pop(0))
        for x in pf: p(x)
    def conv_run(self, steps, nxt):
        for i, (h, e0) in enumerate(steps):
            n = steps[i+1] if i+1 < len(steps) else nxt
            self.conv_step(h, e0, self.conv_reads(*n) if n else [])
    def y_stage(self, half):
        p, V = self.p, self.V; O = V.get(8)
        for i in range(4):
            c = 4*half+i
            p(f'v_cvt_pk_bf16_f32 {O[2*i]}, {self.ACC[4*c]}, {self.ACC[4*c+1]}\nv_cvt_pk_bf16_f32 {O[2*i+1]}, {self.ACC[4*c+2]}, {self.ACC[4*c+3]}')
            p(f'ds_write_b64 {self.aYW}, {O[2*i:2*i+2]} offset:{YS+512*c}')
        V.put(O)
    def y_read(self, half):
        self.YR = self.V.get(8)
        for k in range(4): self.p(f'ds_read_b64_tr_b16 {self.YR[2*k:2*k+2]}, {self.aYR} offset:{YS+2048*half+32*k}')
    def y_store(self, half):
        p = self.p; sa, st0, st1 = self.sa, self.st0, self.st1
        p(f's_lshl_b32 {st0}, {self.sV}, 20\ns_lshl_b32 {st1}, {self.sC}, 3\ns_add_u32 {st0}, {st0}, {st1}\ns_add_u32 {st0}, {st0}, {2048+(half<<22)}')
        self.addr64(sa, self.out, st0)
        for k in range(4):
            if k: self.addr64(sa, sa, 65536)
            p(f'global_store_dwordx2 {self.aYO}, {self.YR[2*k:2*k+2]}, {sa}')
        self.V.put(self.YR)

    def finish(self):
        p, V = self.p, self.V
        if self.stamps:
            p('s_waitcnt vmcnt(0)')
            self.stamp('end'); p('s_waitcnt lgkmcnt(0)')
            d = V.get(); a = V.get()
            p(f's_lshl_b32 {self.st0}, s2, 2\ns_add_u32 {self.st0}, {self.st0}, {self.sV}\ns_lshl_b32 {self.st0}, {self.st0}, 7\ns_add_u32 {self.st0}, {self.st0}, {DBG}')
            self.addr64(self.sa, self.ws, self.st0)
            p(f'v_mov_b32 {a}, 0\ns_mov_b64 exec, 1')
            for i, (n, r) in enumerate(self.stn):
                p(f'v_mov_b32 {d}, {r[0]}\nglobal_store_dword {a}, {d}, {self.sa} offset:{4*i}\ns_nop 1')
            if self.o.get('dbgstamps'):
                p(f's_load_dwordx2 {self.sa}, s[0:1], 104\ns_waitcnt lgkmcnt(0)')
                for i, (n, r) in enumerate(self.stn):
                    p(f'v_mov_b32 {d}, {r[0]}\nglobal_atomic_umax {a}, {d}, {self.sa} offset:{4*i}\ns_nop 1')
                p(f's_not_b32 {self.st0}, {self.stn[0][1][0]}\nv_mov_b32 {d}, {self.st0}\nglobal_atomic_umax {a}, {d}, {self.sa} offset:60')
            amp = [k for k in self.o if k.startswith('amp=')]
            if amp:
                _, nm, wg = amp[0].split('=')
                r = dict(self.stn)[nm]; e = dict(self.stn)['end']; t = self.sb
                p(f'''s_lshl_b32 {self.st0}, s2, 2
                s_add_u32 {self.st0}, {self.st0}, {self.sV}
                s_cmp_lg_u32 {self.st0}, {4*int(wg)}
                s_cbranch_scc1 L_end
                s_sub_u32 {self.st0}, {r[0]}, {self.stn[0][1][0]}
                s_min_u32 {self.st0}, {self.st0}, 10000
                s_mul_i32 {self.st0}, {self.st0}, 20
                L_amp:
                s_sleep 8
                s_memrealtime {t}
                s_waitcnt lgkmcnt(0)
                s_sub_u32 {self.st1}, {t[0]}, {e[0]}
                s_cmp_lt_u32 {self.st1}, {self.st0}
                s_cbranch_scc1 L_amp''')
        p('L_end:\ns_endpgm')

    def emit(self):
        pad = self.p.pad(); errs = self.p.verify()
        for e in errs: print('VERIFY', e, file=sys.stderr)
        hdr = open('cdna_kernels/%s.s.ref' % NAME).read().split('; Override launch')[0]
        nv = 256; na = max(8, self.A.hi)
        s = hdr + ('; stamps: ' + ' '.join(n for n, _ in self.stn) + '\n' if self.stamps else '') + f'; @launch grid=(256,1,1) block=(256,1,1) lds={LDS_BYTES}\n'
        s += f'.amdgcn_target "amdgcn-amd-amdhsa--gfx950"\n.text\n.globl {NAME}_kernel\n.p2align 8\n.type {NAME}_kernel,@function\n{NAME}_kernel:\n'
        s += self.p.text()
        s += f'''.section .rodata,"a"
.p2align 6
.amdhsa_kernel {NAME}_kernel
  .amdhsa_next_free_vgpr {nv+na}
  .amdhsa_next_free_sgpr 102
  .amdhsa_accum_offset {nv}
  .amdhsa_group_segment_fixed_size 0
  .amdhsa_kernarg_size 120
  .amdhsa_user_sgpr_count 2
  .amdhsa_user_sgpr_kernarg_segment_ptr 1
  .amdhsa_system_sgpr_workgroup_id_x 1
  .amdhsa_float_denorm_mode_32 3
.end_amdhsa_kernel
'''
        n = sum(1 for i in self.p.ins if i.states)
        print(f'instrs {n} pad {pad} vgpr {self.V.hi} agpr {self.A.hi} sgpr {self.S.hi} errs {len(errs)}', file=sys.stderr)
        return s

def build_a_only(stamps=False):
    g = Gen(stamps)
    g.prologue(); g.consts1()
    g.phase1(16)
    g.p('s_waitcnt vmcnt(5)')
    g.consts2(); g.wstage(); g.mpre()
    g.t1_issue_setup(); g.p('s_sleep 16'); g.t1_issue()
    g.phase2(0)
    g.consts3(); g.p('s_sleep 24'); g.t2_issue()
    g.phase3(0)
    g.finish()
    return g

def build_v1(stamps=False, opts=None):
    g = Gen(stamps, opts); p = g.p
    g.prologue(); g.consts1()
    g.phase1(16)
    p('s_waitcnt vmcnt(11)')
    g.tu_produce()
    g.stamp('tust')
    g.consts2(); g.stamp('c2')
    g.kgen_setup(); g.stamp('ks'); g.kgen_batch1()
    g.stamp('kb1')
    g.t1_issue_setup(); g.t1_issue()
    p('s_waitcnt vmcnt(13)')
    g.wstage(); g.stamp('wst'); g.kgen_batch2(); g.stamp('kb2'); g.mpre(); g.stamp('mpre')
    g.kgen_mfma(); g.stamp('kmf'); g.kexpand()
    g.tu_setup()
    g.stamp('kdone')
    g.phase2(0, g.tu_issue)
    g.tu_consume(4)
    g.conv_setup(); g.consts3(); g.stamp('c3')
    for x in g.conv_reads(0, 0): p(x)
    g.conv_run([(0, e) for e in range(8)], (1, 0))
    g.y_stage(0)
    g.conv_run([(1, 0)], (1, 1))
    g.t2_issue()
    p('s_barrier');
    g.y_read(0); p('s_waitcnt lgkmcnt(0)'); g.y_store(0)
    g.conv_run([(1, e) for e in range(1, 4)], None)
    g.stamp('cv1')
    g.phase3(4)
    for x in g.conv_reads(1, 4): p(x)
    g.conv_run([(1, e) for e in range(4, 8)], None)
    g.y_stage(1)
    p('s_waitcnt lgkmcnt(0)\ns_barrier')
    g.y_read(1); p('s_waitcnt lgkmcnt(0)'); g.y_store(1)
    g.finish()
    return g

if __name__ == '__main__':
    g = globals()['build_' + sys.argv[2]]('-s' in sys.argv, {k: True for k in sys.argv[3:]})
    open(sys.argv[1], 'w').write(g.emit())
    print([n for n, _ in g.stn], file=sys.stderr)
```

```python
import sys, math, struct
from dsl import *

NAME = "concat_heads__spectral_gfnet__ssm_conv_s4__prompt"
def fl(x): return hex(struct.unpack('<I', struct.pack('<f', x))[0])

T1, T2, TU, T1X, WX, EOFF, DBG = 0, 4 << 20, 8 << 20, 12 << 20, (12 << 20) + (64 << 10), (12 << 20) + (128 << 10), 16 << 20
A0, PL = 0, 4608
US = 18432; EX = US
WS = 34816; YS = WS; YST = 4128
BB, BW = 51456, 23072
XI, XS1 = 0, 4112
KT, KC, UZ = 256, 256 + 16896, 256 + 16896 + 1280
UT = UZ + 512
LDS_BYTES = BB + 4*BW
SPIN_MAX = 4000

class Gen:
    def __init__(self, stamps=False, opts=None):
        self.p = Prog(); self.V = Alloc('v', 256, 1); self.A = Alloc('a', 256); self.S = Alloc('s', 100, 32)
        self.stamps = stamps; self.nst = 0; self.o = opts or {}; self.stn = []
        self.vmlog = []; self.lbl = 0; self.ool = []; self.main = self.p
    def P(self, text): self.p(text)
    def stamp(self, name):
        if not self.stamps: return
        r = self.S.get(2); self.stn.append((name, r))
        self.p(f's_memrealtime {r}')
    def label(self, base):
        self.lbl += 1; return f'L{base}{self.lbl}'
    def vm(self, text, tag):
        self.p(text)
        if self.p is self.main: self.vmlog.append(tag)
    def after(self, tag):
        k = max(i for i, t in enumerate(self.vmlog) if t == tag)
        return len(self.vmlog) - 1 - k
    def wait_vm(self, tag): self.p(f's_waitcnt vmcnt({self.after(tag)})')
    def begin_ool(self, lb):
        q = Prog(); self.ool.append(q); self.p = q; q(f'{lb}:')
    def end_ool(self): self.p = self.main
    def addr64(self, dst, base, off):
        self.p(f's_add_u32 {dst[0]}, {base[0]}, {off}\ns_addc_u32 {dst[1]}, {base[1]}, 0')

    def prologue(self):
        p, V, S = self.P, self.V, self.S
        P = lambda b: Reg('s', b, 2)
        self.x, self.wr, self.wi, self.u = P(4), P(6), P(8), P(10)
        self.par = [P(12), P(14), P(16), P(18), P(20), P(22)]
        self.ldt, self.dsk, self.out, self.ws = P(24), P(26), P(28), P(30)
        self.sV, self.sC, self.sR, self.sG = S.get(), S.get(), S.get(), S.get()
        self.L = L = V.get(); t = V.get()
        self.st0, self.st1 = S.get(), S.get(); self.sa = S.get(2); self.sb = S.get(2)
        st0, st1, sa, sb = self.st0, self.st1, self.sa, self.sb
        sV, sC, sR, sG = self.sV, self.sC, self.sR, self.sG
        if self.stamps:
            r = S.get(2); self.stn.append(('start', r)); p(f's_memrealtime {r}')
        p(f'''s_cmp_ge_u32 s2, 256
        s_cbranch_scc1 L_end
        s_load_dwordx16 s[4:19], s[0:1], 0
        s_load_dwordx8 s[20:27], s[0:1], 64
        s_load_dwordx2 s[28:29], s[0:1], 96
        s_load_dwordx2 s[30:31], s[0:1], 112
        v_lshrrev_b32 {t}, 6, v0
        v_and_b32 {L}, 63, v0
        v_readfirstlane_b32 {sV}, {t}
        s_and_b32 {sC}, s2, 7
        s_lshl_b32 {sC}, {sC}, 5
        s_lshr_b32 {st0}, s2, 3
        s_add_u32 {sC}, {sC}, {st0}
        s_lshr_b32 {sR}, {sC}, 6
        s_and_b32 {sG}, {sC}, 63''')
        self.L16 = V.get()
        self.L15 = V.get(); self.GK = V.get()
        p(f'v_lshlrev_b32 {self.L16}, 4, {L}\nv_and_b32 {self.L15}, 15, {L}\nv_lshrrev_b32 {self.GK}, 4, {L}')
        p(f'''s_lshl_b32 {st0}, {sV}, 8
        s_add_u32 {st0}, {st0}, {sC}
        s_lshl_b32 {st0}, {st0}, 12
        s_mul_i32 {st1}, {sV}, {PL}
        s_mov_b32 m0, {st1}
        s_waitcnt lgkmcnt(0)''')
        self.stamp('karg')
        self.addr64(sa, self.x, st0)
        self.sE = S.get(); self.sLD = S.get(); self.sDS = S.get()
        self.vm(f'global_load_lds_dwordx4 {self.L16}, {sa}', 'x')
        self.vm(f'global_load_lds_dwordx4 {self.L16}, {sa} offset:1024', 'x')
        p(f's_add_u32 m0, {st1}, 128')
        self.addr64(sb, self.ws, EOFF)
        self.vm(f'global_load_lds_dwordx4 {self.L16}, {sa} offset:2048', 'x')
        self.vm(f'global_load_lds_dwordx4 {self.L16}, {sa} offset:3072', 'x')
        p(f's_load_dword {self.sE}, {sb}, 0')
        self.sD = S.get(); self.PR = V.get(6)
        p(f'''s_lshl_b32 {self.sD}, {sC}, 2
        s_add_u32 {self.sD}, {self.sD}, {sV}
        s_lshl_b32 {st0}, {self.sD}, 8
        v_lshl_add_u32 {t}, {L}, 2, {st0}
        s_lshr_b32 {st1}, {self.sD}, 1
        s_lshl_b32 {st1}, {st1}, 2
        s_load_dword {self.sLD}, {self.ldt}, {st1}
        s_load_dword {self.sDS}, {self.dsk}, {st1}''')
        for i in range(6): self.vm(f'global_load_dword {self.PR[i]}, {t}, {self.par[i]}', 'par')
        if not self.o.get('nopf'):
            self.PF = V.get()
            p(f's_getpc_b64 {sa}\nv_lshlrev_b32 {t}, 7, v0\nv_min_u32 {t}, L_codeend-.-128, {t}')
            self.vm(f'global_load_dword {self.PF}, {t}, {sa}', 'pf')
        V.put(t)
    def loads_u(self):
        p, V, S = self.P, self.V, self.S; L = self.L; sa, st0, st1, sC, sV = self.sa, self.st0, self.st1, self.sC, self.sV
        t, t2 = V.get(), V.get()
        p(f'''v_lshrrev_b32 {t}, 3, {L}
        v_and_b32 {t2}, 7, {L}
        v_lshlrev_b32 {t2}, 4, {t2}
        v_lshl_add_u32 {t}, {t}, 11, {t2}
        s_and_b32 {st0}, {sC}, 15
        s_lshl_b32 {st0}, {st0}, 2
        s_add_u32 {st0}, {st0}, {sV}
        s_lshl_b32 {st0}, {st0}, 16
        s_lshr_b32 {st1}, {sC}, 4
        s_lshl_b32 {st1}, {st1}, 7
        s_add_u32 {st0}, {st0}, {st1}''')
        self.addr64(sa, self.u, st0)
        p(f's_lshl_b32 {st1}, {sV}, 12\ns_add_u32 {st1}, {st1}, {US}')
        for i in range(4):
            p(f's_add_u32 m0, {st1}, {1024*i}')
            if i: self.addr64(sa, sa, 16384)
            self.vm(f'global_load_lds_dwordx4 {t}, {sa}', 'u')
        V.put(t, t2)
    def loads_wx(self):
        p, V, S = self.P, self.V, self.S; L = self.L; st0 = self.st0
        self.WXV = V.get(); t, t2, t3 = V.get(), V.get(), V.get()
        p(f'''v_bfe_u32 {t}, {L}, 2, 1
        v_lshl_add_u32 {t}, {t}, 10, {self.GK}
        s_lshl_b32 {st0}, {self.sC}, 2
        v_add_u32 {t}, {st0}, {t}
        v_sub_u32 {t2}, 0x800, {t}
        v_and_b32 {t2}, 0x7ff, {t2}
        v_and_b32 {t3}, 1, {L}
        v_cmp_eq_u32 vcc, 1, {t3}
        v_bfe_u32 {t3}, {L}, 3, 1
        v_cndmask_b32 {t}, {t}, {t2}, vcc
        v_mul_u32_u24 {t}, 1026, {t}
        v_lshl_add_u32 {t}, {t3}, 10, {t}
        s_mov_b32 exec_lo, 0x33333333
        s_mov_b32 exec_hi, 0x33333333''')
        self.vm(f'global_load_ushort {self.WXV}, {t}, {self.wr}', 'wx')
        p('s_not_b64 exec, exec')
        self.vm(f'global_load_ushort {self.WXV}, {t}, {self.wi} ; nocheck', 'wx')
        p('s_mov_b64 exec, -1')
        V.put(t, t2, t3)
    def loads_w(self):
        p, V, S = self.P, self.V, self.S; L = self.L; sa, st0, st1, sV = self.sa, self.st0, self.st1, self.sV
        self.WL = V.get(16); t = V.get()
        p(f'''v_lshl_add_u32 {t}, {self.GK}, 6, {self.L15}
        v_mul_u32_u24 {t}, {4*1026}, {t}
        s_bitcmp1_b32 {sV}, 0
        s_cselect_b32 {sa[0]}, {self.wi[0]}, {self.wr[0]}
        s_cselect_b32 {sa[1]}, {self.wi[1]}, {self.wr[1]}
        s_lshr_b32 {st0}, {sV}, 1
        s_lshl_b32 {st0}, {st0}, 10
        s_add_u32 {st0}, {st0}, {self.sR}
        s_mul_i32 {st0}, {st0}, 1026
        s_lshl_b32 {st1}, {self.sG}, 4
        s_add_u32 {st0}, {st0}, {st1}''')
        self.addr64(sa, sa, st0)
        for i in range(4):
            if i: self.addr64(sa, sa, 64*1026)
            self.vm(f'global_load_dwordx4 {self.WL[4*i:4*i+4]}, {t}, {sa}', 'W')
        V.put(t)

    def consts1(self):
        p, V, A, S, L = self.P, self.V, self.A, self.S, self.L
        self.CFr, self.CFi = A.get(16), A.get(16)
        self.TWc, self.TWs = V.get(16), V.get(16)
        k, b, an, c, s, d = V.get(), V.get(), V.get(), V.get(), V.get(), V.get()
        self.PI = V.get()
        self.H = V.get()
        p(f'''v_and_b32 {k}, 0x13, {L}
        v_bfe_u32 {b}, {L}, 2, 1
        v_lshl_or_b32 {k}, {b}, 3, {k}
        v_bfe_u32 {b}, {L}, 3, 1
        v_lshl_or_b32 {self.PI}, {b}, 2, {k}
        v_lshrrev_b32 {self.H}, 5, {L}
        v_cvt_f32_u32 {k}, {self.PI}
        v_cvt_f32_u32 {b}, {self.H}
        v_mul_f32 {k}, {fl(1/32)}, {k}
        v_mul_f32 {b}, {b}, {k}
        v_mul_f32 {b}, 4.0, {b}''')
        sgn = V.get(); d2 = V.get()
        p(f'v_and_b32 {sgn}, 1, {L}\nv_mul_u32_u24 {sgn}, 0x8000, {sgn}\nv_lshl_or_b32 {sgn}, {sgn}, 16, {sgn}')
        for f in range(2):
            for jj in range(4):
                i = 4*f + jj
                p(f'''v_fmamk_f32 {an}, {k}, {fl(8*f+jj)}, {b}
                v_cos_f32 {c}, {an}
                v_sin_f32 {s}, {an}
                v_mul_f32 {an}, {fl(1/32)}, {an}
                v_cvt_pk_bf16_f32 {d}, {c}, {s}
                v_cos_f32 {self.TWc[i]}, {an}
                v_cvt_pk_bf16_f32 {d2}, -{s}, {c}
                v_sin_f32 {self.TWs[i]}, {an}
                v_fmac_f32 {an}, 0.5, {k}
                v_accvgpr_write_b32 {self.CFr[i]}, {d}
                v_accvgpr_write_b32 {self.CFi[i]}, {d2}
                v_cos_f32 {self.TWc[8+i]}, {an}
                v_xor_b32 {d}, {sgn}, {d}
                v_xor_b32 {d2}, {sgn}, {d2}
                v_sin_f32 {self.TWs[8+i]}, {an}
                v_accvgpr_write_b32 {self.CFr[8+i]}, {d}
                v_accvgpr_write_b32 {self.CFi[8+i]}, {d2}''')
        V.put(sgn, d2)
        self.R4a, self.R4b = A.get(4), A.get(4)
        m1, m2 = S.get(2), S.get(2)
        sg = V.get()
        p(f'''v_bfe_u32 {k}, {L}, 2, 2
        v_cvt_f32_u32 {k}, {k}
        v_mul_f32 {k}, {fl(1/1024)}, {k}
        v_cvt_f32_u32 {b}, {self.sC}
        v_mul_f32 {b}, {b}, {k}
        v_and_b32 {c}, 1, {L}
        v_cvt_f32_u32 {c}, {c}
        v_fmamk_f32 {b}, {c}, {fl(0.25)}, {b}
        v_lshlrev_b32 {sg}, 30, {L}
        v_and_b32 {sg}, 0x80000000, {sg}
        v_and_b32 {c}, 2, {L}
        v_lshrrev_b32 {s}, 4, {L}
        v_cmp_eq_u32 {m1}, {c}, {s}
        v_add_u32 {c}, 1, {c}
        v_cmp_eq_u32 {m2}, {c}, {s}''')
        for m in range(4):
            p(f'''v_fmamk_f32 {an}, {k}, {fl(256*m)}, {b}
            v_cos_f32 {c}, {an}
            v_sin_f32 {s}, {an}
            v_xor_b32 {s}, {sg}, {s}
            v_cvt_pk_bf16_f32 {d}, {c}, {s}
            v_cndmask_b32 {c}, 0, {d}, {m1}
            v_cndmask_b32 {s}, 0, {d}, {m2}
            v_accvgpr_write_b32 {self.R4a[m]}, {c}
            v_accvgpr_write_b32 {self.R4b[m]}, {s}''')
        S.put(m1, m2); V.put(sg)
        self.aXR = V.get(); self.aZW = V.get(); self.aZR = V.get(4); self.aC = V.get(); self.aZX = V.get()
        st0 = self.st0
        p(f'''s_mul_i32 {st0}, {self.sV}, {PL}
        v_bfe_u32 {k}, {L}, 2, 1
        v_mul_u32_u24 {k}, 2176, {k}
        v_bfe_u32 {b}, {L}, 3, 1
        v_lshl_add_u32 {b}, {self.H}, 2, {b}
        v_lshl_add_u32 {k}, {b}, 6, {k}
        v_bfe_u32 {b}, {L}, 4, 1
        v_lshl_add_u32 {k}, {b}, 5, {k}
        v_and_b32 {b}, 3, {L}
        v_lshl_add_u32 {k}, {b}, 3, {k}
        v_add_u32 {self.aXR}, {st0}, {k}
        v_and_b32 {k}, 31, {L}
        v_mul_u32_u24 {k}, 144, {k}
        v_lshl_add_u32 {k}, {self.H}, 5, {k}
        v_add_u32 {self.aZW}, {st0}, {k}
        v_and_b32 {k}, 15, {L}
        v_lshlrev_b32 {k}, 1, {k}
        v_bfe_u32 {b}, {L}, 4, 1
        v_add_u32 {k}, {k}, {b}
        s_lshl_b32 {st0}, {self.sV}, 7
        v_add_u32 {k}, {st0}, {k}
        v_cmp_lt_u32 vcc, 31, {L}''')
        def zaddr(dst, q):
            p(f'''v_lshrrev_b32 {c}, 5, {q}
            v_and_b32 {s}, 0x13, {c}
            v_bfe_u32 {d}, {c}, 2, 1
            v_lshl_or_b32 {s}, {d}, 3, {s}
            v_bfe_u32 {d}, {c}, 3, 1
            v_lshl_or_b32 {s}, {d}, 2, {s}
            v_mul_u32_u24 {s}, 144, {s}
            v_and_b32 {c}, 31, {q}
            v_lshl_add_u32 {dst}, {c}, 2, {s}''')
        m1 = S.get(2)
        for t in range(4):
            p(f'''v_add_u32 {b}, {32*t}, {k}
            v_sub_u32 {an}, 0x400, {b}''')
            if t == 0:
                p(f'''v_cmp_eq_u32 {m1}, 0, {b}
                v_mov_b32 {c}, 0x200
                v_cndmask_b32 {an}, {an}, {c}, {m1}''')
            p(f'v_cndmask_b32 {b}, {b}, {an}, vcc')
            zaddr(self.aZR[t], b)
        S.put(m1)
        p(f'''v_mov_b32 {c}, {16*144}
        v_cndmask_b32 {self.aZX}, {c}, 0, vcc
        v_lshrrev_b32 {k}, 4, {L}
        v_bfe_u32 {b}, {L}, 2, 2
        v_lshl_add_u32 {k}, {k}, 6, {b}
        v_and_b32 {b}, 3, {L}
        v_lshlrev_b32 {b}, 4, {b}
        v_lshl_add_u32 {self.aC}, {k}, 14, {b}''')
        V.put(k, b, an, c, s, d)
        self.TG = S.get(4); self.sN = S.get(); self.MK = V.get()
        st0, st1, sE = self.st0, self.st1, self.sE
        p(f'''v_mov_b32 {self.MK}, 0xfffefffe
        s_waitcnt lgkmcnt(0)
        s_not_b32 {self.sN}, {sE}
        s_mul_i32 {st0}, {sE}, 0x9e3779b1
        s_lshr_b32 {st1}, {st0}, 15
        s_and_b32 {self.TG[1]}, {st1}, 0x10001
        s_lshr_b32 {st1}, {st0}, 14
        s_and_b32 {self.TG[2]}, {st1}, 0x10001
        s_lshr_b32 {st1}, {st0}, 13
        s_and_b32 {self.TG[3]}, {st1}, 0x10001
        s_lshr_b32 {st1}, {st0}, 12
        s_and_b32 {st1}, {st1}, 0x10000
        s_and_b32 {self.TG[0]}, {self.sN}, 1
        s_or_b32 {self.TG[0]}, {self.TG[0]}, {st1}''')

    def fft1024(self, FA, Dr, Di, waits):
        p, V = self.P, self.V
        for f in range(4):
            p(f's_waitcnt lgkmcnt({waits[f]})')
            p(f'v_mfma_f32_32x32x16_bf16 {Dr}, {FA[4*f:4*f+4]}, {self.CFr[4*f:4*f+4]}, {Dr if f else 0}')
            p(f'v_mfma_f32_32x32x16_bf16 {Di}, {FA[4*f:4*f+4]}, {self.CFi[4*f:4*f+4]}, {Di if f else 0}')
        self.twiddle(Dr, Di, self.TWc, self.TWs, FA)
        for f in range(4):
            p(f'v_mfma_f32_32x32x16_bf16 {Dr}, {FA[4*f:4*f+4]}, {self.CFr[4*f:4*f+4]}, {Dr if f else 0}')
            p(f'v_mfma_f32_32x32x16_bf16 {Di}, {FA[4*f:4*f+4]}, {self.CFi[4*f:4*f+4]}, {Di if f else 0}')
    def twiddle(self, Dr, Di, Tc, Ts, F):
        p, V = self.P, self.V
        T = V.get(8)
        n = Dr.n//2
        for k0 in range(0, n, 2):
            ks = (k0, k0+1)
            tt = {k: (T[4*(k-k0):4*(k-k0)+2], T[4*(k-k0)+2:4*(k-k0)+4]) for k in ks}
            s2 = lambda R, k: R[(2*k) % R.n:(2*k) % R.n+2]
            for k in ks: p(f'v_pk_mul_f32 {tt[k][0]}, {s2(Dr,k)}, {s2(Tc,k)}\nv_pk_mul_f32 {tt[k][1]}, {s2(Di,k)}, {s2(Tc,k)}')
            for k in ks: p(f'v_pk_fma_f32 {tt[k][0]}, {s2(Di,k)}, {s2(Ts,k)}, {tt[k][0]}\nv_pk_fma_f32 {tt[k][1]}, {s2(Dr,k)}, {s2(Ts,k)}, {tt[k][1]} neg_lo:[1,0,0] neg_hi:[1,0,0]')
            for k in ks:
                for e in range(2): p(f'v_cvt_pk_bf16_f32 {F[2*k+e]}, {tt[k][0][e]}, {tt[k][1][e]}')
        V.put(T)
    def fft256(self, F, Dr, Di, waits=None):
        p = self.P; n = F.n//4
        q = lambda R, s: R[4*s:4*s+4]
        for s in range(n):
            if waits: p(f's_waitcnt lgkmcnt({waits[s]})')
            p(f'v_mfma_f32_16x16x32_bf16 {q(Dr,s)}, {q(F,s)}, {self.C16r}, 0\nv_mfma_f32_16x16x32_bf16 {q(Di,s)}, {q(F,s)}, {self.C16i}, 0')
        self.twiddle(Dr, Di, self.T16c, self.T16s, F)
        for s in range(n):
            p(f'v_mfma_f32_16x16x32_bf16 {q(Dr,s)}, {self.C16r}, {q(F,s)}, 0\nv_mfma_f32_16x16x32_bf16 {q(Di,s)}, {self.C16i}, {q(F,s)}, 0')
    def tag4(self, R):
        for d in range(4): self.p(f'v_bfi_b32 {R[d]}, {self.MK}, {R[d]}, {self.TG[d]}')
    def check16(self, R, acc, t):
        p = self.P
        for d in range(4):
            p(f'v_bitop3_b32 {t[0]}, {R[d]}, {R[4+d]}, {self.TG[d]} bitop3:0x7e')
            p(f'v_bitop3_b32 {t[1]}, {R[8+d]}, {R[12+d]}, {self.TG[d]} bitop3:0x7e')
            p(f'v_or3_b32 {acc}, {t[0]}, {t[1]}, {acc if d else 0}')
        p(f'v_and_b32 {acc}, 0x10001, {acc}\nv_cmp_ne_u32 vcc, 0, {acc}')
    def poll(self, issue, check, first_wait, post=None):
        ok, re_, lp = self.label('ok'), self.label('re'), self.label('lp')
        cnt = self.st1; outer = self.p
        self.p(f's_waitcnt vmcnt({first_wait})')
        check()
        self.p(f's_cbranch_vccnz {re_}\n{ok}:')
        self.begin_ool(re_)
        self.p(f's_movk_i32 {cnt}, {SPIN_MAX}\n{lp}:\ns_sleep 4')
        issue()
        self.p('s_waitcnt vmcnt(0)')
        check()
        self.p(f's_cbranch_vccz {ok}\ns_sub_u32 {cnt}, {cnt}, 1\ns_cmp_lg_u32 {cnt}, 0\ns_cbranch_scc1 {lp}\ns_branch {ok}')
        self.p = outer

    def phase1(self):
        p, V, S = self.P, self.V, self.S
        FA, Dr, Di = V.get(16), V.get(16), V.get(16)
        self.wait_vm('x')
        self.stamp('xland')
        for f in range(4):
            for t in range(2): p(f'ds_read_b64_tr_b16 {FA[4*f+2*t:4*f+2*t+2]}, {self.aXR} offset:{512*f+128*t}')
        self.fft1024(FA, Dr, Di, (6, 4, 2, 0))
        for g in range(4):
            for jj in range(4): p(f'v_cvt_pk_bf16_f32 {FA[4*g+jj]}, {Dr[4*g+jj]}, {Di[4*g+jj]}')
            p(f'ds_write_b128 {self.aZW}, {FA[4*g:4*g+4]} offset:{64*(g>>1)+16*(g&1)}')
        sa, st0, st1 = self.sa, self.st0, self.st1
        p(f'''s_lshl_b32 {st0}, {self.sV}, 18
        s_lshl_b32 {st1}, {self.sC}, 6
        s_add_u32 {st0}, {st0}, {st1}''')
        self.addr64(sa, self.ws, st0)
        p('s_waitcnt lgkmcnt(0)\ns_barrier')
        for t in range(4):
            p(f'ds_read2st64_b32 {FA[4*t:4*t+2]}, {self.aZR[t]} offset0:0 offset1:18\nds_read2st64_b32 {FA[4*t+2:4*t+4]}, {self.aZR[t]} offset0:36 offset1:54')
        for t in range(4):
            p(f's_waitcnt lgkmcnt({6-2*t})')
            p(f'v_mfma_f32_16x16x32_bf16 {Dr[4*t:4*t+4]}, {self.R4a}, {FA[4*t:4*t+4]}, 0\nv_mfma_f32_16x16x32_bf16 {Di[4*t:4*t+4]}, {self.R4b}, {FA[4*t:4*t+4]}, 0')
        for t in range(4):
            o = FA[4*t:4*t+4]
            p(f'''v_cvt_pk_bf16_f32 {o[0]}, {Dr[4*t]}, {Dr[4*t+1]}
            v_cvt_pk_bf16_f32 {o[1]}, {Dr[4*t+2]}, {Dr[4*t+3]}
            v_cvt_pk_bf16_f32 {o[2]}, {Di[4*t]}, {Di[4*t+1]}
            v_cvt_pk_bf16_f32 {o[3]}, {Di[4*t+2]}, {Di[4*t+3]}''')
            self.tag4(o)
            if t: self.addr64(sa, sa, 4*16384)
            self.vm(f'global_store_dwordx4 {self.aC}, {o}, {sa} sc1', 't1st')
        self.stamp('t1st')
        l0, l1 = self.label('x0'), self.label('x1')
        t = Dr
        p(f'''s_cmp_lg_u32 {self.sV}, 0
        s_cbranch_scc1 {l0}
        ds_read2st64_b32 {t[0:2]}, {self.aZX} offset0:0 offset1:18
        ds_read2st64_b32 {t[2:4]}, {self.aZX} offset0:36 offset1:54
        v_lshrrev_b32 {t[8]}, 4, {self.L}
        v_lshlrev_b32 {t[8]}, 12, {t[8]}
        s_lshl_b32 {st0}, {self.sC}, 4
        s_add_u32 {st0}, {st0}, {T1X}''')
        self.addr64(sa, self.ws, st0)
        p(f'''s_waitcnt lgkmcnt(0)
        v_mfma_f32_16x16x32_bf16 {t[4:8]}, {self.R4a}, {t[0:4]}, 0
        v_cvt_pk_bf16_f32 {t[0]}, {t[4]}, {t[5]}
        v_cvt_pk_bf16_f32 {t[2]}, {t[6]}, {t[7]}
        v_mov_b32 {t[1]}, {self.sN}
        v_mov_b32 {t[3]}, {self.sN}
        s_mov_b32 exec_lo, 0x00010001
        s_mov_b32 exec_hi, 0x00010001
        global_store_dwordx4 {t[8]}, {t[0:4]}, {sa} sc1
        s_mov_b64 exec, -1
        s_branch {l1}
        {l0}:
        s_waitcnt vmcnt({self.after('wx')})
        v_lshlrev_b32 {t[10]}, 16, {self.WXV}
        v_and_b32 {t[11]}, 3, {self.L}
        v_cmp_eq_u32 vcc, 3, {t[11]}
        v_cndmask_b32 {t[10]}, {t[10]}, -{t[10]}, vcc
        v_add_f32_dpp {t[11]}, {t[10]}, {t[10]} quad_perm:[1,0,3,2] row_mask:0xf bank_mask:0xf
        v_mul_f32 {t[11]}, 0.5, {t[11]}
        v_mov_b32_dpp {t[10]}, {t[11]} quad_perm:[2,3,0,1] row_mask:0xf bank_mask:0xf
        v_cvt_pk_bf16_f32 {t[10]}, {t[11]}, {t[10]}
        v_and_b32 {t[12]}, 1, {self.L}
        v_cmp_eq_u32 vcc, 1, {t[12]}
        v_mov_b32 {t[11]}, {self.sN}
        v_cndmask_b32 {t[10]}, {t[10]}, {t[11]}, vcc
        v_bfe_u32 {t[11]}, {self.L}, 2, 2
        v_lshlrev_b32 {t[11]}, 3, {t[11]}
        v_lshl_add_u32 {t[11]}, {t[12]}, 2, {t[11]}
        v_lshrrev_b32 {t[12]}, 4, {self.L}
        v_lshl_add_u32 {t[11]}, {t[12]}, 13, {t[11]}
        s_lshl_b32 {st0}, {self.sC}, 5
        s_add_u32 {st0}, {st0}, {WX}''')
        self.addr64(sa, self.ws, st0)
        p(f'''s_mov_b32 exec_lo, 0x33333333
        s_mov_b32 exec_hi, 0x33333333
        global_store_dword {t[11]}, {t[10]}, {sa} sc1
        s_mov_b64 exec, -1
        {l1}:''')
        self.vmlog.append('extra')
        V.put(FA, Dr, Di, self.aXR, self.aZW, self.aZR, self.aZX, self.WXV)
        self.A.put(self.R4a, self.R4b)

    def wstage(self):
        p, V = self.P, self.V
        a = V.get()
        p(f's_lshl_b32 {self.st0}, {self.sV}, 10\ns_add_u32 {self.st0}, {self.st0}, {WS}\nv_add_u32 {a}, {self.st0}, {self.L16}')
        for rho in range(4):
            for s in range(4): p(f'ds_write_b32 {a}, {self.WL[4*rho+s]} offset:{4096*s+4*rho}')
        p('s_waitcnt lgkmcnt(0)\ns_barrier')
        V.put(a)
    def consts2(self):
        p, V, A, L = self.P, self.V, self.A, self.L
        self.C16r, self.C16i = A.get(4), A.get(4)
        self.T16c, self.T16s, self.Cm, self.Sm = V.get(4), V.get(4), V.get(4), V.get(4)
        k, b, an, c, s, d = V.get(), V.get(), V.get(), V.get(), V.get(), V.get()
        p(f'''v_cvt_f32_u32 {k}, {self.L15}
        v_cvt_f32_u32 {b}, {self.GK}
        v_mul_f32 {k}, {fl(1/16)}, {k}
        v_mul_f32 {d}, {b}, {k}
        v_mul_f32 {d}, 4.0, {d}''')
        e = V.get()
        for jj in range(4):
            p(f'''v_fmamk_f32 {an}, {k}, {fl(jj)}, {d}
            v_cos_f32 {c}, {an}
            v_sin_f32 {s}, {an}
            v_mul_f32 {an}, {fl(1/16)}, {an}
            v_cvt_pk_bf16_f32 {e}, {c}, {s}
            v_cos_f32 {self.T16c[jj]}, {an}
            v_accvgpr_write_b32 {self.C16r[jj]}, {e}
            v_cvt_pk_bf16_f32 {e}, -{s}, {c}
            v_sin_f32 {self.T16s[jj]}, {an}
            v_accvgpr_write_b32 {self.C16i[jj]}, {e}''')
        p(f'''v_lshlrev_b32 {c}, 8, {self.GK}
        v_lshl_add_u32 {c}, {self.L15}, 2, {c}
        v_add_u32 {c}, {self.sR}, {c}
        v_cvt_f32_u32 {c}, {c}
        v_mul_f32 {c}, {fl(1/2048)}, {c}''')
        for rho in range(4):
            p(f'''v_add_f32 {an}, {fl(rho/32)}, {c}
            v_sin_f32 {self.Cm[rho]}, {an}
            v_cos_f32 {self.Sm[rho]}, {an}''')
        self.aXW, self.aXI, self.aEW, self.aT2s = V.get(), V.get(), V.get(), V.get()
        p(f'''v_and_b32 {an}, 3, {L}
        v_mul_u32_u24 {c}, {XS1}, {an}
        v_lshrrev_b32 {s}, 2, {L}
        v_lshl_add_u32 {c}, {s}, 6, {c}
        v_and_b32 {d}, 1, {self.GK}
        v_lshlrev_b32 {d}, 1, {d}
        v_xor_b32 {d}, {self.sV}, {d}
        v_lshl_add_u32 {self.aXW}, {d}, 4, {c}
        v_and_b32 {d}, 1, {s}
        v_lshlrev_b32 {d}, 1, {d}
        v_xor_b32 {d}, {self.GK}, {d}
        v_lshlrev_b32 {d}, 4, {d}
        v_lshl_add_u32 {d}, {self.L15}, 6, {d}
        s_mul_i32 {self.st0}, {self.sV}, {XS1}
        v_add_u32 {self.aXI}, {self.st0}, {d}
        v_lshrrev_b32 {c}, 3, {L}
        v_sub_u32 {c}, {L}, {c}
        v_and_b32 {c}, 3, {c}
        v_lshlrev_b32 {c}, 4, {c}
        v_lshl_add_u32 {self.aT2s}, {s}, 14, {c}
        v_lshlrev_b32 {c}, 12, {self.GK}
        v_lshl_add_u32 {c}, {self.L15}, 6, {c}
        v_bfe_u32 {s}, {L}, 1, 3
        v_add_u32 {s}, {self.sV}, {s}
        v_and_b32 {s}, 3, {s}
        v_lshl_add_u32 {self.aEW}, {s}, 4, {c}''')
        V.put(k, b, an, c, s, d, e)
    def mcalc(self, M, W0r, W0i, W1r, W1i):
        p = self.P
        for h in range(2):
            s2 = lambda R: R[2*h:2*h+2]
            for (a, b, pp, mm, nn) in ((W0r, W1r, M[0], M[2], M[4]), (W0i, W1i, M[1], M[3], M[5])):
                p(f'''v_pk_add_f32 {s2(nn)}, {s2(a)}, {s2(b)} neg_lo:[0,1] neg_hi:[0,1]
                v_pk_add_f32 {s2(a)}, {s2(a)}, {s2(b)}
                v_pk_fma_f32 {s2(pp)}, {s2(self.Cm)}, {s2(nn)}, {s2(a)} neg_lo:[1,0,0] neg_hi:[1,0,0]
                v_pk_fma_f32 {s2(mm)}, {s2(self.Cm)}, {s2(nn)}, {s2(a)}
                v_pk_mul_f32 {s2(nn)}, {s2(self.Sm)}, {s2(nn)}''')
    def mpre(self):
        p, V, S = self.P, self.V, self.S
        a = V.get(); R = self.WL
        p(f's_lshl_b32 {self.st0}, {self.sV}, 12\ns_add_u32 {self.st0}, {self.st0}, {WS}\nv_add_u32 {a}, {self.st0}, {self.L16}')
        for ah in range(4): p(f'ds_read_b128 {R[4*ah:4*ah+4]}, {a} offset:{1024*ah}')
        self.M = [[V.get(4) for _ in range(6)] for _ in range(2)]
        U = V.get(16)
        p('s_waitcnt lgkmcnt(0)')
        for u in range(2):
            for i in range(16):
                p(f'v_lshlrev_b32 {U[i]}, 16, {R[i]}' if u == 0 else f'v_and_b32 {U[i]}, 0xffff0000, {R[i]}')
            self.mcalc(self.M[u], U[0:4], U[4:8], U[8:12], U[12:16])
        self.N2 = [V.get(4), V.get(4)]
        self.sSP = S.get()
        lb = self.label('nosp')
        X = V.get(32); acc = V.get(); junk = [V.get(4), V.get(4)]
        lsp = self.label('spm')
        p(f'''s_or_b32 {self.sSP}, {self.sG}, {self.sV}
        s_cmp_eq_u32 {self.sSP}, 0
        s_cbranch_scc1 {lsp}
        {lb}:''')
        self.begin_ool(lsp)
        p(f'''s_lshl_b32 {self.st0}, {self.sR}, 13
        s_add_u32 {self.st0}, {self.st0}, {WX}
        v_lshlrev_b32 {a}, 11, {self.GK}
        v_lshl_add_u32 {a}, {self.L15}, 5, {a}''')
        self.addr64(self.sa, self.ws, self.st0)
        def issue():
            for i in range(4):
                for h in range(2): p(f'global_load_dwordx4 {X[8*i+4*h:8*i+4*h+4]}, {a}, {self.sa} offset:{512*i+16*h} sc1')
        def check():
            for i in range(8):
                p(f'v_bitop3_b32 {U[0]}, {X[4*i+1]}, {X[4*i+3]}, {self.sN} bitop3:0x7e')
                p(f'v_or_b32 {acc}, {U[0]}, {acc}' if i else f'v_mov_b32 {acc}, {U[0]}')
            p(f'v_cmp_ne_u32 vcc, 0, {acc}')
        issue(); self.poll(issue, check, 0)
        M0 = self.M[0]
        for col in range(2):
            for half in range(2):
                for i in range(4):
                    src = X[8*i+4*col+2*half]
                    p(f'v_lshlrev_b32 {U[8*half+i]}, 16, {src}\nv_and_b32 {U[8*half+4+i]}, 0xffff0000, {src}')
            MM = [M0[0], M0[1], junk[0], junk[1], M0[4], M0[5]] if col == 0 else [junk[0], junk[1], M0[2], M0[3], self.N2[0], self.N2[1]]
            self.mcalc(MM, U[0:4], U[4:8], U[8:12], U[12:16])
        p(f's_branch {lb}')
        self.end_ool()
        V.put(a, U, X, acc, *junk, self.WL, self.Cm, self.Sm)

    def t1_issue_setup(self):
        S, V = self.S, self.V
        self.sT1 = S.get(2); self.TL = V.get(16)
        self.p(f's_lshl_b32 {self.st0}, {self.sC}, 14\ns_lshl_b32 {self.st1}, {self.sV}, 12\ns_add_u32 {self.st0}, {self.st0}, {self.st1}')
        self.addr64(self.sT1, self.ws, self.st0)
    def t1_issue(self):
        for i in range(4): self.vm(f'global_load_dwordx4 {self.TL[4*i:4*i+4]}, {self.L16}, {self.sT1} offset:{1024*i} sc1', 't1ld')
    def middle(self, M, Pr, Pi, Qr, Qi, Fp, Fm, Pxr=None, Pxi=None, Qxr=None, Qxi=None, N2=None):
        p, V = self.P, self.V
        ppr, ppi, mmr, mmi, nr, ni = M
        n2r, n2i = N2 or (nr, ni)
        Pxr, Pxi, Qxr, Qxi = Pxr or Pr, Pxi or Pi, Qxr or Qr, Qxi or Qi
        T = V.get(8)
        N = ' neg_lo:[1,0,0] neg_hi:[1,0,0]'
        for h in range(2):
            s = lambda R: R[2*h:2*h+2]
            a, b, c, d = T[0:2], T[2:4], T[4:6], T[6:8]
            p(f'''v_pk_mul_f32 {a}, {s(ppr)}, {s(Pr)}
            v_pk_mul_f32 {b}, {s(ppr)}, {s(Pi)}
            v_pk_mul_f32 {c}, {s(mmr)}, {s(Qr)}
            v_pk_mul_f32 {d}, {s(mmr)}, {s(Qi)}
            v_pk_fma_f32 {a}, {s(ppi)}, {s(Pi)}, {a}{N}
            v_pk_fma_f32 {b}, {s(ppi)}, {s(Pr)}, {b}
            v_pk_fma_f32 {c}, {s(mmi)}, {s(Qi)}, {c}{N}
            v_pk_fma_f32 {d}, {s(mmi)}, {s(Qr)}, {d}
            v_pk_fma_f32 {a}, {s(ni)}, {s(Qxr)}, {a}{N}
            v_pk_fma_f32 {b}, {s(nr)}, {s(Qxr)}, {b}
            v_pk_fma_f32 {c}, {s(n2r)}, {s(Pxi)}, {c}
            v_pk_fma_f32 {d}, {s(n2r)}, {s(Pxr)}, {d}{N}
            v_pk_fma_f32 {a}, {s(nr)}, {s(Qxi)}, {a}{N}
            v_pk_fma_f32 {b}, {s(ni)}, {s(Qxi)}, {b}{N}
            v_pk_fma_f32 {c}, {s(n2i)}, {s(Pxr)}, {c}
            v_pk_fma_f32 {d}, {s(n2i)}, {s(Pxi)}, {d}''')
            for e in range(2):
                p(f'v_cvt_pk_bf16_f32 {Fp[2*h+e]}, {b[e]}, {a[e]}\nv_cvt_pk_bf16_f32 {Fm[2*h+e]}, {d[e]}, {c[e]}')
        V.put(T)
    def phase2(self, after_check=None):
        p, V, S = self.P, self.V, self.S
        TL = self.TL; F, Dr, Di = V.get(16), V.get(16), V.get(16)
        acc = V.get(); t = V.get(2)
        self.poll(self.t1_issue, lambda: self.check16(TL, acc, t), self.after('t1ld'))
        self.stamp('t1ok')
        for s in range(4):
            for i in range(4): p(f'v_mov_b32 {F[4*s+i]}, {TL[4*i+s]}')
            p(f'ds_write_b128 {self.aXW}, {F[4*s:4*s+4]} offset:{XI+1024*s}')
        if after_check: after_check()
        p('s_waitcnt lgkmcnt(0)\ns_barrier')
        for s in range(4): p(f'ds_read_b128 {F[4*s:4*s+4]}, {self.aXI} offset:{XI+1024*s}')
        lb, lep = self.label('ep'), self.label('epo')
        p(f's_or_b32 {self.st0}, {self.sC}, {self.sV}\ns_cmp_eq_u32 {self.st0}, 0\ns_cbranch_scc1 {lep}\n{lb}:')
        self.begin_ool(lep)
        p(f'''s_add_u32 {self.st0}, {self.sE}, 1
        v_mov_b32 {t[0]}, {self.st0}
        v_mov_b32 {t[1]}, 0
        s_mov_b64 exec, 1
        global_store_dword {t[1]}, {t[0]}, {self.sb}
        s_mov_b64 exec, -1
        s_waitcnt vmcnt(0)
        s_branch {lb}''')
        self.end_ool()
        q = lambda R, s: R[4*s:4*s+4]
        self.fft256(F, Dr, Di, (3, 2, 1, 0))
        lsp, ldone = self.label('sp'), self.label('spd')
        p(f's_cmp_eq_u32 {self.sSP}, 0\ns_cbranch_scc1 {lsp}')
        self.middle(self.M[0], q(Dr,0), q(Di,0), q(Dr,1), q(Di,1), q(F,0), q(F,1))
        p(f'{ldone}:')
        self.begin_ool(lsp)
        X, FX, Xr, Xi = TL, V.get(8), V.get(8), V.get(8); a = V.get()
        p(f's_lshl_b32 {self.st0}, {self.sR}, 12\ns_add_u32 {self.st0}, {self.st0}, {T1X}\nv_lshlrev_b32 {a}, 10, {self.GK}\nv_lshl_add_u32 {a}, {self.L15}, 4, {a}')
        self.addr64(self.sa, self.ws, self.st0)
        def issue():
            for i in range(4): p(f'global_load_dwordx4 {X[4*i:4*i+4]}, {a}, {self.sa} offset:{256*i} sc1')
        def check():
            for i in range(4):
                p(f'v_bitop3_b32 {t[0]}, {X[4*i+1]}, {X[4*i+3]}, {self.sN} bitop3:0x7e')
                p(f'v_or_b32 {acc}, {t[0]}, {acc}' if i else f'v_mov_b32 {acc}, {t[0]}')
            p(f'v_cmp_ne_u32 vcc, 0, {acc}')
        issue(); self.poll(issue, check, 0)
        for s in range(2):
            for i in range(4): p(f'v_mov_b32 {FX[4*s+i]}, {X[4*i+2*s]}')
        self.fft256(FX, Xr, Xi)
        self.middle(self.M[0], q(Dr,0), q(Di,0), q(Dr,1), q(Di,1), q(F,0), q(F,1), q(Xr,0), q(Xi,0), q(Xr,1), q(Xi,1), self.N2)
        p(f's_branch {ldone}')
        self.end_ool()
        V.put(FX, Xr, Xi, a)
        self.middle(self.M[1], q(Dr,2), q(Di,2), q(Dr,3), q(Di,3), q(F,2), q(F,3))
        self.fft256(F, Dr, Di)
        for rho in range(4):
            o = F[4*rho:4*rho+4]
            for s in range(4): p(f'v_cvt_pk_bf16_f32 {o[s]}, {Di[4*s+rho]}, {Dr[4*s+rho]}')
            self.tag4(o)
            p(f'ds_write_b128 {self.aEW}, {o} offset:{EX+1024*rho}')
        sa, st0, st1 = self.sa, self.st0, self.st1
        p(f'''s_lshl_b32 {st0}, {self.sV}, 12
        s_add_u32 {st0}, {st0}, {EX}
        v_add_u32 {acc}, {st0}, {self.L16}
        s_lshl_b32 {st0}, {self.sV}, 20
        s_lshl_b32 {st1}, {self.sC}, 6
        s_add_u32 {st0}, {st0}, {st1}
        s_add_u32 {st0}, {st0}, {T2}''')
        self.addr64(sa, self.ws, st0)
        p('s_waitcnt lgkmcnt(0)\ns_barrier')
        for i in range(4): p(f'ds_read_b128 {Dr[4*i:4*i+4]}, {acc} offset:{1024*i}')
        for i in range(4):
            if i: self.addr64(sa, sa, 16*16384)
            p(f's_waitcnt lgkmcnt({3-i})')
            self.vm(f'global_store_dwordx4 {self.aT2s}, {Dr[4*i:4*i+4]}, {sa} sc1', 't2st')
        self.stamp('t2st')
        V.put(F, Dr, Di, acc, t, self.aXW, self.aXI, self.aEW, self.aT2s, self.T16c, self.T16s, *self.M[0], *self.M[1], *self.N2)
        self.A.put(self.C16r, self.C16i); S.put(self.sT1)

    def consts3(self):
        p, V, A, S, L = self.P, self.V, self.A, self.S, self.L
        self.R4l, self.R4h = A.get(4), A.get(4)
        k, b, an, c, s, d = V.get(), V.get(), V.get(), V.get(), V.get(), V.get()
        m1, m2 = S.get(2), S.get(2)
        p(f'''v_bfe_u32 {k}, {L}, 3, 1
        v_bfe_u32 {b}, {L}, 1, 1
        v_lshl_add_u32 {k}, {k}, 1, {b}
        v_lshlrev_b32 {k}, 8, {k}
        v_add_u32 {k}, {self.sC}, {k}
        v_cvt_f32_u32 {k}, {k}
        v_mul_f32 {k}, {fl(1/1024)}, {k}
        v_and_b32 {b}, 1, {L}
        v_cvt_f32_u32 {b}, {b}
        v_mul_f32 {b}, {fl(-0.25)}, {b}
        v_bfe_u32 {c}, {L}, 2, 1
        v_cmp_eq_u32 {m1}, {c}, {self.GK}
        v_add_u32 {c}, 2, {c}
        v_cmp_eq_u32 {m2}, {c}, {self.GK}''')
        for r in range(4):
            p(f'''v_fmamk_f32 {an}, {k}, {fl(r)}, {b}
            v_cos_f32 {c}, {an}
            v_sin_f32 {s}, {an}
            v_mul_f32 {c}, {fl(2.0**-21)}, {c}
            v_mul_f32 {s}, {fl(-2.0**-21)}, {s}
            v_cvt_pk_bf16_f32 {d}, {c}, {s}
            v_cndmask_b32 {c}, 0, {d}, {m1}
            v_cndmask_b32 {s}, 0, {d}, {m2}
            v_accvgpr_write_b32 {self.R4l[r]}, {c}
            v_accvgpr_write_b32 {self.R4h[r]}, {s}''')
        S.put(m1, m2)
        self.aVW = V.get(4); self.aVR = V.get(4); self.aO = V.get()
        def vaddr(dst, q):
            p(f'''v_and_b32 {c}, 31, {q}
            v_lshrrev_b32 {s}, 5, {q}
            v_bfe_u32 {d}, {q}, 1, 3
            v_lshlrev_b32 {d}, 2, {d}
            v_xor_b32 {s}, {s}, {d}
            v_lshlrev_b32 {s}, 2, {s}
            v_lshl_add_u32 {s}, {c}, 7, {s}
            v_add_u32 {dst}, {s}, {b}''')
        m1 = S.get(2)
        p(f'''v_and_b32 {k}, 1, {self.GK}
        v_lshlrev_b32 {k}, 5, {k}
        v_lshl_add_u32 {k}, {self.L15}, 1, {k}
        s_lshl_b32 {self.st0}, {self.sV}, 7
        v_add_u32 {k}, {self.st0}, {k}
        v_lshlrev_b32 {b}, 13, {self.H}''')
        vaddr(self.aVW[0], k)
        p(f'v_sub_u32 {an}, {1024-1-64}, {k}'); vaddr(self.aVW[1], an)
        p(f'v_sub_u32 {an}, {1024-64}, {k}'); vaddr(self.aVW[3], an)
        p(f'''v_sub_u32 {an}, 0x400, {k}
        v_cmp_eq_u32 {m1}, 0, {k}
        v_mov_b32 {c}, 0x200
        v_cndmask_b32 {an}, {an}, {c}, {m1}''')
        vaddr(self.aVW[2], an)
        S.put(m1)
        p(f'''v_and_b32 {k}, 31, {L}
        v_bfe_u32 {c}, {L}, 1, 3
        v_xor_b32 {c}, {c}, {self.H}
        v_lshlrev_b32 {c}, 4, {c}
        v_lshl_add_u32 {k}, {k}, 7, {c}
        s_lshl_b32 {self.st0}, {self.sV}, 12
        v_add_u32 {self.aVR[0]}, {self.st0}, {k}''')
        for f in range(1, 4): p(f'v_xor_b32 {self.aVR[f]}, {32*f}, {self.aVR[0]}')
        p(f'v_lshlrev_b32 {k}, 4, {self.H}\nv_lshl_add_u32 {self.aO}, {self.PI}, 6, {k}')
        V.put(k, b, an, c, s, d)
        self.sT2 = [S.get(2), S.get(2)]
        p(f's_lshl_b32 {self.st0}, {self.sC}, 14\ns_lshl_b32 {self.st1}, {self.sV}, 10\ns_add_u32 {self.st0}, {self.st0}, {self.st1}\ns_add_u32 {self.st0}, {self.st0}, {T2+4096}')
        self.addr64(self.sT2[0], self.ws, self.st0)
        self.addr64(self.sT2[1], self.sT2[0], 8192)
    def t2_issue(self):
        for r in range(4): self.vm(f'global_load_dwordx4 {self.TL[4*r:4*r+4]}, {self.L16}, {self.sT2[r>>1]} offset:{-4096*(1-(r&1))} sc1', 't2ld')
    def phase3(self):
        p, V, S = self.P, self.V, self.S
        TL = self.TL; F, Dr, Di = V.get(16), V.get(16), V.get(16)
        acc = V.get(); t = V.get(2)
        self.poll(self.t2_issue, lambda: self.check16(TL, acc, t), self.after('t2ld'))
        self.stamp('t2ok')
        for s in range(4):
            for i in range(4): p(f'v_mov_b32 {F[4*s+i]}, {TL[4*i+s]}')
        for s in range(4):
            p(f'v_mfma_f32_16x16x32_bf16 {Dr[4*s:4*s+4]}, {self.R4l}, {F[4*s:4*s+4]}, 0\nv_mfma_f32_16x16x32_bf16 {Di[4*s:4*s+4]}, {self.R4h}, {F[4*s:4*s+4]}, 0')
        for s in range(4):
            e, up = s >> 1, s & 1
            for hi, D in ((0, Dr), (1, Di)):
                for ml in range(2):
                    o = TL[4*s+2*hi+ml]
                    p(f'v_cvt_pk_bf16_f32 {o}, {"-" if up else ""}{D[4*s+2*ml+1]}, {D[4*s+2*ml]}')
                    if not up: a, off = self.aVW[0], 128*e + 8*hi
                    elif e: a, off = self.aVW[1], 8*(1-hi)
                    else: a, off = self.aVW[2+hi], 0
                    p(f'ds_write_b32 {a}, {o} offset:{off + 4096*ml}')
        sa, st0 = self.sa, self.st0
        p(f's_lshl_b32 {st0}, {self.sV}, 8\ns_add_u32 {st0}, {st0}, {self.sC}\ns_lshl_b32 {st0}, {st0}, 13\ns_add_u32 {st0}, {st0}, 4096')
        self.addr64(sa, self.out, st0)
        p('s_waitcnt lgkmcnt(0)\ns_barrier')
        for f in range(4): p(f'ds_read_b128 {F[4*f:4*f+4]}, {self.aVR[f]}')
        self.fft1024(F, Dr, Di, (3, 2, 1, 0))
        for row, D in ((0, Di), (1, Dr)):
            for hf in range(2):
                o = F[8*row+4*hf:8*row+4*hf+4]
                for k in range(4): p(f'v_cvt_pk_bf16_f32 {o[k]}, {D[8*hf+2*k]}, {D[8*hf+2*k+1]}')
                self.vm(f'global_store_dwordx4 {self.aO}, {o}, {sa} offset:{-4096*(1-row)+32*hf} {"sc1" if self.o.get("outsc1") else "nt" if self.o.get("outnt") else ""}', 'out')
        self.stamp('outst')
        V.put(F, Dr, Di, acc, t, self.aVW, self.aVR, self.aO)
        S.put(*self.sT2); self.A.put(self.R4l, self.R4h)

    def tu_produce(self):
        p, V = self.P, self.V
        a, o, R = V.get(), V.get(), V.get(16)
        t = V.get(); L = self.L; sa, st0, st1 = self.sa, self.st0, self.st1
        p(f"""v_bfe_u32 {a}, {L}, 2, 2
        v_lshlrev_b32 {a}, 7, {a}
        v_lshrrev_b32 {t}, 4, {L}
        v_lshl_add_u32 {a}, {t}, 5, {a}
        v_and_b32 {t}, 3, {L}
        v_lshl_add_u32 {a}, {t}, 3, {a}
        s_lshl_b32 {st0}, {self.sV}, 12
        s_add_u32 {st0}, {st0}, {US}
        v_add_u32 {a}, {st0}, {a}""")
        for b in range(4):
            for h in range(2): p(f'ds_read_b64_tr_b16 {R[4*b+2*h:4*b+2*h+2]}, {a} offset:{1024*b+512*h}')
        p(f"""v_lshlrev_b32 {t}, 4, {t}
        v_lshrrev_b32 {o}, 2, {L}
        v_lshl_add_u32 {o}, {o}, 14, {t}
        s_lshr_b32 {st0}, {self.sC}, 4
        s_lshl_b32 {st0}, {st0}, 18
        s_and_b32 {st1}, {self.sC}, 15
        s_lshl_b32 {st1}, {st1}, 10
        s_add_u32 {st0}, {st0}, {st1}
        s_lshl_b32 {st1}, {self.sV}, 8
        s_add_u32 {st0}, {st0}, {st1}
        s_add_u32 {st0}, {st0}, {TU}""")
        self.addr64(sa, self.ws, st0)
        for b in range(4):
            p(f's_waitcnt lgkmcnt({6-2*b})')
            self.tag4(R[4*b:4*b+4])
            self.vm(f'global_store_dwordx4 {o}, {R[4*b:4*b+4]}, {sa} offset:{64*b} sc1', 'tust')
        V.put(a, o, R, t)
    def tu_setup(self):
        p, V, S = self.P, self.V, self.S
        self.aUW = V.get(); self.sTU = S.get(2); t = V.get()
        p(f"""v_and_b32 {t}, 3, {self.L}
        v_mul_u32_u24 {self.aUW}, {BW}, {t}
        v_lshrrev_b32 {t}, 2, {self.L}
        v_lshl_add_u32 {self.aUW}, {t}, 4, {self.aUW}
        s_lshl_b32 {self.st0}, {self.sV}, 10
        s_add_u32 {self.st0}, {self.st0}, {BB}
        v_add_u32 {self.aUW}, {self.st0}, {self.aUW}
        s_lshl_b32 {self.st0}, {self.sC}, 14
        s_lshl_b32 {self.st1}, {self.sV}, 12
        s_add_u32 {self.st0}, {self.st0}, {self.st1}
        s_add_u32 {self.st0}, {self.st0}, {TU}""")
        self.addr64(self.sTU, self.ws, self.st0)
        V.put(t)
    def tu_issue(self):
        if not hasattr(self, 'UL'): self.UL = self.V.get(16)
        for i in range(4): self.vm(f'global_load_dwordx4 {self.UL[4*i:4*i+4]}, {self.L16}, {self.sTU} offset:{1024*i} sc1', 'tuld')
    def tu_consume(self):
        p, V = self.P, self.V
        acc, t = V.get(), V.get(2)
        self.poll(self.tu_issue, lambda: self.check16(self.UL, acc, t), self.after('tuld'))
        for i in range(4): p(f'ds_write_b128 {self.aUW}, {self.UL[4*i:4*i+4]} offset:{UT+256*i}')
        V.put(acc, t, self.UL, self.aUW); self.S.put(self.sTU)

    def cmul(self, items):
        p = self.P
        for i, (d, x, e) in enumerate(items): p(f'v_pk_mul_f32 {self.CT[2*i:2*i+2]}, {x}, {e} op_sel:[0,0] op_sel_hi:[0,1]')
        for i, (d, x, e) in enumerate(items): p(f'v_pk_fma_f32 {d}, {x}, {e}, {self.CT[2*i:2*i+2]} op_sel:[1,1,0] op_sel_hi:[1,0,1] neg_lo:[0,1,0]')
    def krow(self, row, X, neg=False):
        p = self.P; o = self.KO[2*(row & 1):2*(row & 1)+2]
        for u in range(2): p(f'v_cvt_pk_bf16_f32 {o[u]}, {X[u][0]}, {"-" if neg else ""}{X[u][1]}')
        p(f'ds_write_b64 {self.aKW}, {o} offset:{KT+528*row}')
    def kgen_setup(self):
        p, V, S, L = self.P, self.V, self.S, self.L
        self.sB = S.get(); st0, st1 = self.st0, self.st1
        self.E = {n: [V.get(2), V.get(2)] for n in (1, 8, 128)}
        self.KY = [V.get(2), V.get(2)]; self.KX = [V.get(2), V.get(2)]; self.CT = V.get(4); self.KO = V.get(4)
        self.aKW, self.aKR = V.get(), V.get()
        dt, t0, t1, t2 = V.get(), V.get(), V.get(), V.get(); z = V.get(4)
        LOG2E = math.log2(math.e); hi = struct.unpack('<f', struct.pack('<f', LOG2E))[0]
        p(f"""s_mul_i32 {self.sB}, {self.sV}, {BW}
        s_add_u32 {self.sB}, {self.sB}, {BB}
        s_and_b32 {st0}, {self.sD}, 1
        s_lshl_b32 {st0}, {st0}, 4
        s_lshr_b32 {self.sLD}, {self.sLD}, {st0}
        s_lshl_b32 {self.sLD}, {self.sLD}, 16
        s_lshr_b32 {self.sDS}, {self.sDS}, {st0}
        s_lshl_b32 {self.sDS}, {self.sDS}, 16
        v_mov_b32 {t0}, {fl(hi)}
        v_mul_f32 {t1}, {self.sLD}, {t0}
        v_fma_f32 {t2}, {self.sLD}, {t0}, -{t1}
        v_mov_b32 {t0}, {fl(LOG2E-hi)}
        v_exp_f32 {dt}, {t1}
        v_fmac_f32 {t2}, {self.sLD}, {t0}
        v_mul_f32 {t2}, {fl(math.log(2))}, {t2}
        v_fmac_f32 {dt}, {dt}, {t2}
        v_cvt_pk_bf16_f32 {dt}, {dt}, {dt}
        v_lshlrev_b32 {dt}, 16, {dt}
        v_lshl_add_u32 {self.aKW}, {L}, 3, {self.sB}
        v_mul_u32_u24 {t0}, 528, {self.L15}
        v_lshl_add_u32 {t0}, {self.GK}, 4, {t0}
        v_add_u32 {self.aKR}, {self.sB}, {t0}
        v_mov_b32 {z[0]}, 0
        v_mov_b32 {z[1]}, 0
        v_mov_b32 {z[2]}, 0
        v_mov_b32 {z[3]}, 0
        v_lshl_add_u32 {t0}, {self.L15}, 4, {self.sB}
        ds_write_b128 {t0}, {z}
        v_and_b32 {t0}, 31, {L}
        v_lshl_add_u32 {t0}, {t0}, 4, {self.sB}
        ds_write_b128 {t0}, {z} offset:{UZ}""")
        un = lambda d, src, u: p(f'v_lshlrev_b32 {d}, 16, {src}' if u == 0 else f'v_and_b32 {d}, 0xffff0000, {src}')
        PR = self.PR
        for u in range(2):
            X, Y = self.KX[u], self.KY[u]
            un(X[0], PR[2], u); un(X[1], PR[3], u); un(Y[0], PR[4], u); un(Y[1], PR[5], u)
            p(f'v_mul_f32 {X[0]}, {dt}, {X[0]}\nv_mul_f32 {X[1]}, {dt}, {X[1]}')
        self.cmul([(self.KY[u], self.KY[u], self.KX[u]) for u in range(2)])
        for u in range(2):
            a, b = z[2*u], z[2*u+1]
            un(a, PR[0], u); un(b, PR[1], u)
            p(f"""v_mul_f32 {a}, {dt}, {a}
            v_mul_f32 {b}, {dt}, {b}
            v_mul_f32 {a}, {fl(LOG2E)}, {a}
            v_mul_f32 {b}, {fl(1/(2*math.pi))}, {b}""")
        for n in (1, 8, 128):
            for u in range(2):
                a, b = z[2*u], z[2*u+1]; E = self.E[n][u]
                if n == 1: p(f'v_exp_f32 {t0}, {a}\nv_fract_f32 {t1}, {b}')
                else: p(f'v_mul_f32 {t0}, {fl(n)}, {a}\nv_mul_f32 {t1}, {fl(n)}, {b}\nv_exp_f32 {t0}, {t0}\nv_fract_f32 {t1}, {t1}')
                p(f"""v_cos_f32 {E[0]}, {t1}
                v_sin_f32 {E[1]}, {t1}
                v_mul_f32 {E[0]}, {t0}, {E[0]}
                v_mul_f32 {E[1]}, {t0}, {E[1]}""")
        V.put(dt, t0, t1, t2, z, self.PR)
    def kgen_units(self):
        p, A, V = self.P, self.A, self.V; X, Y, E = self.KX, self.KY, self.E; U = []
        R2 = range(2)
        def first():
            p(f'v_mov_b32 {self.KO[0]}, 0x3f80\nv_mov_b32 {self.KO[1]}, 0x3f80\nds_write_b64 {self.aKW}, {self.KO[0:2]} offset:{KT}')
            self.krow(1, E[8], True)
        U.append(first)
        def unit(dst, src, e, row, neg=False):
            def f():
                self.cmul([(dst[u], src[u], e[u]) for u in R2])
                if row is not None: self.krow(row, dst, neg)
            U.append(f)
        for b in range(2, 16): unit(X, E[8] if b == 2 else X, E[8], b, True)
        U.append(lambda: self.krow(16, Y))
        for a in range(2):
            if a: unit(Y, Y, E[128], 24)
            for j in range(1, 8): unit(X, Y if j == 1 else X, E[1], 16+8*a+j)
        def reads1():
            self.BF, self.AF = A.get(32), [A.get(32), A.get(32), A.get(32)]
            for t in range(8):
                p(f'ds_read_b128 {self.BF[4*t:4*t+4]}, {self.aKR} offset:{KT+64*t}')
                p(f'ds_read_b128 {self.AF[0][4*t:4*t+4]}, {self.aKR} offset:{KT+16*528+64*t}')
        U.append(reads1)
        unit(E[1], E[1], E[1], None); unit(E[8], E[1], E[1], None)
        for a in range(2):
            unit(Y, Y, E[128], 4*a)
            for j in range(1, 4): unit(X, Y if j == 1 else X, E[1], 4*a+j)
        for a in range(4):
            unit(Y, Y, E[128], 8+2*a); unit(X, Y, E[8], 9+2*a)
        for a in range(9): unit(Y, Y, E[128], 16+a)
        def reads2():
            for k in range(1, 3):
                for t in range(8): p(f'ds_read_b128 {self.AF[k][4*t:4*t+4]}, {self.aKR} offset:{KT+16*528*(k-1)+64*t}')
            V.put(*E[1], *E[8], *E[128], *X, *Y, self.CT, self.KO, self.aKW, self.aKR)
        U.append(reads2)
        return U
    def kgen_mfma(self):
        p, V, L = self.P, self.V, self.L
        KD = V.get(12); a0, a1, a2, a3, t = V.get(), V.get(), V.get(), V.get(), V.get(); O = V.get(6)
        for k in range(3):
            p(f's_waitcnt lgkmcnt({(15, 8, 0)[k]})')
            for i in range(8):
                p(f'v_mfma_f32_16x16x32_bf16 {KD[4*k:4*k+4]}, {self.AF[k][4*i:4*i+4]}, {self.BF[4*i:4*i+4]}, {KD[4*k:4*k+4] if i else 0}')
            if k == 0:
                p(f"""v_lshlrev_b32 {a0}, 8, {self.H}
                v_lshl_add_u32 {a0}, {self.L15}, 4, {a0}
                v_and_b32 {t}, 1, {self.GK}
                v_lshl_add_u32 {a0}, {t}, 3, {a0}
                v_add_u32 {a0}, {self.sB}, {a0}
                v_lshl_add_u32 {a3}, {self.GK}, 7, {self.sB}
                v_sub_u32 {t}, 3, {self.H}
                v_lshlrev_b32 {t}, {t}, {self.L15}
                v_add_u32 {a1}, {a3}, {t}
                v_mul_u32_u24 {t}, 60, {self.H}
                v_add3_u32 {a2}, {a1}, {t}, 4
                v_lshl_add_u32 {a3}, {self.L15}, 1, {a3}
                v_cmp_eq_u32 vcc, 0, {L}
                v_mov_b32 {t}, {self.sDS}
                v_cndmask_b32 {t}, 0, {t}, vcc""")
        p(f'v_add_f32 {KD[0]}, {KD[0]}, {t}')
        for i in range(6): p(f'v_cvt_pk_bf16_f32 {O[i]}, {KD[2*i]}, {KD[2*i+1]}')
        p(f"""ds_write_b64 {a0}, {O[0:2]} offset:{KT}
        ds_write_b32 {a1}, {O[2]} offset:{KC}
        ds_write_b32 {a2}, {O[3]} offset:{KC}
        ds_write_b16 {a3}, {O[4]} offset:{KC+512}
        ds_write_b16_d16_hi {a3}, {O[4]} offset:{KC+512+32}
        ds_write_b16 {a3}, {O[5]} offset:{KC+512+64}
        ds_write_b16_d16_hi {a3}, {O[5]} offset:{KC+512+96}""")
        V.put(KD, a0, a1, a2, a3, t, O); self.A.put(self.BF, *self.AF)
    def kexpand(self):
        p, V, S, L = self.P, self.V, self.S, self.L
        sLO, sHI = S.get(), S.get()
        a, b, c = V.get(), V.get(), V.get(); R = V.get(8); O = V.get(16)
        p(f"""v_and_b32 {c}, 31, {L}
        v_lshl_add_u32 {a}, {c}, 3, {self.sB}
        v_lshl_add_u32 {b}, {L}, 2, {self.sB}
        v_add_u32 {b}, {KC}, {b}
        ds_read_b64 {R[0:2]}, {a} offset:{KC}
        ds_read_b32 {R[2]}, {a} offset:{KC+8}
        ds_read2_b32 {R[4:6]}, {b} offset0:64 offset1:65
        ds_read2_b32 {R[6:8]}, {b} offset0:128 offset1:129
        s_mov_b32 {sLO}, 0x01000100
        s_mov_b32 {sHI}, 0x03020302
        v_lshl_add_u32 {a}, {c}, 4, {self.sB}
        v_add_u32 {b}, {self.sB}, {self.L16}
        v_lshl_add_u32 {c}, {L}, 5, {self.sB}
        s_waitcnt lgkmcnt(2)
        v_perm_b32 {O[0]}, {R[0]}, {R[0]}, {sLO}
        v_alignbit_b32 {O[1]}, {R[1]}, {R[0]}, 16
        v_perm_b32 {O[2]}, {R[1]}, {R[1]}, {sLO}
        v_alignbit_b32 {O[3]}, {R[2]}, {R[1]}, 16
        ds_write_b128 {a}, {O[0:4]} offset:{KT+512}
        s_waitcnt lgkmcnt(2)
        v_perm_b32 {O[4]}, {R[4]}, {R[4]}, {sLO}
        v_mov_b32 {O[5]}, {R[4]}
        v_perm_b32 {O[6]}, {R[4]}, {R[4]}, {sHI}
        v_perm_b32 {O[7]}, {R[5]}, {R[5]}, {sLO}
        ds_write_b128 {b}, {O[4:8]} offset:{KT+1024}
        s_waitcnt lgkmcnt(2)
        v_perm_b32 {O[8]}, {R[6]}, {R[6]}, {sLO}
        v_mov_b32 {O[10]}, {R[6]}
        v_perm_b32 {O[11]}, {R[6]}, {R[6]}, {sHI}
        v_mov_b32 {O[9]}, {O[8]}
        v_perm_b32 {O[14]}, {R[7]}, {R[7]}, {sLO}
        v_mov_b32 {O[12]}, {O[11]}
        v_mov_b32 {O[13]}, {O[11]}
        v_mov_b32 {O[15]}, {O[14]}
        ds_write_b128 {c}, {O[8:12]} offset:{KT+2048}
        ds_write_b128 {c}, {O[12:16]} offset:{KT+2048+16}""")
        V.put(R); R = V.get(24)
        for r in range(4):
            p(f'ds_read_b64 {R[6*r:6*r+2]}, {b} offset:{KT-8+1024*r}\nds_read_b128 {R[6*r+2:6*r+6]}, {b} offset:{KT+1024*r}')
        p(f"""v_lshrrev_b32 {a}, 2, {L}
        v_lshlrev_b32 {a}, 8, {a}
        v_and_b32 {c}, 3, {L}
        v_lshl_add_u32 {a}, {c}, 4, {a}
        v_add_u32 {a}, {self.sB}, {a}""")
        for r in range(4):
            Q = R[6*r:6*r+6]
            p(f's_waitcnt lgkmcnt({min(15, 6-2*r+4*r)})')
            p(f'ds_write_b128 {a}, {Q[2:6]} offset:{KT+4096*r}')
            for k in range(4): p(f'v_alignbit_b32 {O[k]}, {Q[k+2]}, {Q[k+1]}, 16')
            p(f'ds_write_b128 {a}, {O[0:4]} offset:{KT+4096*r+64}')
            for k in range(4): p(f'v_mov_b32 {O[4+k]}, {Q[k+1]}')
            p(f'ds_write_b128 {a}, {O[4:8]} offset:{KT+4096*r+128}')
            for k in range(4): p(f'v_alignbit_b32 {O[8+k]}, {Q[k+1]}, {Q[k]}, 16')
            p(f'ds_write_b128 {a}, {O[8:12]} offset:{KT+4096*r+192}')
        V.put(a, b, c, R, O); S.put(sLO, sHI)
    def conv_setup(self):
        p, V, A, L = self.P, self.V, self.A, self.L
        self.aKA = V.get(2); self.aUB = V.get(); self.aYW = V.get(); self.aYR = V.get(); self.aYO = V.get()
        self.ACC = V.get(32); self.CA = [A.get(32), A.get(32)]; self.CB = [A.get(32), A.get(32)]
        y, t, r4, cc = V.get(), V.get(), V.get(), V.get()
        p(f'v_bfe_u32 {r4}, {L}, 2, 2\nv_and_b32 {cc}, 3, {L}')
        for k in range(2):
            p(f"""v_lshlrev_b32 {y}, 1, {self.GK}
            v_sub_u32 {y}, {cc}, {y}
            v_lshl_add_u32 {y}, {y}, 2, {16-4*k}
            v_ashrrev_i32 {t}, 5, {y}
            v_lshlrev_b32 {t}, 8, {t}
            v_and_b32 {y}, 31, {y}
            v_lshl_add_u32 {y}, {y}, 1, {t}
            v_lshl_add_u32 {y}, {r4}, 6, {y}
            v_add_u32 {self.aKA[k]}, {self.sB}, {y}""")
        p(f"""v_lshlrev_b32 {y}, 4, {self.GK}
        v_lshl_add_u32 {y}, {self.L15}, 5, {y}
        v_add_u32 {self.aUB}, {self.sB}, {y}
        v_add_u32 {y}, {self.GK}, {r4}
        v_and_b32 {y}, 3, {y}
        v_lshlrev_b32 {y}, 3, {y}
        v_lshl_add_u32 {y}, {self.L15}, 5, {y}
        s_mul_i32 {self.st0}, {self.sV}, {YST}
        v_add_u32 {self.aYW}, {self.st0}, {y}
        v_add_u32 {y}, {self.GK}, {cc}
        v_and_b32 {y}, 3, {y}
        v_lshlrev_b32 {y}, 3, {y}
        v_lshl_add_u32 {y}, {self.GK}, 7, {y}
        v_mul_u32_u24 {t}, {YST}, {r4}
        s_lshl_b32 {self.st0}, {self.sV}, 9
        v_add3_u32 {self.aYR}, {y}, {t}, {self.st0}
        v_lshl_add_u32 {y}, {self.GK}, 6, {self.L15}
        v_lshlrev_b32 {self.aYO}, 12, {y}""")
        V.put(y, t, r4, cc)
        self.started = set()
    def conv_reads(self, half, e0):
        n = 4 if half == 0 else 8; buf = e0 & 1; l = []
        for i in range(n):
            for t in range(2): l.append(f'ds_read_b64_tr_b16 {self.CA[buf][4*i+2*t:4*i+2*t+2]}, {self.aKA[t]} offset:{KT+256*(e0+8*i)}')
            l.append(f'ds_read_b128 {self.CB[buf][4*i:4*i+4]}, {self.aUB} offset:{UT-32+512*i-64*e0}')
        return l
    def conv_order(self, half):
        n = 4 if half == 0 else 8
        pairs = [(e1, g) for e1 in range(n) for g in range(n) if 4*half <= e1+g <= 4*half+3]
        out = []; have = set()
        while pairs:
            cost = lambda x: ((('a', x[0]) not in have)*2 + (('b', x[1]) not in have), x)
            x = min(pairs, key=cost); pairs.remove(x); out.append(x); have |= {('a', x[0]), ('b', x[1])}
        return out
    def conv_frag_reads(self, half, e0):
        buf = e0 & 1; l = []; seen = set()
        for e1, g in self.conv_order(half):
            if ('a', e1) not in seen:
                seen.add(('a', e1))
                for t in range(2): l.append(((half, e0, 'a', e1), f'ds_read_b64_tr_b16 {self.CA[buf][4*e1+2*t:4*e1+2*t+2]}, {self.aKA[t]} offset:{KT+256*(e0+8*e1)}'))
            if ('b', g) not in seen:
                seen.add(('b', g))
                l.append(((half, e0, 'b', g), f'ds_read_b128 {self.CB[buf][4*g:4*g+4]}, {self.aUB} offset:{UT-32+512*g-64*e0}'))
        return l
    def conv_request(self, step):
        self.dsq = []
        for k, x in self.conv_frag_reads(*step): self.P(x); self.dsq.append(k)
    def conv_run(self, steps, nxt):
        p = self.P
        for i, (h, e0) in enumerate(steps):
            n = steps[i+1] if i+1 < len(steps) else nxt
            pf = self.conv_frag_reads(*n) if n else []
            order = self.conv_order(h); buf = e0 & 1
            for k, (e1, g) in enumerate(order):
                need = [j for j, key in enumerate(self.dsq) if key in ((h, e0, 'a', e1), (h, e0, 'b', g))]
                if need:
                    left = len(self.dsq) - 1 - max(need)
                    p(f's_waitcnt lgkmcnt({min(15, left)})')
                    self.dsq = self.dsq[len(self.dsq)-min(15, left):] if left else []
                c = e1+g; acc = self.ACC[4*c:4*c+4]
                p(f'v_mfma_f32_16x16x32_bf16 {acc}, {self.CA[buf][4*e1:4*e1+4]}, {self.CB[buf][4*g:4*g+4]}, {acc if c in self.started else 0}')
                self.started.add(c)
                m = -(-len(pf)//(len(order)-k)) if pf else 0
                for _ in range(max(m, 1) if pf else 0):
                    key, x = pf.pop(0); p(x); self.dsq.append(key)
    def ds_other(self, n):
        self.dsq += [None]*n
    def y_stage(self, half):
        p, V = self.P, self.V; O = V.get(8)
        for i in range(4):
            c = 4*half+i
            p(f'v_cvt_pk_bf16_f32 {O[2*i]}, {self.ACC[4*c]}, {self.ACC[4*c+1]}\nv_cvt_pk_bf16_f32 {O[2*i+1]}, {self.ACC[4*c+2]}, {self.ACC[4*c+3]}')
            p(f'ds_write_b64 {self.aYW}, {O[2*i:2*i+2]} offset:{YS+512*c}')
        V.put(O)
    def y_read(self, half):
        self.YR = self.V.get(8)
        for k in range(4): self.p(f'ds_read_b64_tr_b16 {self.YR[2*k:2*k+2]}, {self.aYR} offset:{YS+2048*half+32*k}')
    def y_store(self, half):
        p = self.P; sa, st0, st1 = self.sa, self.st0, self.st1
        p(f's_lshl_b32 {st0}, {self.sV}, 20\ns_lshl_b32 {st1}, {self.sC}, 3\ns_add_u32 {st0}, {st0}, {st1}\ns_add_u32 {st0}, {st0}, {2048+(half<<22)}')
        self.addr64(sa, self.out, st0)
        for k in range(4):
            if k: self.addr64(sa, sa, 65536)
            self.vm(f'global_store_dwordx2 {self.aYO}, {self.YR[2*k:2*k+2]}, {sa}', 'yst')
        self.V.put(self.YR)

    def finish(self):
        p, V = self.P, self.V
        if self.stamps:
            p('s_waitcnt vmcnt(0)')
            self.stamp('end'); p('s_waitcnt lgkmcnt(0)')
            d = V.get(); a = V.get()
            p(f's_lshl_b32 {self.st0}, s2, 2\ns_add_u32 {self.st0}, {self.st0}, {self.sV}\ns_lshl_b32 {self.st0}, {self.st0}, 7\ns_add_u32 {self.st0}, {self.st0}, {DBG}')
            self.addr64(self.sa, self.ws, self.st0)
            p(f'v_mov_b32 {a}, 0\ns_mov_b64 exec, 1')
            for i, (n, r) in enumerate(self.stn):
                p(f'v_mov_b32 {d}, {r[0]}\nglobal_store_dword {a}, {d}, {self.sa} offset:{4*i}\ns_nop 1')
            if self.o.get('dbgstamps'):
                p(f's_load_dwordx2 {self.sa}, s[0:1], 104\ns_waitcnt lgkmcnt(0)')
                for i, (n, r) in enumerate(self.stn):
                    p(f'v_mov_b32 {d}, {r[0]}\nglobal_atomic_umax {a}, {d}, {self.sa} offset:{4*i}\ns_nop 1')
                p(f's_not_b32 {self.st0}, {self.stn[0][1][0]}\nv_mov_b32 {d}, {self.st0}\nglobal_atomic_umax {a}, {d}, {self.sa} offset:60')
            amp = [k for k in self.o if k.startswith('amp=')]
            if amp:
                _, nm, wg = amp[0].split('=')
                r = dict(self.stn)[nm]; e = dict(self.stn)['end']; t = self.sb
                p(f'''s_lshl_b32 {self.st0}, s2, 2
                s_add_u32 {self.st0}, {self.st0}, {self.sV}
                s_cmp_lg_u32 {self.st0}, {4*int(wg)}
                s_cbranch_scc1 L_end
                s_sub_u32 {self.st0}, {r[0]}, {self.stn[0][1][0]}
                s_min_u32 {self.st0}, {self.st0}, 10000
                s_mul_i32 {self.st0}, {self.st0}, 20
                L_amp:
                s_sleep 8
                s_memrealtime {t}
                s_waitcnt lgkmcnt(0)
                s_sub_u32 {self.st1}, {t[0]}, {e[0]}
                s_cmp_lt_u32 {self.st1}, {self.st0}
                s_cbranch_scc1 L_amp''')
        p('L_end:\ns_endpgm')

    def emit(self):
        pad = self.p.pad(); errs = self.p.verify()
        for q in self.ool: pad += q.pad(); errs += q.verify()
        for e in errs: print('VERIFY', e, file=sys.stderr)
        hdr = open('cdna_kernels/%s.s.ref' % NAME).read().split('; Override launch')[0]
        nv = 256; na = max(8, self.A.hi)
        s = hdr + ('; stamps: ' + ' '.join(n for n, _ in self.stn) + '\n' if self.stamps else '') + f'; @launch grid=(256,1,1) block=(256,1,1) lds={LDS_BYTES}\n'
        s += f'.amdgcn_target "amdgcn-amd-amdhsa--gfx950"\n.text\n.globl {NAME}_kernel\n.p2align 8\n.type {NAME}_kernel,@function\n{NAME}_kernel:\n'
        s += self.p.text() + ''.join(q.text() for q in self.ool) + 'L_codeend:\n'
        s += f'''.section .rodata,"a"
.p2align 6
.amdhsa_kernel {NAME}_kernel
  .amdhsa_next_free_vgpr {nv+na}
  .amdhsa_next_free_sgpr 102
  .amdhsa_accum_offset {nv}
  .amdhsa_group_segment_fixed_size 0
  .amdhsa_kernarg_size 120
  .amdhsa_user_sgpr_count 2
  .amdhsa_user_sgpr_kernarg_segment_ptr 1
  .amdhsa_system_sgpr_workgroup_id_x 1
  .amdhsa_float_denorm_mode_32 3
.end_amdhsa_kernel
'''
        n = sum(1 for i in self.p.ins if i.states)
        print(f'instrs {n} pad {pad} vgpr {self.V.hi} agpr {self.A.hi} sgpr {self.S.hi} errs {len(errs)}', file=sys.stderr)
        return s

def build_v2(stamps=False, opts=None):
    g = Gen(stamps, opts); p = g.P; o = g.o
    geti = lambda k, d: int(next((x.split('=')[1] for x in o if x.startswith(k + '=')), d))
    g.prologue(); g.consts1()
    g.loads_u(); g.loads_wx()
    g.consts2(); g.tu_setup(); g.t1_issue_setup()
    g.stamp('cons')
    g.loads_w()
    g.wait_vm('par'); g.kgen_setup()
    U = g.kgen_units(); n0, n1 = geti('n0', 8), geti('n1', 34)
    for f in U[:n0]: f()
    g.stamp('k0')
    g.phase1()
    g.wait_vm('u'); g.tu_produce()
    g.stamp('tust')
    g.wait_vm('W'); g.wstage(); g.mpre()
    if hasattr(g, 'PF'): g.V.put(g.PF)
    g.stamp('mpre')
    for f in U[n0:n1]: f()
    g.t1_issue()
    g.stamp('t1ld')
    for f in U[n1:]: f()
    g.kgen_mfma(); g.stamp('kmf'); g.kexpand()
    g.stamp('kdone')
    g.phase2(g.tu_issue)
    g.tu_consume()
    g.conv_setup(); g.consts3()
    p('s_waitcnt lgkmcnt(0)\ns_barrier')
    g.stamp('c3')
    g.conv_request((0, 0))
    g.conv_run([(0, e) for e in range(8)], (1, 0))
    g.y_stage(0); g.ds_other(4)
    g.t2_issue()
    g.conv_run([(1, 0), (1, 1)], (1, 2))
    p('s_barrier')
    g.y_read(0); g.ds_other(4)
    g.conv_run([(1, 2), (1, 3)], (1, 4))
    g.y_store(0)
    g.conv_run([(1, e) for e in range(4, 8)], None)
    g.y_stage(1)
    p('s_waitcnt lgkmcnt(0)\ns_barrier')
    g.y_read(1); p('s_waitcnt lgkmcnt(0)'); g.y_store(1)
    g.stamp('cv')
    g.phase3()
    g.finish()
    return g

if __name__ == '__main__':
    g = globals()['build_' + sys.argv[2]]('-s' in sys.argv, {k: True for k in sys.argv[3:]})
    open(sys.argv[1], 'w').write(g.emit())
    print([n for n, _ in g.stn], file=sys.stderr)
```

```python
import sys, math, struct
from dsl import *

NAME = "concat_heads__spectral_gfnet__ssm_conv_s4__prompt"
def fl(x): return hex(struct.unpack('<I', struct.pack('<f', x))[0])

T1, T2, TU, T1X, WX, EOFF, DBG = 0, 4 << 20, 8 << 20, 12 << 20, (12 << 20) + (64 << 10), (12 << 20) + (128 << 10), 16 << 20
A0, PL = 0, 4608
US = 18432; EX = US
WS = 34816; YS = WS; YST = 4128
BB, BW = 51456, 23072
XI, XS1 = 0, 4112
KT, KC, UZ = 256, 256 + 16896, 256 + 16896 + 1280
UT = UZ + 512
LDS_BYTES = BB + 4*BW
SPIN_MAX = 4000

class Gen:
    def __init__(self, stamps=False, opts=None):
        self.p = Prog(); self.V = Alloc('v', 256, 1); self.A = Alloc('a', 256); self.S = Alloc('s', 100, 32)
        self.stamps = stamps; self.nst = 0; self.o = opts or {}; self.stn = []
        self.vmlog = []; self.lbl = 0; self.ool = []; self.main = self.p
    def flag(self, k):
        return next((x.split('=')[1].replace('+', ' ') for x in self.o if x.startswith(k + '=')), '')
    def P(self, text): self.p(text)
    def stamp(self, name):
        if not self.stamps: return
        r = self.S.get(2); self.stn.append((name, r))
        self.p(f's_memrealtime {r}')
    def label(self, base):
        self.lbl += 1; return f'L{base}{self.lbl}'
    def vm(self, text, tag):
        self.p(text)
        if self.p is self.main: self.vmlog.append(tag)
    def after(self, tag):
        k = max(i for i, t in enumerate(self.vmlog) if t == tag)
        return len(self.vmlog) - 1 - k
    def wait_vm(self, tag): self.p(f's_waitcnt vmcnt({self.after(tag)})')
    def begin_ool(self, lb):
        q = Prog(); self.ool.append(q); self.p = q; q(f'{lb}:')
    def end_ool(self): self.p = self.main
    def addr64(self, dst, base, off):
        self.p(f's_add_u32 {dst[0]}, {base[0]}, {off}\ns_addc_u32 {dst[1]}, {base[1]}, 0')

    def prologue(self):
        p, V, S = self.P, self.V, self.S
        P = lambda b: Reg('s', b, 2)
        self.x, self.wr, self.wi, self.u = P(4), P(6), P(8), P(10)
        self.par = [P(12), P(14), P(16), P(18), P(20), P(22)]
        self.ldt, self.dsk, self.out, self.ws = P(24), P(26), P(28), P(30)
        self.sV, self.sC, self.sR, self.sG = S.get(), S.get(), S.get(), S.get()
        self.L = L = V.get(); t = V.get()
        self.st0, self.st1 = S.get(), S.get(); self.sa = S.get(2); self.sb = S.get(2)
        st0, st1, sa, sb = self.st0, self.st1, self.sa, self.sb
        sV, sC, sR, sG = self.sV, self.sC, self.sR, self.sG
        if self.stamps:
            r = S.get(2); self.stn.append(('start', r)); p(f's_memrealtime {r}')
        p(f'''s_cmp_ge_u32 s2, 256
        s_cbranch_scc1 L_end
        s_load_dwordx16 s[4:19], s[0:1], 0
        s_load_dwordx8 s[20:27], s[0:1], 64
        s_load_dwordx2 s[28:29], s[0:1], 96
        s_load_dwordx2 s[30:31], s[0:1], 112
        v_lshrrev_b32 {t}, 6, v0
        v_and_b32 {L}, 63, v0
        v_readfirstlane_b32 {sV}, {t}
        s_and_b32 {sC}, s2, 7
        s_lshl_b32 {sC}, {sC}, 5
        s_lshr_b32 {st0}, s2, 3
        s_add_u32 {sC}, {sC}, {st0}
        {'s_mov_b32 %s, s2' % sC if self.o.get('noremap') else ''}
        s_lshr_b32 {sR}, {sC}, 6
        s_and_b32 {sG}, {sC}, 63''')
        self.L16 = V.get()
        self.L15 = V.get(); self.GK = V.get()
        p(f'v_lshlrev_b32 {self.L16}, 4, {L}\nv_and_b32 {self.L15}, 15, {L}\nv_lshrrev_b32 {self.GK}, 4, {L}')
        p(f'''s_lshl_b32 {st0}, {sV}, 8
        s_add_u32 {st0}, {st0}, {sC}
        s_lshl_b32 {st0}, {st0}, 12
        s_mul_i32 {st1}, {sV}, {PL}
        s_mov_b32 m0, {st1}
        s_waitcnt lgkmcnt(0)''')
        self.stamp('karg')
        self.addr64(sa, self.x, st0)
        self.sE = S.get(); self.sLD = S.get(); self.sDS = S.get()
        self.vm(f'global_load_lds_dwordx4 {self.L16}, {sa}', 'x')
        self.vm(f'global_load_lds_dwordx4 {self.L16}, {sa} offset:1024', 'x')
        p(f's_add_u32 m0, {st1}, 128')
        self.addr64(sb, self.ws, EOFF)
        self.vm(f'global_load_lds_dwordx4 {self.L16}, {sa} offset:2048', 'x')
        self.vm(f'global_load_lds_dwordx4 {self.L16}, {sa} offset:3072', 'x')
        p(f's_load_dword {self.sE}, {sb}, 0')
        self.sD = S.get(); self.PR = V.get(6)
        p(f'''s_lshl_b32 {self.sD}, {sC}, 2
        s_add_u32 {self.sD}, {self.sD}, {sV}
        s_lshl_b32 {st0}, {self.sD}, 8
        v_lshl_add_u32 {t}, {L}, 2, {st0}
        s_lshr_b32 {st1}, {self.sD}, 1
        s_lshl_b32 {st1}, {st1}, 2
        s_load_dword {self.sLD}, {self.ldt}, {st1}
        s_load_dword {self.sDS}, {self.dsk}, {st1}''')
        for i in range(6): self.vm(f'global_load_dword {self.PR[i]}, {t}, {self.par[i]}', 'par')
        if not self.o.get('nopf'):
            self.PF = V.get()
            p(f's_getpc_b64 {sa}\nv_lshlrev_b32 {t}, 7, v0\nv_min_u32 {t}, L_codeend-.-128, {t}')
            self.vm(f'global_load_dword {self.PF}, {t}, {sa}', 'pf')
        V.put(t)
    def loads_u(self):
        p, V, S = self.P, self.V, self.S; L = self.L; sa, st0, st1, sC, sV = self.sa, self.st0, self.st1, self.sC, self.sV
        t, t2 = V.get(), V.get()
        p(f'''v_lshrrev_b32 {t}, 3, {L}
        v_and_b32 {t2}, 7, {L}
        v_lshlrev_b32 {t2}, 4, {t2}
        v_lshl_add_u32 {t}, {t}, 11, {t2}
        s_and_b32 {st0}, {sC}, 15
        s_lshl_b32 {st0}, {st0}, 2
        s_add_u32 {st0}, {st0}, {sV}
        s_lshl_b32 {st0}, {st0}, 16
        s_lshr_b32 {st1}, {sC}, 4
        s_lshl_b32 {st1}, {st1}, 7
        s_add_u32 {st0}, {st0}, {st1}''')
        self.addr64(sa, self.u, st0)
        p(f's_lshl_b32 {st1}, {sV}, 12\ns_add_u32 {st1}, {st1}, {US}')
        for i in range(4):
            p(f's_add_u32 m0, {st1}, {1024*i}')
            if i: self.addr64(sa, sa, 16384)
            self.vm(f'global_load_lds_dwordx4 {t}, {sa}', 'u')
        V.put(t, t2)
    def loads_wx(self):
        p, V, S = self.P, self.V, self.S; L = self.L; st0 = self.st0
        self.WXV = V.get(); t, t2, t3 = V.get(), V.get(), V.get()
        p(f'''v_bfe_u32 {t}, {L}, 2, 1
        v_lshl_add_u32 {t}, {t}, 10, {self.GK}
        s_lshl_b32 {st0}, {self.sC}, 2
        v_add_u32 {t}, {st0}, {t}
        v_sub_u32 {t2}, 0x800, {t}
        v_and_b32 {t2}, 0x7ff, {t2}
        v_and_b32 {t3}, 1, {L}
        v_cmp_eq_u32 vcc, 1, {t3}
        v_bfe_u32 {t3}, {L}, 3, 1
        v_cndmask_b32 {t}, {t}, {t2}, vcc
        v_mul_u32_u24 {t}, 1026, {t}
        v_lshl_add_u32 {t}, {t3}, 10, {t}
        s_mov_b32 exec_lo, 0x33333333
        s_mov_b32 exec_hi, 0x33333333''')
        self.vm(f'global_load_ushort {self.WXV}, {t}, {self.wr}', 'wx')
        p('s_not_b64 exec, exec')
        self.vm(f'global_load_ushort {self.WXV}, {t}, {self.wi} ; nocheck', 'wx')
        p('s_mov_b64 exec, -1')
        V.put(t, t2, t3)
    def loads_w(self):
        p, V, S = self.P, self.V, self.S; L = self.L; sa, st0, st1, sV = self.sa, self.st0, self.st1, self.sV
        self.WL = V.get(16); t = V.get()
        p(f'''v_lshl_add_u32 {t}, {self.GK}, 6, {self.L15}
        v_mul_u32_u24 {t}, {4*1026}, {t}
        s_bitcmp1_b32 {sV}, 0
        s_cselect_b32 {sa[0]}, {self.wi[0]}, {self.wr[0]}
        s_cselect_b32 {sa[1]}, {self.wi[1]}, {self.wr[1]}
        s_lshr_b32 {st0}, {sV}, 1
        s_lshl_b32 {st0}, {st0}, 10
        s_add_u32 {st0}, {st0}, {self.sR}
        s_mul_i32 {st0}, {st0}, 1026
        s_lshl_b32 {st1}, {self.sG}, 4
        s_add_u32 {st0}, {st0}, {st1}''')
        self.addr64(sa, sa, st0)
        for i in range(4):
            if i: self.addr64(sa, sa, 64*1026)
            self.vm(f'global_load_dwordx4 {self.WL[4*i:4*i+4]}, {t}, {sa}', 'W')
        V.put(t)

    def consts1(self):
        p, V, A, S, L = self.P, self.V, self.A, self.S, self.L
        self.CFr, self.CFi = A.get(16), A.get(16)
        self.TWc, self.TWs = V.get(16), V.get(16)
        k, b, an, c, s, d = V.get(), V.get(), V.get(), V.get(), V.get(), V.get()
        self.PI = V.get()
        self.H = V.get()
        p(f'''v_and_b32 {k}, 0x13, {L}
        v_bfe_u32 {b}, {L}, 2, 1
        v_lshl_or_b32 {k}, {b}, 3, {k}
        v_bfe_u32 {b}, {L}, 3, 1
        v_lshl_or_b32 {self.PI}, {b}, 2, {k}
        v_lshrrev_b32 {self.H}, 5, {L}
        v_cvt_f32_u32 {k}, {self.PI}
        v_cvt_f32_u32 {b}, {self.H}
        v_mul_f32 {k}, {fl(1/32)}, {k}
        v_mul_f32 {b}, {b}, {k}
        v_mul_f32 {b}, 4.0, {b}''')
        sgn = V.get(); d2 = V.get()
        p(f'v_and_b32 {sgn}, 1, {L}\nv_mul_u32_u24 {sgn}, 0x8000, {sgn}\nv_lshl_or_b32 {sgn}, {sgn}, 16, {sgn}')
        for f in range(2):
            for jj in range(4):
                i = 4*f + jj
                p(f'''v_fmamk_f32 {an}, {k}, {fl(8*f+jj)}, {b}
                v_cos_f32 {c}, {an}
                v_sin_f32 {s}, {an}
                v_mul_f32 {an}, {fl(1/32)}, {an}
                v_cvt_pk_bf16_f32 {d}, {c}, {s}
                v_cos_f32 {self.TWc[i]}, {an}
                v_cvt_pk_bf16_f32 {d2}, -{s}, {c}
                v_sin_f32 {self.TWs[i]}, {an}
                v_fmac_f32 {an}, 0.5, {k}
                v_accvgpr_write_b32 {self.CFr[i]}, {d}
                v_accvgpr_write_b32 {self.CFi[i]}, {d2}
                v_cos_f32 {self.TWc[8+i]}, {an}
                v_xor_b32 {d}, {sgn}, {d}
                v_xor_b32 {d2}, {sgn}, {d2}
                v_sin_f32 {self.TWs[8+i]}, {an}
                v_accvgpr_write_b32 {self.CFr[8+i]}, {d}
                v_accvgpr_write_b32 {self.CFi[8+i]}, {d2}''')
        V.put(sgn, d2)
        self.R4a, self.R4b = A.get(4), A.get(4)
        m1, m2 = S.get(2), S.get(2)
        sg = V.get()
        p(f'''v_bfe_u32 {k}, {L}, 2, 2
        v_cvt_f32_u32 {k}, {k}
        v_mul_f32 {k}, {fl(1/1024)}, {k}
        v_cvt_f32_u32 {b}, {self.sC}
        v_mul_f32 {b}, {b}, {k}
        v_and_b32 {c}, 1, {L}
        v_cvt_f32_u32 {c}, {c}
        v_fmamk_f32 {b}, {c}, {fl(0.25)}, {b}
        v_lshlrev_b32 {sg}, 30, {L}
        v_and_b32 {sg}, 0x80000000, {sg}
        v_and_b32 {c}, 2, {L}
        v_lshrrev_b32 {s}, 4, {L}
        v_cmp_eq_u32 {m1}, {c}, {s}
        v_add_u32 {c}, 1, {c}
        v_cmp_eq_u32 {m2}, {c}, {s}''')
        for m in range(4):
            p(f'''v_fmamk_f32 {an}, {k}, {fl(256*m)}, {b}
            v_cos_f32 {c}, {an}
            v_sin_f32 {s}, {an}
            v_xor_b32 {s}, {sg}, {s}
            v_cvt_pk_bf16_f32 {d}, {c}, {s}
            v_cndmask_b32 {c}, 0, {d}, {m1}
            v_cndmask_b32 {s}, 0, {d}, {m2}
            v_accvgpr_write_b32 {self.R4a[m]}, {c}
            v_accvgpr_write_b32 {self.R4b[m]}, {s}''')
        S.put(m1, m2); V.put(sg)
        self.aXR = V.get(); self.aZW = V.get(); self.aZR = V.get(4); self.aC = V.get(); self.aZX = V.get()
        st0 = self.st0
        p(f'''s_mul_i32 {st0}, {self.sV}, {PL}
        v_bfe_u32 {k}, {L}, 2, 1
        v_mul_u32_u24 {k}, 2176, {k}
        v_bfe_u32 {b}, {L}, 3, 1
        v_lshl_add_u32 {b}, {self.H}, 2, {b}
        v_lshl_add_u32 {k}, {b}, 6, {k}
        v_bfe_u32 {b}, {L}, 4, 1
        v_lshl_add_u32 {k}, {b}, 5, {k}
        v_and_b32 {b}, 3, {L}
        v_lshl_add_u32 {k}, {b}, 3, {k}
        v_add_u32 {self.aXR}, {st0}, {k}
        v_and_b32 {k}, 31, {L}
        v_mul_u32_u24 {k}, 144, {k}
        v_lshl_add_u32 {k}, {self.H}, 5, {k}
        v_add_u32 {self.aZW}, {st0}, {k}
        v_and_b32 {k}, 15, {L}
        v_lshlrev_b32 {k}, 1, {k}
        v_bfe_u32 {b}, {L}, 4, 1
        v_add_u32 {k}, {k}, {b}
        s_lshl_b32 {st0}, {self.sV}, 7
        v_add_u32 {k}, {st0}, {k}
        v_cmp_lt_u32 vcc, 31, {L}''')
        def zaddr(dst, q):
            p(f'''v_lshrrev_b32 {c}, 5, {q}
            v_and_b32 {s}, 0x13, {c}
            v_bfe_u32 {d}, {c}, 2, 1
            v_lshl_or_b32 {s}, {d}, 3, {s}
            v_bfe_u32 {d}, {c}, 3, 1
            v_lshl_or_b32 {s}, {d}, 2, {s}
            v_mul_u32_u24 {s}, 144, {s}
            v_and_b32 {c}, 31, {q}
            v_lshl_add_u32 {dst}, {c}, 2, {s}''')
        m1 = S.get(2)
        for t in range(4):
            p(f'''v_add_u32 {b}, {32*t}, {k}
            v_sub_u32 {an}, 0x400, {b}''')
            if t == 0:
                p(f'''v_cmp_eq_u32 {m1}, 0, {b}
                v_mov_b32 {c}, 0x200
                v_cndmask_b32 {an}, {an}, {c}, {m1}''')
            p(f'v_cndmask_b32 {b}, {b}, {an}, vcc')
            zaddr(self.aZR[t], b)
        S.put(m1)
        p(f'''v_mov_b32 {c}, {16*144}
        v_cndmask_b32 {self.aZX}, {c}, 0, vcc
        v_lshrrev_b32 {k}, 4, {L}
        v_bfe_u32 {b}, {L}, 2, 2
        v_lshl_add_u32 {k}, {k}, 6, {b}
        v_and_b32 {b}, 3, {L}
        v_lshlrev_b32 {b}, 4, {b}
        v_lshl_add_u32 {self.aC}, {k}, 14, {b}''')
        V.put(k, b, an, c, s, d)
        self.TG = S.get(4); self.sN = S.get(); self.MK = V.get()
        st0, st1, sE = self.st0, self.st1, self.sE
        p(f'''v_mov_b32 {self.MK}, 0xfffefffe
        s_waitcnt lgkmcnt(0)
        s_not_b32 {self.sN}, {sE}
        s_mul_i32 {st0}, {sE}, 0x9e3779b1
        s_lshr_b32 {st1}, {st0}, 15
        s_and_b32 {self.TG[1]}, {st1}, 0x10001
        s_lshr_b32 {st1}, {st0}, 14
        s_and_b32 {self.TG[2]}, {st1}, 0x10001
        s_lshr_b32 {st1}, {st0}, 13
        s_and_b32 {self.TG[3]}, {st1}, 0x10001
        s_lshr_b32 {st1}, {st0}, 12
        s_and_b32 {st1}, {st1}, 0x10000
        s_and_b32 {self.TG[0]}, {self.sN}, 1
        s_or_b32 {self.TG[0]}, {self.TG[0]}, {st1}''')

    def fft1024(self, FA, Dr, Di, waits):
        p, V = self.P, self.V
        for f in range(4):
            p(f's_waitcnt lgkmcnt({waits[f]})')
            p(f'v_mfma_f32_32x32x16_bf16 {Dr}, {FA[4*f:4*f+4]}, {self.CFr[4*f:4*f+4]}, {Dr if f else 0}')
            p(f'v_mfma_f32_32x32x16_bf16 {Di}, {FA[4*f:4*f+4]}, {self.CFi[4*f:4*f+4]}, {Di if f else 0}')
        self.twiddle(Dr, Di, self.TWc, self.TWs, FA)
        for f in range(4):
            p(f'v_mfma_f32_32x32x16_bf16 {Dr}, {FA[4*f:4*f+4]}, {self.CFr[4*f:4*f+4]}, {Dr if f else 0}')
            p(f'v_mfma_f32_32x32x16_bf16 {Di}, {FA[4*f:4*f+4]}, {self.CFi[4*f:4*f+4]}, {Di if f else 0}')
    def twiddle(self, Dr, Di, Tc, Ts, F):
        p, V = self.P, self.V
        T = V.get(8)
        n = Dr.n//2
        for k0 in range(0, n, 2):
            ks = (k0, k0+1)
            tt = {k: (T[4*(k-k0):4*(k-k0)+2], T[4*(k-k0)+2:4*(k-k0)+4]) for k in ks}
            s2 = lambda R, k: R[(2*k) % R.n:(2*k) % R.n+2]
            for k in ks: p(f'v_pk_mul_f32 {tt[k][0]}, {s2(Dr,k)}, {s2(Tc,k)}\nv_pk_mul_f32 {tt[k][1]}, {s2(Di,k)}, {s2(Tc,k)}')
            for k in ks: p(f'v_pk_fma_f32 {tt[k][0]}, {s2(Di,k)}, {s2(Ts,k)}, {tt[k][0]}\nv_pk_fma_f32 {tt[k][1]}, {s2(Dr,k)}, {s2(Ts,k)}, {tt[k][1]} neg_lo:[1,0,0] neg_hi:[1,0,0]')
            for k in ks:
                for e in range(2): p(f'v_cvt_pk_bf16_f32 {F[2*k+e]}, {tt[k][0][e]}, {tt[k][1][e]}')
        V.put(T)
    def fft256(self, F, Dr, Di, waits=None):
        p = self.P; n = F.n//4
        q = lambda R, s: R[4*s:4*s+4]
        for s in range(n):
            if waits: p(f's_waitcnt lgkmcnt({waits[s]})')
            p(f'v_mfma_f32_16x16x32_bf16 {q(Dr,s)}, {q(F,s)}, {self.C16r}, 0\nv_mfma_f32_16x16x32_bf16 {q(Di,s)}, {q(F,s)}, {self.C16i}, 0')
        self.twiddle(Dr, Di, self.T16c, self.T16s, F)
        for s in range(n):
            p(f'v_mfma_f32_16x16x32_bf16 {q(Dr,s)}, {self.C16r}, {q(F,s)}, 0\nv_mfma_f32_16x16x32_bf16 {q(Di,s)}, {self.C16i}, {q(F,s)}, 0')
    def tag4(self, R):
        for d in range(4): self.p(f'v_bfi_b32 {R[d]}, {self.MK}, {R[d]}, {self.TG[d]}')
    def check16(self, R, acc, t):
        p = self.P
        for d in range(4):
            p(f'v_bitop3_b32 {t[0]}, {R[d]}, {R[4+d]}, {self.TG[d]} bitop3:0x7e')
            p(f'v_bitop3_b32 {t[1]}, {R[8+d]}, {R[12+d]}, {self.TG[d]} bitop3:0x7e')
            p(f'v_or3_b32 {acc}, {t[0]}, {t[1]}, {acc if d else 0}')
        p(f'v_and_b32 {acc}, 0x10001, {acc}\nv_cmp_ne_u32 vcc, 0, {acc}')
    def poll(self, issue, check, first_wait, post=None):
        ok, re_, lp = self.label('ok'), self.label('re'), self.label('lp')
        cnt = self.st1; outer = self.p
        self.p(f's_waitcnt vmcnt({first_wait})')
        check()
        self.p(f's_cbranch_vccnz {re_}\n{ok}:')
        self.begin_ool(re_)
        self.p(f's_movk_i32 {cnt}, {SPIN_MAX}\n{lp}:\ns_sleep 4')
        issue()
        self.p('s_waitcnt vmcnt(0)')
        check()
        self.p(f's_cbranch_vccz {ok}\ns_sub_u32 {cnt}, {cnt}, 1\ns_cmp_lg_u32 {cnt}, 0\ns_cbranch_scc1 {lp}\ns_branch {ok}')
        self.p = outer

    def phase1(self):
        p, V, S = self.P, self.V, self.S
        FA, Dr, Di = V.get(16), V.get(16), V.get(16)
        self.wait_vm('x')
        self.stamp('xland')
        for f in range(4):
            for t in range(2): p(f'ds_read_b64_tr_b16 {FA[4*f+2*t:4*f+2*t+2]}, {self.aXR} offset:{512*f+128*t}')
        self.fft1024(FA, Dr, Di, (6, 4, 2, 0))
        for g in range(4):
            for jj in range(4): p(f'v_cvt_pk_bf16_f32 {FA[4*g+jj]}, {Dr[4*g+jj]}, {Di[4*g+jj]}')
            p(f'ds_write_b128 {self.aZW}, {FA[4*g:4*g+4]} offset:{64*(g>>1)+16*(g&1)}')
        sa, st0, st1 = self.sa, self.st0, self.st1
        p(f'''s_lshl_b32 {st0}, {self.sV}, 18
        s_lshl_b32 {st1}, {self.sC}, 6
        s_add_u32 {st0}, {st0}, {st1}''')
        self.addr64(sa, self.ws, st0)
        p('s_waitcnt lgkmcnt(0)\ns_barrier')
        for t in range(4):
            p(f'ds_read2st64_b32 {FA[4*t:4*t+2]}, {self.aZR[t]} offset0:0 offset1:18\nds_read2st64_b32 {FA[4*t+2:4*t+4]}, {self.aZR[t]} offset0:36 offset1:54')
        for t in range(4):
            p(f's_waitcnt lgkmcnt({6-2*t})')
            p(f'v_mfma_f32_16x16x32_bf16 {Dr[4*t:4*t+4]}, {self.R4a}, {FA[4*t:4*t+4]}, 0\nv_mfma_f32_16x16x32_bf16 {Di[4*t:4*t+4]}, {self.R4b}, {FA[4*t:4*t+4]}, 0')
        for t in range(4):
            o = FA[4*t:4*t+4]
            p(f'''v_cvt_pk_bf16_f32 {o[0]}, {Dr[4*t]}, {Dr[4*t+1]}
            v_cvt_pk_bf16_f32 {o[1]}, {Dr[4*t+2]}, {Dr[4*t+3]}
            v_cvt_pk_bf16_f32 {o[2]}, {Di[4*t]}, {Di[4*t+1]}
            v_cvt_pk_bf16_f32 {o[3]}, {Di[4*t+2]}, {Di[4*t+3]}''')
            self.tag4(o)
            if t: self.addr64(sa, sa, 4*16384)
            self.vm(f'global_store_dwordx4 {self.aC}, {o}, {sa} sc1', 't1st')
        self.stamp('t1st')
        l0, l1 = self.label('x0'), self.label('x1')
        t = Dr
        p(f'''s_cmp_lg_u32 {self.sV}, 0
        s_cbranch_scc1 {l0}
        ds_read2st64_b32 {t[0:2]}, {self.aZX} offset0:0 offset1:18
        ds_read2st64_b32 {t[2:4]}, {self.aZX} offset0:36 offset1:54
        v_lshrrev_b32 {t[8]}, 4, {self.L}
        v_lshlrev_b32 {t[8]}, 12, {t[8]}
        s_lshl_b32 {st0}, {self.sC}, 4
        s_add_u32 {st0}, {st0}, {T1X}''')
        self.addr64(sa, self.ws, st0)
        p(f'''s_waitcnt lgkmcnt(0)
        v_mfma_f32_16x16x32_bf16 {t[4:8]}, {self.R4a}, {t[0:4]}, 0
        v_cvt_pk_bf16_f32 {t[0]}, {t[4]}, {t[5]}
        v_cvt_pk_bf16_f32 {t[2]}, {t[6]}, {t[7]}
        v_mov_b32 {t[1]}, {self.sN}
        v_mov_b32 {t[3]}, {self.sN}
        s_mov_b32 exec_lo, 0x00010001
        s_mov_b32 exec_hi, 0x00010001
        global_store_dwordx4 {t[8]}, {t[0:4]}, {sa} sc1
        s_mov_b64 exec, -1
        s_branch {l1}
        {l0}:
        s_waitcnt vmcnt({self.after('wx')})
        v_lshlrev_b32 {t[10]}, 16, {self.WXV}
        v_and_b32 {t[11]}, 3, {self.L}
        v_cmp_eq_u32 vcc, 3, {t[11]}
        v_cndmask_b32 {t[10]}, {t[10]}, -{t[10]}, vcc
        v_add_f32_dpp {t[11]}, {t[10]}, {t[10]} quad_perm:[1,0,3,2] row_mask:0xf bank_mask:0xf
        v_mul_f32 {t[11]}, 0.5, {t[11]}
        v_mov_b32_dpp {t[10]}, {t[11]} quad_perm:[2,3,0,1] row_mask:0xf bank_mask:0xf
        v_cvt_pk_bf16_f32 {t[10]}, {t[11]}, {t[10]}
        v_and_b32 {t[12]}, 1, {self.L}
        v_cmp_eq_u32 vcc, 1, {t[12]}
        v_mov_b32 {t[11]}, {self.sN}
        v_cndmask_b32 {t[10]}, {t[10]}, {t[11]}, vcc
        v_bfe_u32 {t[11]}, {self.L}, 2, 2
        v_lshlrev_b32 {t[11]}, 3, {t[11]}
        v_lshl_add_u32 {t[11]}, {t[12]}, 2, {t[11]}
        v_lshrrev_b32 {t[12]}, 4, {self.L}
        v_lshl_add_u32 {t[11]}, {t[12]}, 13, {t[11]}
        s_lshl_b32 {st0}, {self.sC}, 5
        s_add_u32 {st0}, {st0}, {WX}''')
        self.addr64(sa, self.ws, st0)
        p(f'''s_mov_b32 exec_lo, 0x33333333
        s_mov_b32 exec_hi, 0x33333333
        global_store_dword {t[11]}, {t[10]}, {sa} sc1
        s_mov_b64 exec, -1
        {l1}:''')
        self.vmlog.append('extra')
        V.put(FA, Dr, Di, self.aXR, self.aZW, self.aZR, self.aZX, self.WXV)
        self.A.put(self.R4a, self.R4b)

    def wstage(self):
        p, V = self.P, self.V
        a = V.get()
        p(f's_lshl_b32 {self.st0}, {self.sV}, 10\ns_add_u32 {self.st0}, {self.st0}, {WS}\nv_add_u32 {a}, {self.st0}, {self.L16}')
        for rho in range(4):
            for s in range(4): p(f'ds_write_b32 {a}, {self.WL[4*rho+s]} offset:{4096*s+4*rho}')
        p('s_waitcnt lgkmcnt(0)\ns_barrier')
        V.put(a)
    def consts2(self):
        p, V, A, L = self.P, self.V, self.A, self.L
        self.C16r, self.C16i = A.get(4), A.get(4)
        self.T16c, self.T16s, self.Cm, self.Sm = V.get(4), V.get(4), V.get(4), V.get(4)
        k, b, an, c, s, d = V.get(), V.get(), V.get(), V.get(), V.get(), V.get()
        p(f'''v_cvt_f32_u32 {k}, {self.L15}
        v_cvt_f32_u32 {b}, {self.GK}
        v_mul_f32 {k}, {fl(1/16)}, {k}
        v_mul_f32 {d}, {b}, {k}
        v_mul_f32 {d}, 4.0, {d}''')
        e = V.get()
        for jj in range(4):
            p(f'''v_fmamk_f32 {an}, {k}, {fl(jj)}, {d}
            v_cos_f32 {c}, {an}
            v_sin_f32 {s}, {an}
            v_mul_f32 {an}, {fl(1/16)}, {an}
            v_cvt_pk_bf16_f32 {e}, {c}, {s}
            v_cos_f32 {self.T16c[jj]}, {an}
            v_accvgpr_write_b32 {self.C16r[jj]}, {e}
            v_cvt_pk_bf16_f32 {e}, -{s}, {c}
            v_sin_f32 {self.T16s[jj]}, {an}
            v_accvgpr_write_b32 {self.C16i[jj]}, {e}''')
        p(f'''v_lshlrev_b32 {c}, 8, {self.GK}
        v_lshl_add_u32 {c}, {self.L15}, 2, {c}
        v_add_u32 {c}, {self.sR}, {c}
        v_cvt_f32_u32 {c}, {c}
        v_mul_f32 {c}, {fl(1/2048)}, {c}''')
        for rho in range(4):
            p(f'''v_add_f32 {an}, {fl(rho/32)}, {c}
            v_sin_f32 {self.Cm[rho]}, {an}
            v_cos_f32 {self.Sm[rho]}, {an}''')
        self.aXW, self.aXI, self.aEW, self.aT2s = V.get(), V.get(), V.get(), V.get()
        p(f'''v_and_b32 {an}, 3, {L}
        v_mul_u32_u24 {c}, {XS1}, {an}
        v_lshrrev_b32 {s}, 2, {L}
        v_lshl_add_u32 {c}, {s}, 6, {c}
        v_and_b32 {d}, 1, {self.GK}
        v_lshlrev_b32 {d}, 1, {d}
        v_xor_b32 {d}, {self.sV}, {d}
        v_lshl_add_u32 {self.aXW}, {d}, 4, {c}
        v_and_b32 {d}, 1, {s}
        v_lshlrev_b32 {d}, 1, {d}
        v_xor_b32 {d}, {self.GK}, {d}
        v_lshlrev_b32 {d}, 4, {d}
        v_lshl_add_u32 {d}, {self.L15}, 6, {d}
        s_mul_i32 {self.st0}, {self.sV}, {XS1}
        v_add_u32 {self.aXI}, {self.st0}, {d}
        v_lshrrev_b32 {c}, 3, {L}
        v_sub_u32 {c}, {L}, {c}
        v_and_b32 {c}, 3, {c}
        v_lshlrev_b32 {c}, 4, {c}
        v_lshl_add_u32 {self.aT2s}, {s}, 14, {c}
        v_lshlrev_b32 {c}, 12, {self.GK}
        v_lshl_add_u32 {c}, {self.L15}, 6, {c}
        v_bfe_u32 {s}, {L}, 1, 3
        v_add_u32 {s}, {self.sV}, {s}
        v_and_b32 {s}, 3, {s}
        v_lshl_add_u32 {self.aEW}, {s}, 4, {c}''')
        V.put(k, b, an, c, s, d, e)
    def mcalc(self, M, W0r, W0i, W1r, W1i):
        p = self.P
        for h in range(2):
            s2 = lambda R: R[2*h:2*h+2]
            for (a, b, pp, mm, nn) in ((W0r, W1r, M[0], M[2], M[4]), (W0i, W1i, M[1], M[3], M[5])):
                p(f'''v_pk_add_f32 {s2(nn)}, {s2(a)}, {s2(b)} neg_lo:[0,1] neg_hi:[0,1]
                v_pk_add_f32 {s2(a)}, {s2(a)}, {s2(b)}
                v_pk_fma_f32 {s2(pp)}, {s2(self.Cm)}, {s2(nn)}, {s2(a)} neg_lo:[1,0,0] neg_hi:[1,0,0]
                v_pk_fma_f32 {s2(mm)}, {s2(self.Cm)}, {s2(nn)}, {s2(a)}
                v_pk_mul_f32 {s2(nn)}, {s2(self.Sm)}, {s2(nn)}''')
    def mpre(self):
        p, V, S = self.P, self.V, self.S
        a = V.get(); R = self.WL
        p(f's_lshl_b32 {self.st0}, {self.sV}, 12\ns_add_u32 {self.st0}, {self.st0}, {WS}\nv_add_u32 {a}, {self.st0}, {self.L16}')
        for ah in range(4): p(f'ds_read_b128 {R[4*ah:4*ah+4]}, {a} offset:{1024*ah}')
        self.M = [[V.get(4) for _ in range(6)] for _ in range(2)]
        U = V.get(16)
        p('s_waitcnt lgkmcnt(0)')
        for u in range(2):
            for i in range(16):
                p(f'v_lshlrev_b32 {U[i]}, 16, {R[i]}' if u == 0 else f'v_and_b32 {U[i]}, 0xffff0000, {R[i]}')
            self.mcalc(self.M[u], U[0:4], U[4:8], U[8:12], U[12:16])
        self.N2 = [V.get(4), V.get(4)]
        self.sSP = S.get()
        lb = self.label('nosp')
        X = V.get(32); acc = V.get(); junk = [V.get(4), V.get(4)]
        lsp = self.label('spm')
        p(f'''s_or_b32 {self.sSP}, {self.sG}, {self.sV}
        s_cmp_eq_u32 {self.sSP}, 0
        s_cbranch_scc1 {lsp}
        {lb}:''')
        self.begin_ool(lsp)
        p(f'''s_lshl_b32 {self.st0}, {self.sR}, 13
        s_add_u32 {self.st0}, {self.st0}, {WX}
        v_lshlrev_b32 {a}, 11, {self.GK}
        v_lshl_add_u32 {a}, {self.L15}, 5, {a}''')
        self.addr64(self.sa, self.ws, self.st0)
        def issue():
            for i in range(4):
                for h in range(2): p(f'global_load_dwordx4 {X[8*i+4*h:8*i+4*h+4]}, {a}, {self.sa} offset:{512*i+16*h} sc1')
        def check():
            for i in range(8):
                p(f'v_bitop3_b32 {U[0]}, {X[4*i+1]}, {X[4*i+3]}, {self.sN} bitop3:0x7e')
                p(f'v_or_b32 {acc}, {U[0]}, {acc}' if i else f'v_mov_b32 {acc}, {U[0]}')
            p(f'v_cmp_ne_u32 vcc, 0, {acc}')
        issue(); self.poll(issue, check, 0)
        M0 = self.M[0]
        for col in range(2):
            for half in range(2):
                for i in range(4):
                    src = X[8*i+4*col+2*half]
                    p(f'v_lshlrev_b32 {U[8*half+i]}, 16, {src}\nv_and_b32 {U[8*half+4+i]}, 0xffff0000, {src}')
            MM = [M0[0], M0[1], junk[0], junk[1], M0[4], M0[5]] if col == 0 else [junk[0], junk[1], M0[2], M0[3], self.N2[0], self.N2[1]]
            self.mcalc(MM, U[0:4], U[4:8], U[8:12], U[12:16])
        p(f's_branch {lb}')
        self.end_ool()
        V.put(a, U, X, acc, *junk, self.WL, self.Cm, self.Sm)

    def t1_issue_setup(self):
        S, V = self.S, self.V
        self.sT1 = S.get(2); self.TL = V.get(16)
        self.p(f's_lshl_b32 {self.st0}, {self.sC}, 14\ns_lshl_b32 {self.st1}, {self.sV}, 12\ns_add_u32 {self.st0}, {self.st0}, {self.st1}')
        self.addr64(self.sT1, self.ws, self.st0)
    def t1_issue(self):
        for i in range(4): self.vm(f'global_load_dwordx4 {self.TL[4*i:4*i+4]}, {self.L16}, {self.sT1} offset:{1024*i} sc1', 't1ld')
    def middle(self, M, Pr, Pi, Qr, Qi, Fp, Fm, Pxr=None, Pxi=None, Qxr=None, Qxi=None, N2=None):
        p, V = self.P, self.V
        ppr, ppi, mmr, mmi, nr, ni = M
        n2r, n2i = N2 or (nr, ni)
        Pxr, Pxi, Qxr, Qxi = Pxr or Pr, Pxi or Pi, Qxr or Qr, Qxi or Qi
        T = V.get(8)
        N = ' neg_lo:[1,0,0] neg_hi:[1,0,0]'
        for h in range(2):
            s = lambda R: R[2*h:2*h+2]
            a, b, c, d = T[0:2], T[2:4], T[4:6], T[6:8]
            p(f'''v_pk_mul_f32 {a}, {s(ppr)}, {s(Pr)}
            v_pk_mul_f32 {b}, {s(ppr)}, {s(Pi)}
            v_pk_mul_f32 {c}, {s(mmr)}, {s(Qr)}
            v_pk_mul_f32 {d}, {s(mmr)}, {s(Qi)}
            v_pk_fma_f32 {a}, {s(ppi)}, {s(Pi)}, {a}{N}
            v_pk_fma_f32 {b}, {s(ppi)}, {s(Pr)}, {b}
            v_pk_fma_f32 {c}, {s(mmi)}, {s(Qi)}, {c}{N}
            v_pk_fma_f32 {d}, {s(mmi)}, {s(Qr)}, {d}
            v_pk_fma_f32 {a}, {s(ni)}, {s(Qxr)}, {a}{N}
            v_pk_fma_f32 {b}, {s(nr)}, {s(Qxr)}, {b}
            v_pk_fma_f32 {c}, {s(n2r)}, {s(Pxi)}, {c}
            v_pk_fma_f32 {d}, {s(n2r)}, {s(Pxr)}, {d}{N}
            v_pk_fma_f32 {a}, {s(nr)}, {s(Qxi)}, {a}{N}
            v_pk_fma_f32 {b}, {s(ni)}, {s(Qxi)}, {b}{N}
            v_pk_fma_f32 {c}, {s(n2i)}, {s(Pxr)}, {c}
            v_pk_fma_f32 {d}, {s(n2i)}, {s(Pxi)}, {d}''')
            for e in range(2):
                p(f'v_cvt_pk_bf16_f32 {Fp[2*h+e]}, {b[e]}, {a[e]}\nv_cvt_pk_bf16_f32 {Fm[2*h+e]}, {d[e]}, {c[e]}')
        V.put(T)
    def phase2(self, after_check=None):
        p, V, S = self.P, self.V, self.S
        TL = self.TL; F, Dr, Di = V.get(16), V.get(16), V.get(16)
        acc = V.get(); t = V.get(2)
        self.poll(self.t1_issue, lambda: self.check16(TL, acc, t), self.after('t1ld'))
        self.stamp('t1ok')
        for s in range(4):
            for i in range(4): p(f'v_mov_b32 {F[4*s+i]}, {TL[4*i+s]}')
            p(f'ds_write_b128 {self.aXW}, {F[4*s:4*s+4]} offset:{XI+1024*s}')
        if after_check: after_check()
        p('s_waitcnt lgkmcnt(0)\ns_barrier')
        for s in range(4): p(f'ds_read_b128 {F[4*s:4*s+4]}, {self.aXI} offset:{XI+1024*s}')
        lb, lep = self.label('ep'), self.label('epo')
        p(f's_or_b32 {self.st0}, {self.sC}, {self.sV}\ns_cmp_eq_u32 {self.st0}, 0\ns_cbranch_scc1 {lep}\n{lb}:')
        self.begin_ool(lep)
        p(f'''s_add_u32 {self.st0}, {self.sE}, 1
        v_mov_b32 {t[0]}, {self.st0}
        v_mov_b32 {t[1]}, 0
        s_mov_b64 exec, 1
        global_store_dword {t[1]}, {t[0]}, {self.sb}
        s_mov_b64 exec, -1
        s_waitcnt vmcnt(0)
        s_branch {lb}''')
        self.end_ool()
        q = lambda R, s: R[4*s:4*s+4]
        self.fft256(F, Dr, Di, (3, 2, 1, 0))
        lsp, ldone = self.label('sp'), self.label('spd')
        p(f's_cmp_eq_u32 {self.sSP}, 0\ns_cbranch_scc1 {lsp}')
        self.middle(self.M[0], q(Dr,0), q(Di,0), q(Dr,1), q(Di,1), q(F,0), q(F,1))
        p(f'{ldone}:')
        self.begin_ool(lsp)
        X, FX, Xr, Xi = TL, V.get(8), V.get(8), V.get(8); a = V.get()
        p(f's_lshl_b32 {self.st0}, {self.sR}, 12\ns_add_u32 {self.st0}, {self.st0}, {T1X}\nv_lshlrev_b32 {a}, 10, {self.GK}\nv_lshl_add_u32 {a}, {self.L15}, 4, {a}')
        self.addr64(self.sa, self.ws, self.st0)
        def issue():
            for i in range(4): p(f'global_load_dwordx4 {X[4*i:4*i+4]}, {a}, {self.sa} offset:{256*i} sc1')
        def check():
            for i in range(4):
                p(f'v_bitop3_b32 {t[0]}, {X[4*i+1]}, {X[4*i+3]}, {self.sN} bitop3:0x7e')
                p(f'v_or_b32 {acc}, {t[0]}, {acc}' if i else f'v_mov_b32 {acc}, {t[0]}')
            p(f'v_cmp_ne_u32 vcc, 0, {acc}')
        issue(); self.poll(issue, check, 0)
        for s in range(2):
            for i in range(4): p(f'v_mov_b32 {FX[4*s+i]}, {X[4*i+2*s]}')
        self.fft256(FX, Xr, Xi)
        self.middle(self.M[0], q(Dr,0), q(Di,0), q(Dr,1), q(Di,1), q(F,0), q(F,1), q(Xr,0), q(Xi,0), q(Xr,1), q(Xi,1), self.N2)
        p(f's_branch {ldone}')
        self.end_ool()
        V.put(FX, Xr, Xi, a)
        self.middle(self.M[1], q(Dr,2), q(Di,2), q(Dr,3), q(Di,3), q(F,2), q(F,3))
        self.fft256(F, Dr, Di)
        for rho in range(4):
            o = F[4*rho:4*rho+4]
            for s in range(4): p(f'v_cvt_pk_bf16_f32 {o[s]}, {Di[4*s+rho]}, {Dr[4*s+rho]}')
            self.tag4(o)
            p(f'ds_write_b128 {self.aEW}, {o} offset:{EX+1024*rho}')
        sa, st0, st1 = self.sa, self.st0, self.st1
        p(f'''s_lshl_b32 {st0}, {self.sV}, 12
        s_add_u32 {st0}, {st0}, {EX}
        v_add_u32 {acc}, {st0}, {self.L16}
        s_lshl_b32 {st0}, {self.sV}, 20
        s_lshl_b32 {st1}, {self.sC}, 6
        s_add_u32 {st0}, {st0}, {st1}
        s_add_u32 {st0}, {st0}, {T2}''')
        self.addr64(sa, self.ws, st0)
        p('s_waitcnt lgkmcnt(0)\ns_barrier')
        for i in range(4): p(f'ds_read_b128 {Dr[4*i:4*i+4]}, {acc} offset:{1024*i}')
        for i in range(4):
            if i: self.addr64(sa, sa, 16*16384)
            p(f's_waitcnt lgkmcnt({3-i})')
            self.vm(f'global_store_dwordx4 {self.aT2s}, {Dr[4*i:4*i+4]}, {sa} sc1', 't2st')
        self.stamp('t2st')
        V.put(F, Dr, Di, acc, t, self.aXW, self.aXI, self.aEW, self.aT2s, self.T16c, self.T16s, *self.M[0], *self.M[1], *self.N2)
        self.A.put(self.C16r, self.C16i); S.put(self.sT1)

    def consts3(self):
        p, V, A, S, L = self.P, self.V, self.A, self.S, self.L
        self.R4l, self.R4h = A.get(4), A.get(4)
        k, b, an, c, s, d = V.get(), V.get(), V.get(), V.get(), V.get(), V.get()
        m1, m2 = S.get(2), S.get(2)
        p(f'''v_bfe_u32 {k}, {L}, 3, 1
        v_bfe_u32 {b}, {L}, 1, 1
        v_lshl_add_u32 {k}, {k}, 1, {b}
        v_lshlrev_b32 {k}, 8, {k}
        v_add_u32 {k}, {self.sC}, {k}
        v_cvt_f32_u32 {k}, {k}
        v_mul_f32 {k}, {fl(1/1024)}, {k}
        v_and_b32 {b}, 1, {L}
        v_cvt_f32_u32 {b}, {b}
        v_mul_f32 {b}, {fl(-0.25)}, {b}
        v_bfe_u32 {c}, {L}, 2, 1
        v_cmp_eq_u32 {m1}, {c}, {self.GK}
        v_add_u32 {c}, 2, {c}
        v_cmp_eq_u32 {m2}, {c}, {self.GK}''')
        for r in range(4):
            p(f'''v_fmamk_f32 {an}, {k}, {fl(r)}, {b}
            v_cos_f32 {c}, {an}
            v_sin_f32 {s}, {an}
            v_mul_f32 {c}, {fl(2.0**-21)}, {c}
            v_mul_f32 {s}, {fl(-2.0**-21)}, {s}
            v_cvt_pk_bf16_f32 {d}, {c}, {s}
            v_cndmask_b32 {c}, 0, {d}, {m1}
            v_cndmask_b32 {s}, 0, {d}, {m2}
            v_accvgpr_write_b32 {self.R4l[r]}, {c}
            v_accvgpr_write_b32 {self.R4h[r]}, {s}''')
        S.put(m1, m2)
        self.aVW = V.get(4); self.aVR = V.get(4); self.aO = V.get()
        def vaddr(dst, q):
            p(f'''v_and_b32 {c}, 31, {q}
            v_lshrrev_b32 {s}, 5, {q}
            v_bfe_u32 {d}, {q}, 1, 3
            v_lshlrev_b32 {d}, 2, {d}
            v_xor_b32 {s}, {s}, {d}
            v_lshlrev_b32 {s}, 2, {s}
            v_lshl_add_u32 {s}, {c}, 7, {s}
            v_add_u32 {dst}, {s}, {b}''')
        m1 = S.get(2)
        p(f'''v_and_b32 {k}, 1, {self.GK}
        v_lshlrev_b32 {k}, 5, {k}
        v_lshl_add_u32 {k}, {self.L15}, 1, {k}
        s_lshl_b32 {self.st0}, {self.sV}, 7
        v_add_u32 {k}, {self.st0}, {k}
        v_lshlrev_b32 {b}, 13, {self.H}''')
        vaddr(self.aVW[0], k)
        p(f'v_sub_u32 {an}, {1024-1-64}, {k}'); vaddr(self.aVW[1], an)
        p(f'v_sub_u32 {an}, {1024-64}, {k}'); vaddr(self.aVW[3], an)
        p(f'''v_sub_u32 {an}, 0x400, {k}
        v_cmp_eq_u32 {m1}, 0, {k}
        v_mov_b32 {c}, 0x200
        v_cndmask_b32 {an}, {an}, {c}, {m1}''')
        vaddr(self.aVW[2], an)
        S.put(m1)
        p(f'''v_and_b32 {k}, 31, {L}
        v_bfe_u32 {c}, {L}, 1, 3
        v_xor_b32 {c}, {c}, {self.H}
        v_lshlrev_b32 {c}, 4, {c}
        v_lshl_add_u32 {k}, {k}, 7, {c}
        s_lshl_b32 {self.st0}, {self.sV}, 12
        v_add_u32 {self.aVR[0]}, {self.st0}, {k}''')
        for f in range(1, 4): p(f'v_xor_b32 {self.aVR[f]}, {32*f}, {self.aVR[0]}')
        p(f'v_lshlrev_b32 {k}, 4, {self.H}\nv_lshl_add_u32 {self.aO}, {self.PI}, 6, {k}')
        V.put(k, b, an, c, s, d)
        self.sT2 = [S.get(2), S.get(2)]
        p(f's_lshl_b32 {self.st0}, {self.sC}, 14\ns_lshl_b32 {self.st1}, {self.sV}, 10\ns_add_u32 {self.st0}, {self.st0}, {self.st1}\ns_add_u32 {self.st0}, {self.st0}, {T2+4096}')
        self.addr64(self.sT2[0], self.ws, self.st0)
        self.addr64(self.sT2[1], self.sT2[0], 8192)
    def t2_issue(self):
        for r in range(4): self.vm(f'global_load_dwordx4 {self.TL[4*r:4*r+4]}, {self.L16}, {self.sT2[r>>1]} offset:{-4096*(1-(r&1))} sc1', 't2ld')
    def phase3(self):
        p, V, S = self.P, self.V, self.S
        TL = self.TL; F, Dr, Di = V.get(16), V.get(16), V.get(16)
        acc = V.get(); t = V.get(2)
        self.poll(self.t2_issue, lambda: self.check16(TL, acc, t), self.after('t2ld'))
        self.stamp('t2ok')
        for s in range(4):
            for i in range(4): p(f'v_mov_b32 {F[4*s+i]}, {TL[4*i+s]}')
        for s in range(4):
            p(f'v_mfma_f32_16x16x32_bf16 {Dr[4*s:4*s+4]}, {self.R4l}, {F[4*s:4*s+4]}, 0\nv_mfma_f32_16x16x32_bf16 {Di[4*s:4*s+4]}, {self.R4h}, {F[4*s:4*s+4]}, 0')
        for s in range(4):
            e, up = s >> 1, s & 1
            for hi, D in ((0, Dr), (1, Di)):
                for ml in range(2):
                    o = TL[4*s+2*hi+ml]
                    p(f'v_cvt_pk_bf16_f32 {o}, {"-" if up else ""}{D[4*s+2*ml+1]}, {D[4*s+2*ml]}')
                    if not up: a, off = self.aVW[0], 128*e + 8*hi
                    elif e: a, off = self.aVW[1], 8*(1-hi)
                    else: a, off = self.aVW[2+hi], 0
                    p(f'ds_write_b32 {a}, {o} offset:{off + 4096*ml}')
        sa, st0 = self.sa, self.st0
        p(f's_lshl_b32 {st0}, {self.sV}, 8\ns_add_u32 {st0}, {st0}, {self.sC}\ns_lshl_b32 {st0}, {st0}, 13\ns_add_u32 {st0}, {st0}, 4096')
        self.addr64(sa, self.out, st0)
        p('s_waitcnt lgkmcnt(0)\ns_barrier')
        for f in range(4): p(f'ds_read_b128 {F[4*f:4*f+4]}, {self.aVR[f]}')
        self.fft1024(F, Dr, Di, (3, 2, 1, 0))
        for row, D in ((0, Di), (1, Dr)):
            for hf in range(2):
                o = F[8*row+4*hf:8*row+4*hf+4]
                for k in range(4): p(f'v_cvt_pk_bf16_f32 {o[k]}, {D[8*hf+2*k]}, {D[8*hf+2*k+1]}')
                self.vm(f'global_store_dwordx4 {self.aO}, {o}, {sa} offset:{-4096*(1-row)+32*hf} {self.flag("out")}', 'out')
        self.stamp('outst')
        V.put(F, Dr, Di, acc, t, self.aVW, self.aVR, self.aO)
        S.put(*self.sT2); self.A.put(self.R4l, self.R4h)

    def tu_produce(self):
        p, V = self.P, self.V
        a, o, R = V.get(), V.get(), V.get(16)
        t = V.get(); L = self.L; sa, st0, st1 = self.sa, self.st0, self.st1
        p(f"""v_bfe_u32 {a}, {L}, 2, 2
        v_lshlrev_b32 {a}, 7, {a}
        v_lshrrev_b32 {t}, 4, {L}
        v_lshl_add_u32 {a}, {t}, 5, {a}
        v_and_b32 {t}, 3, {L}
        v_lshl_add_u32 {a}, {t}, 3, {a}
        s_lshl_b32 {st0}, {self.sV}, 12
        s_add_u32 {st0}, {st0}, {US}
        v_add_u32 {a}, {st0}, {a}""")
        for b in range(4):
            for h in range(2): p(f'ds_read_b64_tr_b16 {R[4*b+2*h:4*b+2*h+2]}, {a} offset:{1024*b+512*h}')
        p(f"""v_lshlrev_b32 {t}, 4, {t}
        v_lshrrev_b32 {o}, 2, {L}
        v_lshl_add_u32 {o}, {o}, 14, {t}
        s_lshr_b32 {st0}, {self.sC}, 4
        s_lshl_b32 {st0}, {st0}, 18
        s_and_b32 {st1}, {self.sC}, 15
        s_lshl_b32 {st1}, {st1}, 10
        s_add_u32 {st0}, {st0}, {st1}
        s_lshl_b32 {st1}, {self.sV}, 8
        s_add_u32 {st0}, {st0}, {st1}
        s_add_u32 {st0}, {st0}, {TU}""")
        self.addr64(sa, self.ws, st0)
        for b in range(4):
            p(f's_waitcnt lgkmcnt({6-2*b})')
            self.tag4(R[4*b:4*b+4])
            self.vm(f'global_store_dwordx4 {o}, {R[4*b:4*b+4]}, {sa} offset:{64*b} sc1', 'tust')
        V.put(a, o, R, t)
    def tu_setup(self):
        p, V, S = self.P, self.V, self.S
        self.aUW = V.get(); self.sTU = S.get(2); t = V.get()
        p(f"""v_and_b32 {t}, 3, {self.L}
        v_mul_u32_u24 {self.aUW}, {BW}, {t}
        v_lshrrev_b32 {t}, 2, {self.L}
        v_lshl_add_u32 {self.aUW}, {t}, 4, {self.aUW}
        s_lshl_b32 {self.st0}, {self.sV}, 10
        s_add_u32 {self.st0}, {self.st0}, {BB}
        v_add_u32 {self.aUW}, {self.st0}, {self.aUW}
        s_lshl_b32 {self.st0}, {self.sC}, 14
        s_lshl_b32 {self.st1}, {self.sV}, 12
        s_add_u32 {self.st0}, {self.st0}, {self.st1}
        s_add_u32 {self.st0}, {self.st0}, {TU}""")
        self.addr64(self.sTU, self.ws, self.st0)
        V.put(t)
    def tu_issue(self):
        if not hasattr(self, 'UL'): self.UL = self.V.get(16)
        for i in range(4): self.vm(f'global_load_dwordx4 {self.UL[4*i:4*i+4]}, {self.L16}, {self.sTU} offset:{1024*i} sc1', 'tuld')
    def tu_consume(self):
        p, V = self.P, self.V
        acc, t = V.get(), V.get(2)
        self.poll(self.tu_issue, lambda: self.check16(self.UL, acc, t), self.after('tuld'))
        for i in range(4): p(f'ds_write_b128 {self.aUW}, {self.UL[4*i:4*i+4]} offset:{UT+256*i}')
        V.put(acc, t, self.UL, self.aUW); self.S.put(self.sTU)

    def cmul(self, items):
        p = self.P
        for i, (d, x, e) in enumerate(items): p(f'v_pk_mul_f32 {self.CT[2*i:2*i+2]}, {x}, {e} op_sel:[0,0] op_sel_hi:[0,1]')
        for i, (d, x, e) in enumerate(items): p(f'v_pk_fma_f32 {d}, {x}, {e}, {self.CT[2*i:2*i+2]} op_sel:[1,1,0] op_sel_hi:[1,0,1] neg_lo:[0,1,0]')
    def krow(self, row, X, neg=False):
        p = self.P; o = self.KO[2*(row & 1):2*(row & 1)+2]
        for u in range(2): p(f'v_cvt_pk_bf16_f32 {o[u]}, {X[u][0]}, {"-" if neg else ""}{X[u][1]}')
        p(f'ds_write_b64 {self.aKW}, {o} offset:{KT+528*row}')
    def kgen_setup(self):
        p, V, S, L = self.P, self.V, self.S, self.L
        self.sB = S.get(); st0, st1 = self.st0, self.st1
        self.E = {n: [V.get(2), V.get(2)] for n in (1, 8, 128)}
        self.KY = [V.get(2), V.get(2)]; self.KX = [V.get(2), V.get(2)]; self.CT = V.get(4); self.KO = V.get(4)
        self.aKW, self.aKR = V.get(), V.get()
        dt, t0, t1, t2 = V.get(), V.get(), V.get(), V.get(); z = V.get(4)
        LOG2E = math.log2(math.e); hi = struct.unpack('<f', struct.pack('<f', LOG2E))[0]
        p(f"""s_mul_i32 {self.sB}, {self.sV}, {BW}
        s_add_u32 {self.sB}, {self.sB}, {BB}
        s_and_b32 {st0}, {self.sD}, 1
        s_lshl_b32 {st0}, {st0}, 4
        s_lshr_b32 {self.sLD}, {self.sLD}, {st0}
        s_lshl_b32 {self.sLD}, {self.sLD}, 16
        s_lshr_b32 {self.sDS}, {self.sDS}, {st0}
        s_lshl_b32 {self.sDS}, {self.sDS}, 16
        v_mov_b32 {t0}, {fl(hi)}
        v_mul_f32 {t1}, {self.sLD}, {t0}
        v_fma_f32 {t2}, {self.sLD}, {t0}, -{t1}
        v_mov_b32 {t0}, {fl(LOG2E-hi)}
        v_exp_f32 {dt}, {t1}
        v_fmac_f32 {t2}, {self.sLD}, {t0}
        v_mul_f32 {t2}, {fl(math.log(2))}, {t2}
        v_fmac_f32 {dt}, {dt}, {t2}
        v_cvt_pk_bf16_f32 {dt}, {dt}, {dt}
        v_lshlrev_b32 {dt}, 16, {dt}
        v_lshl_add_u32 {self.aKW}, {L}, 3, {self.sB}
        v_mul_u32_u24 {t0}, 528, {self.L15}
        v_lshl_add_u32 {t0}, {self.GK}, 4, {t0}
        v_add_u32 {self.aKR}, {self.sB}, {t0}
        v_mov_b32 {z[0]}, 0
        v_mov_b32 {z[1]}, 0
        v_mov_b32 {z[2]}, 0
        v_mov_b32 {z[3]}, 0
        v_lshl_add_u32 {t0}, {self.L15}, 4, {self.sB}
        ds_write_b128 {t0}, {z}
        v_and_b32 {t0}, 31, {L}
        v_lshl_add_u32 {t0}, {t0}, 4, {self.sB}
        ds_write_b128 {t0}, {z} offset:{UZ}""")
        un = lambda d, src, u: p(f'v_lshlrev_b32 {d}, 16, {src}' if u == 0 else f'v_and_b32 {d}, 0xffff0000, {src}')
        PR = self.PR
        for u in range(2):
            X, Y = self.KX[u], self.KY[u]
            un(X[0], PR[2], u); un(X[1], PR[3], u); un(Y[0], PR[4], u); un(Y[1], PR[5], u)
            p(f'v_mul_f32 {X[0]}, {dt}, {X[0]}\nv_mul_f32 {X[1]}, {dt}, {X[1]}')
        self.cmul([(self.KY[u], self.KY[u], self.KX[u]) for u in range(2)])
        for u in range(2):
            a, b = z[2*u], z[2*u+1]
            un(a, PR[0], u); un(b, PR[1], u)
            p(f"""v_mul_f32 {a}, {dt}, {a}
            v_mul_f32 {b}, {dt}, {b}
            v_mul_f32 {a}, {fl(LOG2E)}, {a}
            v_mul_f32 {b}, {fl(1/(2*math.pi))}, {b}""")
        for n in (1, 8, 128):
            for u in range(2):
                a, b = z[2*u], z[2*u+1]; E = self.E[n][u]
                if n == 1: p(f'v_exp_f32 {t0}, {a}\nv_fract_f32 {t1}, {b}')
                else: p(f'v_mul_f32 {t0}, {fl(n)}, {a}\nv_mul_f32 {t1}, {fl(n)}, {b}\nv_exp_f32 {t0}, {t0}\nv_fract_f32 {t1}, {t1}')
                p(f"""v_cos_f32 {E[0]}, {t1}
                v_sin_f32 {E[1]}, {t1}
                v_mul_f32 {E[0]}, {t0}, {E[0]}
                v_mul_f32 {E[1]}, {t0}, {E[1]}""")
        V.put(dt, t0, t1, t2, z, self.PR)
    def kgen_units(self):
        p, A, V = self.P, self.A, self.V; X, Y, E = self.KX, self.KY, self.E; U = []
        R2 = range(2)
        def first():
            p(f'v_mov_b32 {self.KO[0]}, 0x3f80\nv_mov_b32 {self.KO[1]}, 0x3f80\nds_write_b64 {self.aKW}, {self.KO[0:2]} offset:{KT}')
            self.krow(1, E[8], True)
        U.append(first)
        def unit(dst, src, e, row, neg=False):
            def f():
                self.cmul([(dst[u], src[u], e[u]) for u in R2])
                if row is not None: self.krow(row, dst, neg)
            U.append(f)
        for b in range(2, 16): unit(X, E[8] if b == 2 else X, E[8], b, True)
        U.append(lambda: self.krow(16, Y))
        for a in range(2):
            if a: unit(Y, Y, E[128], 24)
            for j in range(1, 8): unit(X, Y if j == 1 else X, E[1], 16+8*a+j)
        def reads1():
            self.BF, self.AF = A.get(32), [A.get(32), A.get(32), A.get(32)]
            for t in range(8):
                p(f'ds_read_b128 {self.BF[4*t:4*t+4]}, {self.aKR} offset:{KT+64*t}')
                p(f'ds_read_b128 {self.AF[0][4*t:4*t+4]}, {self.aKR} offset:{KT+16*528+64*t}')
        U.append(reads1)
        unit(E[1], E[1], E[1], None); unit(E[8], E[1], E[1], None)
        for a in range(2):
            unit(Y, Y, E[128], 4*a)
            for j in range(1, 4): unit(X, Y if j == 1 else X, E[1], 4*a+j)
        for a in range(4):
            unit(Y, Y, E[128], 8+2*a); unit(X, Y, E[8], 9+2*a)
        for a in range(9): unit(Y, Y, E[128], 16+a)
        def reads2():
            for k in range(1, 3):
                for t in range(8): p(f'ds_read_b128 {self.AF[k][4*t:4*t+4]}, {self.aKR} offset:{KT+16*528*(k-1)+64*t}')
            V.put(*E[1], *E[8], *E[128], *X, *Y, self.CT, self.KO, self.aKW, self.aKR)
        U.append(reads2)
        return U
    def kgen_mfma(self):
        p, V, L = self.P, self.V, self.L
        KD = V.get(12); a0, a1, a2, a3, t = V.get(), V.get(), V.get(), V.get(), V.get(); O = V.get(6)
        for k in range(3):
            p(f's_waitcnt lgkmcnt({(15, 8, 0)[k]})')
            for i in range(8):
                p(f'v_mfma_f32_16x16x32_bf16 {KD[4*k:4*k+4]}, {self.AF[k][4*i:4*i+4]}, {self.BF[4*i:4*i+4]}, {KD[4*k:4*k+4] if i else 0}')
            if k == 0:
                p(f"""v_lshlrev_b32 {a0}, 8, {self.H}
                v_lshl_add_u32 {a0}, {self.L15}, 4, {a0}
                v_and_b32 {t}, 1, {self.GK}
                v_lshl_add_u32 {a0}, {t}, 3, {a0}
                v_add_u32 {a0}, {self.sB}, {a0}
                v_lshl_add_u32 {a3}, {self.GK}, 7, {self.sB}
                v_sub_u32 {t}, 3, {self.H}
                v_lshlrev_b32 {t}, {t}, {self.L15}
                v_add_u32 {a1}, {a3}, {t}
                v_mul_u32_u24 {t}, 60, {self.H}
                v_add3_u32 {a2}, {a1}, {t}, 4
                v_lshl_add_u32 {a3}, {self.L15}, 1, {a3}
                v_cmp_eq_u32 vcc, 0, {L}
                v_mov_b32 {t}, {self.sDS}
                v_cndmask_b32 {t}, 0, {t}, vcc""")
        p(f'v_add_f32 {KD[0]}, {KD[0]}, {t}')
        for i in range(6): p(f'v_cvt_pk_bf16_f32 {O[i]}, {KD[2*i]}, {KD[2*i+1]}')
        p(f"""ds_write_b64 {a0}, {O[0:2]} offset:{KT}
        ds_write_b32 {a1}, {O[2]} offset:{KC}
        ds_write_b32 {a2}, {O[3]} offset:{KC}
        ds_write_b16 {a3}, {O[4]} offset:{KC+512}
        ds_write_b16_d16_hi {a3}, {O[4]} offset:{KC+512+32}
        ds_write_b16 {a3}, {O[5]} offset:{KC+512+64}
        ds_write_b16_d16_hi {a3}, {O[5]} offset:{KC+512+96}""")
        V.put(KD, a0, a1, a2, a3, t, O); self.A.put(self.BF, *self.AF)
    def kexpand(self):
        p, V, S, L = self.P, self.V, self.S, self.L
        sLO, sHI = S.get(), S.get()
        a, b, c = V.get(), V.get(), V.get(); R = V.get(8); O = V.get(16)
        p(f"""v_and_b32 {c}, 31, {L}
        v_lshl_add_u32 {a}, {c}, 3, {self.sB}
        v_lshl_add_u32 {b}, {L}, 2, {self.sB}
        v_add_u32 {b}, {KC}, {b}
        ds_read_b64 {R[0:2]}, {a} offset:{KC}
        ds_read_b32 {R[2]}, {a} offset:{KC+8}
        ds_read2_b32 {R[4:6]}, {b} offset0:64 offset1:65
        ds_read2_b32 {R[6:8]}, {b} offset0:128 offset1:129
        s_mov_b32 {sLO}, 0x01000100
        s_mov_b32 {sHI}, 0x03020302
        v_lshl_add_u32 {a}, {c}, 4, {self.sB}
        v_add_u32 {b}, {self.sB}, {self.L16}
        v_lshl_add_u32 {c}, {L}, 5, {self.sB}
        s_waitcnt lgkmcnt(2)
        v_perm_b32 {O[0]}, {R[0]}, {R[0]}, {sLO}
        v_alignbit_b32 {O[1]}, {R[1]}, {R[0]}, 16
        v_perm_b32 {O[2]}, {R[1]}, {R[1]}, {sLO}
        v_alignbit_b32 {O[3]}, {R[2]}, {R[1]}, 16
        ds_write_b128 {a}, {O[0:4]} offset:{KT+512}
        s_waitcnt lgkmcnt(2)
        v_perm_b32 {O[4]}, {R[4]}, {R[4]}, {sLO}
        v_mov_b32 {O[5]}, {R[4]}
        v_perm_b32 {O[6]}, {R[4]}, {R[4]}, {sHI}
        v_perm_b32 {O[7]}, {R[5]}, {R[5]}, {sLO}
        ds_write_b128 {b}, {O[4:8]} offset:{KT+1024}
        s_waitcnt lgkmcnt(2)
        v_perm_b32 {O[8]}, {R[6]}, {R[6]}, {sLO}
        v_mov_b32 {O[10]}, {R[6]}
        v_perm_b32 {O[11]}, {R[6]}, {R[6]}, {sHI}
        v_mov_b32 {O[9]}, {O[8]}
        v_perm_b32 {O[14]}, {R[7]}, {R[7]}, {sLO}
        v_mov_b32 {O[12]}, {O[11]}
        v_mov_b32 {O[13]}, {O[11]}
        v_mov_b32 {O[15]}, {O[14]}
        ds_write_b128 {c}, {O[8:12]} offset:{KT+2048}
        ds_write_b128 {c}, {O[12:16]} offset:{KT+2048+16}""")
        V.put(R); R = V.get(24)
        for r in range(4):
            p(f'ds_read_b64 {R[6*r:6*r+2]}, {b} offset:{KT-8+1024*r}\nds_read_b128 {R[6*r+2:6*r+6]}, {b} offset:{KT+1024*r}')
        p(f"""v_lshrrev_b32 {a}, 2, {L}
        v_lshlrev_b32 {a}, 8, {a}
        v_and_b32 {c}, 3, {L}
        v_lshl_add_u32 {a}, {c}, 4, {a}
        v_add_u32 {a}, {self.sB}, {a}""")
        for r in range(4):
            Q = R[6*r:6*r+6]
            p(f's_waitcnt lgkmcnt({min(15, 6-2*r+4*r)})')
            p(f'ds_write_b128 {a}, {Q[2:6]} offset:{KT+4096*r}')
            for k in range(4): p(f'v_alignbit_b32 {O[k]}, {Q[k+2]}, {Q[k+1]}, 16')
            p(f'ds_write_b128 {a}, {O[0:4]} offset:{KT+4096*r+64}')
            for k in range(4): p(f'v_mov_b32 {O[4+k]}, {Q[k+1]}')
            p(f'ds_write_b128 {a}, {O[4:8]} offset:{KT+4096*r+128}')
            for k in range(4): p(f'v_alignbit_b32 {O[8+k]}, {Q[k+1]}, {Q[k]}, 16')
            p(f'ds_write_b128 {a}, {O[8:12]} offset:{KT+4096*r+192}')
        V.put(a, b, c, R, O); S.put(sLO, sHI)
    def conv_setup(self):
        p, V, A, L = self.P, self.V, self.A, self.L
        self.aKA = V.get(2); self.aUB = V.get(); self.aYW = V.get(); self.aYR = V.get(); self.aYO = V.get()
        self.ACC = V.get(32); self.CA = [A.get(32), A.get(32)]; self.CB = [A.get(32), A.get(32)]
        y, t, r4, cc = V.get(), V.get(), V.get(), V.get()
        p(f'v_bfe_u32 {r4}, {L}, 2, 2\nv_and_b32 {cc}, 3, {L}')
        for k in range(2):
            p(f"""v_lshlrev_b32 {y}, 1, {self.GK}
            v_sub_u32 {y}, {cc}, {y}
            v_lshl_add_u32 {y}, {y}, 2, {16-4*k}
            v_ashrrev_i32 {t}, 5, {y}
            v_lshlrev_b32 {t}, 8, {t}
            v_and_b32 {y}, 31, {y}
            v_lshl_add_u32 {y}, {y}, 1, {t}
            v_lshl_add_u32 {y}, {r4}, 6, {y}
            v_add_u32 {self.aKA[k]}, {self.sB}, {y}""")
        p(f"""v_lshlrev_b32 {y}, 4, {self.GK}
        v_lshl_add_u32 {y}, {self.L15}, 5, {y}
        v_add_u32 {self.aUB}, {self.sB}, {y}
        v_add_u32 {y}, {self.GK}, {r4}
        v_and_b32 {y}, 3, {y}
        v_lshlrev_b32 {y}, 3, {y}
        v_lshl_add_u32 {y}, {self.L15}, 5, {y}
        s_mul_i32 {self.st0}, {self.sV}, {YST}
        v_add_u32 {self.aYW}, {self.st0}, {y}
        v_add_u32 {y}, {self.GK}, {cc}
        v_and_b32 {y}, 3, {y}
        v_lshlrev_b32 {y}, 3, {y}
        v_lshl_add_u32 {y}, {self.GK}, 7, {y}
        v_mul_u32_u24 {t}, {YST}, {r4}
        s_lshl_b32 {self.st0}, {self.sV}, 9
        v_add3_u32 {self.aYR}, {y}, {t}, {self.st0}
        v_lshl_add_u32 {y}, {self.GK}, 6, {self.L15}
        v_lshlrev_b32 {self.aYO}, 12, {y}""")
        V.put(y, t, r4, cc)
        self.started = set()
    def conv_reads(self, half, e0):
        n = 4 if half == 0 else 8; buf = e0 & 1; l = []
        for i in range(n):
            for t in range(2): l.append(f'ds_read_b64_tr_b16 {self.CA[buf][4*i+2*t:4*i+2*t+2]}, {self.aKA[t]} offset:{KT+256*(e0+8*i)}')
            l.append(f'ds_read_b128 {self.CB[buf][4*i:4*i+4]}, {self.aUB} offset:{UT-32+512*i-64*e0}')
        return l
    def conv_order(self, half):
        n = 4 if half == 0 else 8
        pairs = [(e1, g) for e1 in range(n) for g in range(n) if 4*half <= e1+g <= 4*half+3]
        out = []; have = set()
        while pairs:
            cost = lambda x: ((('a', x[0]) not in have)*2 + (('b', x[1]) not in have), x)
            x = min(pairs, key=cost); pairs.remove(x); out.append(x); have |= {('a', x[0]), ('b', x[1])}
        return out
    def conv_frag_reads(self, half, e0):
        buf = e0 & 1; l = []; seen = set()
        for e1, g in self.conv_order(half):
            if ('a', e1) not in seen:
                seen.add(('a', e1))
                for t in range(2): l.append(((half, e0, 'a', e1), f'ds_read_b64_tr_b16 {self.CA[buf][4*e1+2*t:4*e1+2*t+2]}, {self.aKA[t]} offset:{KT+256*(e0+8*e1)}'))
            if ('b', g) not in seen:
                seen.add(('b', g))
                l.append(((half, e0, 'b', g), f'ds_read_b128 {self.CB[buf][4*g:4*g+4]}, {self.aUB} offset:{UT-32+512*g-64*e0}'))
        return l
    def conv_request(self, step):
        self.dsq = []
        for k, x in self.conv_frag_reads(*step): self.P(x); self.dsq.append(k)
    def conv_run(self, steps, nxt):
        p = self.P
        for i, (h, e0) in enumerate(steps):
            n = steps[i+1] if i+1 < len(steps) else nxt
            pf = self.conv_frag_reads(*n) if n else []
            order = self.conv_order(h); buf = e0 & 1
            for k, (e1, g) in enumerate(order):
                need = [j for j, key in enumerate(self.dsq) if key in ((h, e0, 'a', e1), (h, e0, 'b', g))]
                if need:
                    left = len(self.dsq) - 1 - max(need)
                    p(f's_waitcnt lgkmcnt({min(15, left)})')
                    self.dsq = self.dsq[len(self.dsq)-min(15, left):] if left else []
                c = e1+g; acc = self.ACC[4*c:4*c+4]
                p(f'v_mfma_f32_16x16x32_bf16 {acc}, {self.CA[buf][4*e1:4*e1+4]}, {self.CB[buf][4*g:4*g+4]}, {acc if c in self.started else 0}')
                self.started.add(c)
                m = -(-len(pf)//(len(order)-k)) if pf else 0
                for _ in range(max(m, 1) if pf else 0):
                    key, x = pf.pop(0); p(x); self.dsq.append(key)
    def ds_other(self, n):
        self.dsq += [None]*n
    def y_stage(self, half):
        p, V = self.P, self.V; O = V.get(8)
        for i in range(4):
            c = 4*half+i
            p(f'v_cvt_pk_bf16_f32 {O[2*i]}, {self.ACC[4*c]}, {self.ACC[4*c+1]}\nv_cvt_pk_bf16_f32 {O[2*i+1]}, {self.ACC[4*c+2]}, {self.ACC[4*c+3]}')
            p(f'ds_write_b64 {self.aYW}, {O[2*i:2*i+2]} offset:{YS+512*c}')
        V.put(O)
    def y_read(self, half):
        self.YR = self.V.get(8)
        for k in range(4): self.p(f'ds_read_b64_tr_b16 {self.YR[2*k:2*k+2]}, {self.aYR} offset:{YS+2048*half+32*k}')
    def y_store(self, half):
        p = self.P; sa, st0, st1 = self.sa, self.st0, self.st1
        p(f's_lshl_b32 {st0}, {self.sV}, 20\ns_lshl_b32 {st1}, {self.sC}, 3\ns_add_u32 {st0}, {st0}, {st1}\ns_add_u32 {st0}, {st0}, {2048+(half<<22)}')
        self.addr64(sa, self.out, st0)
        for k in range(4):
            if k: self.addr64(sa, sa, 65536)
            self.vm(f'global_store_dwordx2 {self.aYO}, {self.YR[2*k:2*k+2]}, {sa} {self.flag("y")}', 'yst')
        self.V.put(self.YR)

    def finish(self):
        p, V = self.P, self.V
        if self.stamps:
            p('s_waitcnt vmcnt(0)')
            self.stamp('end'); p('s_waitcnt lgkmcnt(0)')
            d = V.get(); a = V.get()
            p(f's_lshl_b32 {self.st0}, s2, 2\ns_add_u32 {self.st0}, {self.st0}, {self.sV}\ns_lshl_b32 {self.st0}, {self.st0}, 7\ns_add_u32 {self.st0}, {self.st0}, {DBG}')
            self.addr64(self.sa, self.ws, self.st0)
            p(f'v_mov_b32 {a}, 0\ns_mov_b64 exec, 1')
            for i, (n, r) in enumerate(self.stn):
                p(f'v_mov_b32 {d}, {r[0]}\nglobal_store_dword {a}, {d}, {self.sa} offset:{4*i}\ns_nop 1')
            if self.o.get('dbgstamps'):
                p(f's_load_dwordx2 {self.sa}, s[0:1], 104\ns_waitcnt lgkmcnt(0)')
                for i, (n, r) in enumerate(self.stn):
                    p(f'v_mov_b32 {d}, {r[0]}\nglobal_atomic_umax {a}, {d}, {self.sa} offset:{4*i}\ns_nop 1')
                p(f's_not_b32 {self.st0}, {self.stn[0][1][0]}\nv_mov_b32 {d}, {self.st0}\nglobal_atomic_umax {a}, {d}, {self.sa} offset:60')
            amp = [k for k in self.o if k.startswith('amp=')]
            if amp:
                _, nm, wg = amp[0].split('=')
                r = dict(self.stn)[nm]; e = dict(self.stn)['end']; t = self.sb
                p(f'''s_lshl_b32 {self.st0}, s2, 2
                s_add_u32 {self.st0}, {self.st0}, {self.sV}
                s_cmp_lg_u32 {self.st0}, {4*int(wg)}
                s_cbranch_scc1 L_end
                s_sub_u32 {self.st0}, {r[0]}, {self.stn[0][1][0]}
                s_min_u32 {self.st0}, {self.st0}, 10000
                s_mul_i32 {self.st0}, {self.st0}, 20
                L_amp:
                s_sleep 8
                s_memrealtime {t}
                s_waitcnt lgkmcnt(0)
                s_sub_u32 {self.st1}, {t[0]}, {e[0]}
                s_cmp_lt_u32 {self.st1}, {self.st0}
                s_cbranch_scc1 L_amp''')
        p('L_end:\ns_endpgm')

    def emit(self):
        pad = self.p.pad(); errs = self.p.verify()
        for q in self.ool: pad += q.pad(); errs += q.verify()
        for e in errs: print('VERIFY', e, file=sys.stderr)
        hdr = open('cdna_kernels/%s.s.ref' % NAME).read().split('; Override launch')[0]
        nv = 256; na = max(8, self.A.hi)
        s = hdr + ('; stamps: ' + ' '.join(n for n, _ in self.stn) + '\n' if self.stamps else '') + f'; @launch grid=(256,1,1) block=(256,1,1) lds={LDS_BYTES}\n'
        s += f'.amdgcn_target "amdgcn-amd-amdhsa--gfx950"\n.text\n.globl {NAME}_kernel\n.p2align 8\n.type {NAME}_kernel,@function\n{NAME}_kernel:\n'
        s += self.p.text() + ''.join(q.text() for q in self.ool) + 'L_codeend:\n'
        s += f'''.section .rodata,"a"
.p2align 6
.amdhsa_kernel {NAME}_kernel
  .amdhsa_next_free_vgpr {nv+na}
  .amdhsa_next_free_sgpr 102
  .amdhsa_accum_offset {nv}
  .amdhsa_group_segment_fixed_size 0
  .amdhsa_kernarg_size 120
  .amdhsa_user_sgpr_count 2
  .amdhsa_user_sgpr_kernarg_segment_ptr 1
  .amdhsa_system_sgpr_workgroup_id_x 1
  .amdhsa_float_denorm_mode_32 3
.end_amdhsa_kernel
'''
        n = sum(1 for i in self.p.ins if i.states)
        print(f'instrs {n} pad {pad} vgpr {self.V.hi} agpr {self.A.hi} sgpr {self.S.hi} errs {len(errs)}', file=sys.stderr)
        return s

def build_v2(stamps=False, opts=None):
    g = Gen(stamps, opts); p = g.P; o = g.o
    geti = lambda k, d: int(next((x.split('=')[1] for x in o if x.startswith(k + '=')), d))
    g.prologue(); g.consts1()
    g.loads_u(); g.loads_wx()
    g.consts2(); g.tu_setup(); g.t1_issue_setup()
    g.stamp('cons')
    g.loads_w()
    g.wait_vm('par'); g.kgen_setup()
    U = g.kgen_units(); n0, n1 = geti('n0', 8), geti('n1', 34)
    for f in U[:n0]: f()
    g.stamp('k0')
    g.phase1()
    g.wait_vm('u'); g.tu_produce()
    g.stamp('tust')
    g.wait_vm('W'); g.wstage(); g.mpre()
    if hasattr(g, 'PF'): g.V.put(g.PF)
    g.stamp('mpre')
    for f in U[n0:n1]: f()
    g.t1_issue()
    g.stamp('t1ld')
    for f in U[n1:]: f()
    g.kgen_mfma(); g.stamp('kmf'); g.kexpand()
    g.stamp('kdone')
    g.phase2(g.tu_issue)
    g.tu_consume()
    g.conv_setup(); g.consts3()
    p('s_waitcnt lgkmcnt(0)\ns_barrier')
    g.stamp('c3')
    g.conv_request((0, 0))
    g.conv_run([(0, e) for e in range(8)], (1, 0))
    g.y_stage(0); g.ds_other(4)
    g.t2_issue()
    g.conv_run([(1, 0), (1, 1)], (1, 2))
    p('s_barrier')
    g.y_read(0); g.ds_other(4)
    g.conv_run([(1, 2), (1, 3)], (1, 4))
    g.y_store(0)
    g.conv_run([(1, e) for e in range(4, 8)], None)
    g.y_stage(1)
    p('s_waitcnt lgkmcnt(0)\ns_barrier')
    g.y_read(1); p('s_waitcnt lgkmcnt(0)'); g.y_store(1)
    g.stamp('cv')
    g.phase3()
    g.finish()
    return g

if __name__ == '__main__':
    g = globals()['build_' + sys.argv[2]]('-s' in sys.argv, {k: True for k in sys.argv[3:]})
    open(sys.argv[1], 'w').write(g.emit())
    print([n for n, _ in g.stn], file=sys.stderr)
```

```python
import sys, math, struct
from dsl import *

NAME = "concat_heads__spectral_gfnet__ssm_conv_s4__prompt"
def fl(x): return hex(struct.unpack('<I', struct.pack('<f', x))[0])

T1, T2, TU, TY, T1X, WX, EOFF, DBG = 0, 4 << 20, 8 << 20, 12 << 20, 16 << 20, (16 << 20) + (64 << 10), (16 << 20) + (128 << 10), 20 << 20
A0, PL = 0, 4608
US = 18432; EX = US
WS = 34816; YS = WS; YST = 4128
BB, BW = 51456, 23072
XI, XS1 = 0, 4112
KT, KC, UZ = 256, 256 + 16896, 256 + 16896 + 1280
UT = UZ + 512
LDS_BYTES = BB + 4*BW
SPIN_MAX = 4000

class Gen:
    def __init__(self, stamps=False, opts=None):
        self.p = Prog(); self.V = Alloc('v', 256, 1); self.A = Alloc('a', 256); self.S = Alloc('s', 100, 32)
        self.stamps = stamps; self.nst = 0; self.o = opts or {}; self.stn = []
        self.tins = 's_memtime' if self.o.get('cyc') else 's_memrealtime'; self.vmlog = []; self.lbl = 0; self.ool = []; self.main = self.p
    def flag(self, k):
        return next((x.split('=')[1].replace('+', ' ') for x in self.o if x.startswith(k + '=')), '')
    def P(self, text): self.p(text)
    def stamp(self, name):
        if not self.stamps: return
        r = self.S.get(2); self.stn.append((name, r))
        self.p(f'{self.tins} {r}')
    def label(self, base):
        self.lbl += 1; return f'L{base}{self.lbl}'
    def vm(self, text, tag):
        self.p(text)
        if self.p is self.main: self.vmlog.append(tag)
    def after(self, tag):
        k = max(i for i, t in enumerate(self.vmlog) if t == tag)
        return len(self.vmlog) - 1 - k
    def wait_vm(self, tag): self.p(f's_waitcnt vmcnt({self.after(tag)})')
    def begin_ool(self, lb):
        q = Prog(); self.ool.append(q); self.p = q; q(f'{lb}:')
    def end_ool(self): self.p = self.main
    def addr64(self, dst, base, off):
        self.p(f's_add_u32 {dst[0]}, {base[0]}, {off}\ns_addc_u32 {dst[1]}, {base[1]}, 0')

    def prologue(self):
        p, V, S = self.P, self.V, self.S
        P = lambda b: Reg('s', b, 2)
        self.x, self.wr, self.wi, self.u = P(4), P(6), P(8), P(10)
        self.par = [P(12), P(14), P(16), P(18), P(20), P(22)]
        self.ldt, self.dsk, self.out, self.ws = P(24), P(26), P(28), P(30)
        self.sV, self.sC, self.sR, self.sG = S.get(), S.get(), S.get(), S.get()
        self.L = L = V.get(); t = V.get()
        self.st0, self.st1 = S.get(), S.get(); self.sa = S.get(2); self.sb = S.get(2)
        st0, st1, sa, sb = self.st0, self.st1, self.sa, self.sb
        sV, sC, sR, sG = self.sV, self.sC, self.sR, self.sG
        if self.stamps:
            r = S.get(2); self.stn.append(('start', r)); p(f'{self.tins} {r}')
            self.clk0 = S.get(2); p(f's_memtime {self.clk0}')
        p(f'''s_cmp_ge_u32 s2, 256
        s_cbranch_scc1 L_end
        s_load_dwordx16 s[4:19], s[0:1], 0
        s_load_dwordx8 s[20:27], s[0:1], 64
        s_load_dwordx2 s[28:29], s[0:1], 96
        s_load_dwordx2 s[30:31], s[0:1], 112
        v_lshrrev_b32 {t}, 6, v0
        v_and_b32 {L}, 63, v0
        v_readfirstlane_b32 {sV}, {t}
        s_and_b32 {sC}, s2, 7
        s_lshl_b32 {sC}, {sC}, 5
        s_lshr_b32 {st0}, s2, 3
        s_add_u32 {sC}, {sC}, {st0}
        {'s_mov_b32 %s, s2' % sC if self.o.get('noremap') else ''}
        s_lshr_b32 {sR}, {sC}, 6
        s_and_b32 {sG}, {sC}, 63''')
        self.L16 = V.get()
        self.L15 = V.get(); self.GK = V.get()
        p(f'v_lshlrev_b32 {self.L16}, 4, {L}\nv_and_b32 {self.L15}, 15, {L}\nv_lshrrev_b32 {self.GK}, 4, {L}')
        p(f'''s_lshl_b32 {st0}, {sV}, 8
        s_add_u32 {st0}, {st0}, {sC}
        s_lshl_b32 {st0}, {st0}, 12
        s_mul_i32 {st1}, {sV}, {PL}
        s_mov_b32 m0, {st1}
        s_waitcnt lgkmcnt(0)''')
        self.stamp('karg')
        self.addr64(sa, self.x, st0)
        self.sE = S.get(); self.sLD = S.get(); self.sDS = S.get()
        self.vm(f'global_load_lds_dwordx4 {self.L16}, {sa}', 'x')
        self.vm(f'global_load_lds_dwordx4 {self.L16}, {sa} offset:1024', 'x')
        p(f's_add_u32 m0, {st1}, 128')
        self.addr64(sb, self.ws, EOFF)
        self.vm(f'global_load_lds_dwordx4 {self.L16}, {sa} offset:2048', 'x')
        self.vm(f'global_load_lds_dwordx4 {self.L16}, {sa} offset:3072', 'x')
        p(f's_load_dword {self.sE}, {sb}, 0')
        self.sD = S.get(); self.PR = V.get(6)
        p(f'''s_lshl_b32 {self.sD}, {sC}, 2
        s_add_u32 {self.sD}, {self.sD}, {sV}
        s_lshl_b32 {st0}, {self.sD}, 8
        v_lshl_add_u32 {t}, {L}, 2, {st0}
        s_lshr_b32 {st1}, {self.sD}, 1
        s_lshl_b32 {st1}, {st1}, 2
        s_load_dword {self.sLD}, {self.ldt}, {st1}
        s_load_dword {self.sDS}, {self.dsk}, {st1}''')
        for i in range(6): self.vm(f'global_load_dword {self.PR[i]}, {t}, {self.par[i]}', 'par')
        if not self.o.get('nopf'):
            self.PF = V.get()
            p(f's_getpc_b64 {sa}\nv_lshlrev_b32 {t}, 7, v0\nv_min_u32 {t}, L_codeend-.-128, {t}')
            self.vm(f'global_load_dword {self.PF}, {t}, {sa}', 'pf')
        V.put(t)
    def loads_u(self):
        p, V, S = self.P, self.V, self.S; L = self.L; sa, st0, st1, sC, sV = self.sa, self.st0, self.st1, self.sC, self.sV
        t, t2 = V.get(), V.get()
        p(f'''v_lshrrev_b32 {t}, 3, {L}
        v_and_b32 {t2}, 7, {L}
        v_lshlrev_b32 {t2}, 4, {t2}
        v_lshl_add_u32 {t}, {t}, 11, {t2}
        s_and_b32 {st0}, {sC}, 15
        s_lshl_b32 {st0}, {st0}, 2
        s_add_u32 {st0}, {st0}, {sV}
        s_lshl_b32 {st0}, {st0}, 16
        s_lshr_b32 {st1}, {sC}, 4
        s_lshl_b32 {st1}, {st1}, 7
        s_add_u32 {st0}, {st0}, {st1}''')
        self.addr64(sa, self.u, st0)
        p(f's_lshl_b32 {st1}, {sV}, 12\ns_add_u32 {st1}, {st1}, {US}')
        for i in range(4):
            p(f's_add_u32 m0, {st1}, {1024*i}')
            if i: self.addr64(sa, sa, 16384)
            self.vm(f'global_load_lds_dwordx4 {t}, {sa}', 'u')
        V.put(t, t2)
    def loads_wx(self):
        p, V, S = self.P, self.V, self.S; L = self.L; st0 = self.st0
        self.WXV = V.get(); t, t2, t3 = V.get(), V.get(), V.get()
        p(f'''v_bfe_u32 {t}, {L}, 2, 1
        v_lshl_add_u32 {t}, {t}, 10, {self.GK}
        s_lshl_b32 {st0}, {self.sC}, 2
        v_add_u32 {t}, {st0}, {t}
        v_sub_u32 {t2}, 0x800, {t}
        v_and_b32 {t2}, 0x7ff, {t2}
        v_and_b32 {t3}, 1, {L}
        v_cmp_eq_u32 vcc, 1, {t3}
        v_bfe_u32 {t3}, {L}, 3, 1
        v_cndmask_b32 {t}, {t}, {t2}, vcc
        v_mul_u32_u24 {t}, 1026, {t}
        v_lshl_add_u32 {t}, {t3}, 10, {t}
        s_mov_b32 exec_lo, 0x33333333
        s_mov_b32 exec_hi, 0x33333333''')
        self.vm(f'global_load_ushort {self.WXV}, {t}, {self.wr}', 'wx')
        p('s_not_b64 exec, exec')
        self.vm(f'global_load_ushort {self.WXV}, {t}, {self.wi} ; nocheck', 'wx')
        p('s_mov_b64 exec, -1')
        V.put(t, t2, t3)
    def loads_w(self):
        p, V, S = self.P, self.V, self.S; L = self.L; sa, st0, st1, sV = self.sa, self.st0, self.st1, self.sV
        self.WL = V.get(16); t = V.get()
        p(f'''v_lshl_add_u32 {t}, {self.GK}, 6, {self.L15}
        v_mul_u32_u24 {t}, {4*1026}, {t}
        s_bitcmp1_b32 {sV}, 0
        s_cselect_b32 {sa[0]}, {self.wi[0]}, {self.wr[0]}
        s_cselect_b32 {sa[1]}, {self.wi[1]}, {self.wr[1]}
        s_lshr_b32 {st0}, {sV}, 1
        s_lshl_b32 {st0}, {st0}, 10
        s_add_u32 {st0}, {st0}, {self.sR}
        s_mul_i32 {st0}, {st0}, 1026
        s_lshl_b32 {st1}, {self.sG}, 4
        s_add_u32 {st0}, {st0}, {st1}''')
        self.addr64(sa, sa, st0)
        for i in range(4):
            if i: self.addr64(sa, sa, 64*1026)
            self.vm(f'global_load_dwordx4 {self.WL[4*i:4*i+4]}, {t}, {sa}', 'W')
        V.put(t)

    def consts1(self):
        p, V, A, S, L = self.P, self.V, self.A, self.S, self.L
        self.CFr, self.CFi = A.get(16), A.get(16)
        self.TWc, self.TWs = V.get(16), V.get(16)
        k, b, an, c, s, d = V.get(), V.get(), V.get(), V.get(), V.get(), V.get()
        self.PI = V.get()
        self.H = V.get()
        p(f'''v_and_b32 {k}, 0x13, {L}
        v_bfe_u32 {b}, {L}, 2, 1
        v_lshl_or_b32 {k}, {b}, 3, {k}
        v_bfe_u32 {b}, {L}, 3, 1
        v_lshl_or_b32 {self.PI}, {b}, 2, {k}
        v_lshrrev_b32 {self.H}, 5, {L}
        v_cvt_f32_u32 {k}, {self.PI}
        v_cvt_f32_u32 {b}, {self.H}
        v_mul_f32 {k}, {fl(1/32)}, {k}
        v_mul_f32 {b}, {b}, {k}
        v_mul_f32 {b}, 4.0, {b}''')
        sgn = V.get(); d2 = V.get()
        p(f'v_and_b32 {sgn}, 1, {L}\nv_mul_u32_u24 {sgn}, 0x8000, {sgn}\nv_lshl_or_b32 {sgn}, {sgn}, 16, {sgn}')
        for f in range(2):
            for jj in range(4):
                i = 4*f + jj
                p(f'''v_fmamk_f32 {an}, {k}, {fl(8*f+jj)}, {b}
                v_cos_f32 {c}, {an}
                v_sin_f32 {s}, {an}
                v_mul_f32 {an}, {fl(1/32)}, {an}
                v_cvt_pk_bf16_f32 {d}, {c}, {s}
                v_cos_f32 {self.TWc[i]}, {an}
                v_cvt_pk_bf16_f32 {d2}, -{s}, {c}
                v_sin_f32 {self.TWs[i]}, {an}
                v_fmac_f32 {an}, 0.5, {k}
                v_accvgpr_write_b32 {self.CFr[i]}, {d}
                v_accvgpr_write_b32 {self.CFi[i]}, {d2}
                v_cos_f32 {self.TWc[8+i]}, {an}
                v_xor_b32 {d}, {sgn}, {d}
                v_xor_b32 {d2}, {sgn}, {d2}
                v_sin_f32 {self.TWs[8+i]}, {an}
                v_accvgpr_write_b32 {self.CFr[8+i]}, {d}
                v_accvgpr_write_b32 {self.CFi[8+i]}, {d2}''')
        V.put(sgn, d2)
        self.R4a, self.R4b = A.get(4), A.get(4)
        m1, m2 = S.get(2), S.get(2)
        sg = V.get()
        p(f'''v_bfe_u32 {k}, {L}, 2, 2
        v_cvt_f32_u32 {k}, {k}
        v_mul_f32 {k}, {fl(1/1024)}, {k}
        v_cvt_f32_u32 {b}, {self.sC}
        v_mul_f32 {b}, {b}, {k}
        v_and_b32 {c}, 1, {L}
        v_cvt_f32_u32 {c}, {c}
        v_fmamk_f32 {b}, {c}, {fl(0.25)}, {b}
        v_lshlrev_b32 {sg}, 30, {L}
        v_and_b32 {sg}, 0x80000000, {sg}
        v_and_b32 {c}, 2, {L}
        v_lshrrev_b32 {s}, 4, {L}
        v_cmp_eq_u32 {m1}, {c}, {s}
        v_add_u32 {c}, 1, {c}
        v_cmp_eq_u32 {m2}, {c}, {s}''')
        for m in range(4):
            p(f'''v_fmamk_f32 {an}, {k}, {fl(256*m)}, {b}
            v_cos_f32 {c}, {an}
            v_sin_f32 {s}, {an}
            v_xor_b32 {s}, {sg}, {s}
            v_cvt_pk_bf16_f32 {d}, {c}, {s}
            v_cndmask_b32 {c}, 0, {d}, {m1}
            v_cndmask_b32 {s}, 0, {d}, {m2}
            v_accvgpr_write_b32 {self.R4a[m]}, {c}
            v_accvgpr_write_b32 {self.R4b[m]}, {s}''')
        S.put(m1, m2); V.put(sg)
        self.aXR = V.get(); self.aZW = V.get(); self.aZR = V.get(4); self.aC = V.get(); self.aZX = V.get()
        st0 = self.st0
        p(f'''s_mul_i32 {st0}, {self.sV}, {PL}
        v_bfe_u32 {k}, {L}, 2, 1
        v_mul_u32_u24 {k}, 2176, {k}
        v_bfe_u32 {b}, {L}, 3, 1
        v_lshl_add_u32 {b}, {self.H}, 2, {b}
        v_lshl_add_u32 {k}, {b}, 6, {k}
        v_bfe_u32 {b}, {L}, 4, 1
        v_lshl_add_u32 {k}, {b}, 5, {k}
        v_and_b32 {b}, 3, {L}
        v_lshl_add_u32 {k}, {b}, 3, {k}
        v_add_u32 {self.aXR}, {st0}, {k}
        v_and_b32 {k}, 31, {L}
        v_mul_u32_u24 {k}, 144, {k}
        v_lshl_add_u32 {k}, {self.H}, 5, {k}
        v_add_u32 {self.aZW}, {st0}, {k}
        v_and_b32 {k}, 15, {L}
        v_lshlrev_b32 {k}, 1, {k}
        v_bfe_u32 {b}, {L}, 4, 1
        v_add_u32 {k}, {k}, {b}
        s_lshl_b32 {st0}, {self.sV}, 7
        v_add_u32 {k}, {st0}, {k}
        v_cmp_lt_u32 vcc, 31, {L}''')
        def zaddr(dst, q):
            p(f'''v_lshrrev_b32 {c}, 5, {q}
            v_and_b32 {s}, 0x13, {c}
            v_bfe_u32 {d}, {c}, 2, 1
            v_lshl_or_b32 {s}, {d}, 3, {s}
            v_bfe_u32 {d}, {c}, 3, 1
            v_lshl_or_b32 {s}, {d}, 2, {s}
            v_mul_u32_u24 {s}, 144, {s}
            v_and_b32 {c}, 31, {q}
            v_lshl_add_u32 {dst}, {c}, 2, {s}''')
        m1 = S.get(2)
        for t in range(4):
            p(f'''v_add_u32 {b}, {32*t}, {k}
            v_sub_u32 {an}, 0x400, {b}''')
            if t == 0:
                p(f'''v_cmp_eq_u32 {m1}, 0, {b}
                v_mov_b32 {c}, 0x200
                v_cndmask_b32 {an}, {an}, {c}, {m1}''')
            p(f'v_cndmask_b32 {b}, {b}, {an}, vcc')
            zaddr(self.aZR[t], b)
        S.put(m1)
        p(f'''v_mov_b32 {c}, {16*144}
        v_cndmask_b32 {self.aZX}, {c}, 0, vcc
        v_lshrrev_b32 {k}, 4, {L}
        v_bfe_u32 {b}, {L}, 2, 2
        v_lshl_add_u32 {k}, {k}, 6, {b}
        v_and_b32 {b}, 3, {L}
        v_lshlrev_b32 {b}, 4, {b}
        v_lshl_add_u32 {self.aC}, {k}, 14, {b}''')
        V.put(k, b, an, c, s, d)
        self.TG = S.get(4); self.sN = S.get(); self.MK = V.get()
        st0, st1, sE = self.st0, self.st1, self.sE
        p(f'''v_mov_b32 {self.MK}, 0xfffefffe
        s_waitcnt lgkmcnt(0)
        s_not_b32 {self.sN}, {sE}
        s_mul_i32 {st0}, {sE}, 0x9e3779b1
        s_lshr_b32 {st1}, {st0}, 15
        s_and_b32 {self.TG[1]}, {st1}, 0x10001
        s_lshr_b32 {st1}, {st0}, 14
        s_and_b32 {self.TG[2]}, {st1}, 0x10001
        s_lshr_b32 {st1}, {st0}, 13
        s_and_b32 {self.TG[3]}, {st1}, 0x10001
        s_lshr_b32 {st1}, {st0}, 12
        s_and_b32 {st1}, {st1}, 0x10000
        s_and_b32 {self.TG[0]}, {self.sN}, 1
        s_or_b32 {self.TG[0]}, {self.TG[0]}, {st1}''')

    def fft1024(self, FA, Dr, Di, waits):
        p, V = self.P, self.V
        for f in range(4):
            p(f's_waitcnt lgkmcnt({waits[f]})')
            p(f'v_mfma_f32_32x32x16_bf16 {Dr}, {FA[4*f:4*f+4]}, {self.CFr[4*f:4*f+4]}, {Dr if f else 0}')
            p(f'v_mfma_f32_32x32x16_bf16 {Di}, {FA[4*f:4*f+4]}, {self.CFi[4*f:4*f+4]}, {Di if f else 0}')
        self.twiddle(Dr, Di, self.TWc, self.TWs, FA)
        for f in range(4):
            p(f'v_mfma_f32_32x32x16_bf16 {Dr}, {FA[4*f:4*f+4]}, {self.CFr[4*f:4*f+4]}, {Dr if f else 0}')
            p(f'v_mfma_f32_32x32x16_bf16 {Di}, {FA[4*f:4*f+4]}, {self.CFi[4*f:4*f+4]}, {Di if f else 0}')
    def twiddle(self, Dr, Di, Tc, Ts, F):
        p, V = self.P, self.V
        T = V.get(8)
        n = Dr.n//2
        for k0 in range(0, n, 2):
            ks = (k0, k0+1)
            tt = {k: (T[4*(k-k0):4*(k-k0)+2], T[4*(k-k0)+2:4*(k-k0)+4]) for k in ks}
            s2 = lambda R, k: R[(2*k) % R.n:(2*k) % R.n+2]
            for k in ks: p(f'v_pk_mul_f32 {tt[k][0]}, {s2(Dr,k)}, {s2(Tc,k)}\nv_pk_mul_f32 {tt[k][1]}, {s2(Di,k)}, {s2(Tc,k)}')
            for k in ks: p(f'v_pk_fma_f32 {tt[k][0]}, {s2(Di,k)}, {s2(Ts,k)}, {tt[k][0]}\nv_pk_fma_f32 {tt[k][1]}, {s2(Dr,k)}, {s2(Ts,k)}, {tt[k][1]} neg_lo:[1,0,0] neg_hi:[1,0,0]')
            for k in ks:
                for e in range(2): p(f'v_cvt_pk_bf16_f32 {F[2*k+e]}, {tt[k][0][e]}, {tt[k][1][e]}')
        V.put(T)
    def fft256(self, F, Dr, Di, waits=None):
        p = self.P; n = F.n//4
        q = lambda R, s: R[4*s:4*s+4]
        for s in range(n):
            if waits: p(f's_waitcnt lgkmcnt({waits[s]})')
            p(f'v_mfma_f32_16x16x32_bf16 {q(Dr,s)}, {q(F,s)}, {self.C16r}, 0\nv_mfma_f32_16x16x32_bf16 {q(Di,s)}, {q(F,s)}, {self.C16i}, 0')
        self.twiddle(Dr, Di, self.T16c, self.T16s, F)
        for s in range(n):
            p(f'v_mfma_f32_16x16x32_bf16 {q(Dr,s)}, {self.C16r}, {q(F,s)}, 0\nv_mfma_f32_16x16x32_bf16 {q(Di,s)}, {self.C16i}, {q(F,s)}, 0')
    def tag4(self, R):
        for d in range(4): self.p(f'v_bfi_b32 {R[d]}, {self.MK}, {R[d]}, {self.TG[d]}')
    def check16(self, R, acc, t):
        p = self.P
        for d in range(4):
            p(f'v_bitop3_b32 {t[0]}, {R[d]}, {R[4+d]}, {self.TG[d]} bitop3:0x7e')
            p(f'v_bitop3_b32 {t[1]}, {R[8+d]}, {R[12+d]}, {self.TG[d]} bitop3:0x7e')
            p(f'v_or3_b32 {acc}, {t[0]}, {t[1]}, {acc if d else 0}')
        p(f'v_and_b32 {acc}, 0x10001, {acc}\nv_cmp_ne_u32 vcc, 0, {acc}')
    def poll(self, issue, check, first_wait, post=None):
        ok, re_, lp = self.label('ok'), self.label('re'), self.label('lp')
        cnt = self.st1; outer = self.p
        self.p(f's_waitcnt vmcnt({first_wait})')
        check()
        self.p(f's_cbranch_vccnz {re_}\n{ok}:')
        self.begin_ool(re_)
        self.p(f's_movk_i32 {cnt}, {SPIN_MAX}\n{lp}:\ns_sleep 4')
        issue()
        self.p('s_waitcnt vmcnt(0)')
        check()
        self.p(f's_cbranch_vccz {ok}\ns_sub_u32 {cnt}, {cnt}, 1\ns_cmp_lg_u32 {cnt}, 0\ns_cbranch_scc1 {lp}\ns_branch {ok}')
        self.p = outer

    def phase1(self):
        p, V, S = self.P, self.V, self.S
        FA, Dr, Di = V.get(16), V.get(16), V.get(16)
        self.wait_vm('x')
        self.stamp('xland')
        for f in range(4):
            for t in range(2): p(f'ds_read_b64_tr_b16 {FA[4*f+2*t:4*f+2*t+2]}, {self.aXR} offset:{512*f+128*t}')
        self.fft1024(FA, Dr, Di, (6, 4, 2, 0))
        for g in range(4):
            for jj in range(4): p(f'v_cvt_pk_bf16_f32 {FA[4*g+jj]}, {Dr[4*g+jj]}, {Di[4*g+jj]}')
            p(f'ds_write_b128 {self.aZW}, {FA[4*g:4*g+4]} offset:{64*(g>>1)+16*(g&1)}')
        sa, st0, st1 = self.sa, self.st0, self.st1
        p(f'''s_lshl_b32 {st0}, {self.sV}, 18
        s_lshl_b32 {st1}, {self.sC}, 6
        s_add_u32 {st0}, {st0}, {st1}''')
        self.addr64(sa, self.ws, st0)
        p('s_waitcnt lgkmcnt(0)\ns_barrier')
        for t in range(4):
            p(f'ds_read2st64_b32 {FA[4*t:4*t+2]}, {self.aZR[t]} offset0:0 offset1:18\nds_read2st64_b32 {FA[4*t+2:4*t+4]}, {self.aZR[t]} offset0:36 offset1:54')
        for t in range(4):
            p(f's_waitcnt lgkmcnt({6-2*t})')
            p(f'v_mfma_f32_16x16x32_bf16 {Dr[4*t:4*t+4]}, {self.R4a}, {FA[4*t:4*t+4]}, 0\nv_mfma_f32_16x16x32_bf16 {Di[4*t:4*t+4]}, {self.R4b}, {FA[4*t:4*t+4]}, 0')
        for t in range(4):
            o = FA[4*t:4*t+4]
            p(f'''v_cvt_pk_bf16_f32 {o[0]}, {Dr[4*t]}, {Dr[4*t+1]}
            v_cvt_pk_bf16_f32 {o[1]}, {Dr[4*t+2]}, {Dr[4*t+3]}
            v_cvt_pk_bf16_f32 {o[2]}, {Di[4*t]}, {Di[4*t+1]}
            v_cvt_pk_bf16_f32 {o[3]}, {Di[4*t+2]}, {Di[4*t+3]}''')
            self.tag4(o)
            if t: self.addr64(sa, sa, 4*16384)
            self.vm(f'global_store_dwordx4 {self.aC}, {o}, {sa} sc1', 't1st')
        self.stamp('t1st')
        l0, l1 = self.label('x0'), self.label('x1')
        t = Dr
        p(f'''s_cmp_lg_u32 {self.sV}, 0
        s_cbranch_scc1 {l0}
        ds_read2st64_b32 {t[0:2]}, {self.aZX} offset0:0 offset1:18
        ds_read2st64_b32 {t[2:4]}, {self.aZX} offset0:36 offset1:54
        v_lshrrev_b32 {t[8]}, 4, {self.L}
        v_lshlrev_b32 {t[8]}, 12, {t[8]}
        s_lshl_b32 {st0}, {self.sC}, 4
        s_add_u32 {st0}, {st0}, {T1X}''')
        self.addr64(sa, self.ws, st0)
        p(f'''s_waitcnt lgkmcnt(0)
        v_mfma_f32_16x16x32_bf16 {t[4:8]}, {self.R4a}, {t[0:4]}, 0
        v_cvt_pk_bf16_f32 {t[0]}, {t[4]}, {t[5]}
        v_cvt_pk_bf16_f32 {t[2]}, {t[6]}, {t[7]}
        v_mov_b32 {t[1]}, {self.sN}
        v_mov_b32 {t[3]}, {self.sN}
        s_mov_b32 exec_lo, 0x00010001
        s_mov_b32 exec_hi, 0x00010001
        global_store_dwordx4 {t[8]}, {t[0:4]}, {sa} sc1
        s_mov_b64 exec, -1
        s_branch {l1}
        {l0}:
        s_waitcnt vmcnt({self.after('wx')})
        v_lshlrev_b32 {t[10]}, 16, {self.WXV}
        v_and_b32 {t[11]}, 3, {self.L}
        v_cmp_eq_u32 vcc, 3, {t[11]}
        v_cndmask_b32 {t[10]}, {t[10]}, -{t[10]}, vcc
        v_add_f32_dpp {t[11]}, {t[10]}, {t[10]} quad_perm:[1,0,3,2] row_mask:0xf bank_mask:0xf
        v_mul_f32 {t[11]}, 0.5, {t[11]}
        v_mov_b32_dpp {t[10]}, {t[11]} quad_perm:[2,3,0,1] row_mask:0xf bank_mask:0xf
        v_cvt_pk_bf16_f32 {t[10]}, {t[11]}, {t[10]}
        v_and_b32 {t[12]}, 1, {self.L}
        v_cmp_eq_u32 vcc, 1, {t[12]}
        v_mov_b32 {t[11]}, {self.sN}
        v_cndmask_b32 {t[10]}, {t[10]}, {t[11]}, vcc
        v_bfe_u32 {t[11]}, {self.L}, 2, 2
        v_lshlrev_b32 {t[11]}, 3, {t[11]}
        v_lshl_add_u32 {t[11]}, {t[12]}, 2, {t[11]}
        v_lshrrev_b32 {t[12]}, 4, {self.L}
        v_lshl_add_u32 {t[11]}, {t[12]}, 13, {t[11]}
        s_lshl_b32 {st0}, {self.sC}, 5
        s_add_u32 {st0}, {st0}, {WX}''')
        self.addr64(sa, self.ws, st0)
        p(f'''s_mov_b32 exec_lo, 0x33333333
        s_mov_b32 exec_hi, 0x33333333
        global_store_dword {t[11]}, {t[10]}, {sa} sc1
        s_mov_b64 exec, -1
        {l1}:''')
        self.vmlog.append('extra')
        V.put(FA, Dr, Di, self.aXR, self.aZW, self.aZR, self.aZX, self.WXV)
        self.A.put(self.R4a, self.R4b)

    def wstage(self):
        p, V = self.P, self.V
        a = V.get()
        p(f's_lshl_b32 {self.st0}, {self.sV}, 10\ns_add_u32 {self.st0}, {self.st0}, {WS}\nv_add_u32 {a}, {self.st0}, {self.L16}')
        for rho in range(4):
            for s in range(4): p(f'ds_write_b32 {a}, {self.WL[4*rho+s]} offset:{4096*s+4*rho}')
        p('s_waitcnt lgkmcnt(0)\ns_barrier')
        V.put(a)
    def consts2(self):
        p, V, A, L = self.P, self.V, self.A, self.L
        self.C16r, self.C16i = A.get(4), A.get(4)
        self.T16c, self.T16s, self.Cm, self.Sm = V.get(4), V.get(4), V.get(4), V.get(4)
        k, b, an, c, s, d = V.get(), V.get(), V.get(), V.get(), V.get(), V.get()
        p(f'''v_cvt_f32_u32 {k}, {self.L15}
        v_cvt_f32_u32 {b}, {self.GK}
        v_mul_f32 {k}, {fl(1/16)}, {k}
        v_mul_f32 {d}, {b}, {k}
        v_mul_f32 {d}, 4.0, {d}''')
        e = V.get()
        for jj in range(4):
            p(f'''v_fmamk_f32 {an}, {k}, {fl(jj)}, {d}
            v_cos_f32 {c}, {an}
            v_sin_f32 {s}, {an}
            v_mul_f32 {an}, {fl(1/16)}, {an}
            v_cvt_pk_bf16_f32 {e}, {c}, {s}
            v_cos_f32 {self.T16c[jj]}, {an}
            v_accvgpr_write_b32 {self.C16r[jj]}, {e}
            v_cvt_pk_bf16_f32 {e}, -{s}, {c}
            v_sin_f32 {self.T16s[jj]}, {an}
            v_accvgpr_write_b32 {self.C16i[jj]}, {e}''')
        p(f'''v_lshlrev_b32 {c}, 8, {self.GK}
        v_lshl_add_u32 {c}, {self.L15}, 2, {c}
        v_add_u32 {c}, {self.sR}, {c}
        v_cvt_f32_u32 {c}, {c}
        v_mul_f32 {c}, {fl(1/2048)}, {c}''')
        for rho in range(4):
            p(f'''v_add_f32 {an}, {fl(rho/32)}, {c}
            v_sin_f32 {self.Cm[rho]}, {an}
            v_cos_f32 {self.Sm[rho]}, {an}''')
        self.aXW, self.aXI, self.aEW, self.aT2s = V.get(), V.get(), V.get(), V.get()
        p(f'''v_and_b32 {an}, 3, {L}
        v_mul_u32_u24 {c}, {XS1}, {an}
        v_lshrrev_b32 {s}, 2, {L}
        v_lshl_add_u32 {c}, {s}, 6, {c}
        v_and_b32 {d}, 1, {self.GK}
        v_lshlrev_b32 {d}, 1, {d}
        v_xor_b32 {d}, {self.sV}, {d}
        v_lshl_add_u32 {self.aXW}, {d}, 4, {c}
        v_and_b32 {d}, 1, {s}
        v_lshlrev_b32 {d}, 1, {d}
        v_xor_b32 {d}, {self.GK}, {d}
        v_lshlrev_b32 {d}, 4, {d}
        v_lshl_add_u32 {d}, {self.L15}, 6, {d}
        s_mul_i32 {self.st0}, {self.sV}, {XS1}
        v_add_u32 {self.aXI}, {self.st0}, {d}
        v_lshrrev_b32 {c}, 3, {L}
        v_sub_u32 {c}, {L}, {c}
        v_and_b32 {c}, 3, {c}
        v_lshlrev_b32 {c}, 4, {c}
        v_lshl_add_u32 {self.aT2s}, {s}, 14, {c}
        v_lshlrev_b32 {c}, 12, {self.GK}
        v_lshl_add_u32 {c}, {self.L15}, 6, {c}
        v_bfe_u32 {s}, {L}, 1, 3
        v_add_u32 {s}, {self.sV}, {s}
        v_and_b32 {s}, 3, {s}
        v_lshl_add_u32 {self.aEW}, {s}, 4, {c}''')
        V.put(k, b, an, c, s, d, e)
    def mcalc(self, M, W0r, W0i, W1r, W1i):
        p = self.P
        for h in range(2):
            s2 = lambda R: R[2*h:2*h+2]
            for (a, b, pp, mm, nn) in ((W0r, W1r, M[0], M[2], M[4]), (W0i, W1i, M[1], M[3], M[5])):
                p(f'''v_pk_add_f32 {s2(nn)}, {s2(a)}, {s2(b)} neg_lo:[0,1] neg_hi:[0,1]
                v_pk_add_f32 {s2(a)}, {s2(a)}, {s2(b)}
                v_pk_fma_f32 {s2(pp)}, {s2(self.Cm)}, {s2(nn)}, {s2(a)} neg_lo:[1,0,0] neg_hi:[1,0,0]
                v_pk_fma_f32 {s2(mm)}, {s2(self.Cm)}, {s2(nn)}, {s2(a)}
                v_pk_mul_f32 {s2(nn)}, {s2(self.Sm)}, {s2(nn)}''')
    def mpre(self):
        p, V, S = self.P, self.V, self.S
        a = V.get(); R = self.WL
        p(f's_lshl_b32 {self.st0}, {self.sV}, 12\ns_add_u32 {self.st0}, {self.st0}, {WS}\nv_add_u32 {a}, {self.st0}, {self.L16}')
        for ah in range(4): p(f'ds_read_b128 {R[4*ah:4*ah+4]}, {a} offset:{1024*ah}')
        self.M = [[V.get(4) for _ in range(6)] for _ in range(2)]
        U = V.get(16)
        p('s_waitcnt lgkmcnt(0)')
        for u in range(2):
            for i in range(16):
                p(f'v_lshlrev_b32 {U[i]}, 16, {R[i]}' if u == 0 else f'v_and_b32 {U[i]}, 0xffff0000, {R[i]}')
            self.mcalc(self.M[u], U[0:4], U[4:8], U[8:12], U[12:16])
        self.N2 = [V.get(4), V.get(4)]
        self.sSP = S.get()
        lb = self.label('nosp')
        X = V.get(32); acc = V.get(); junk = [V.get(4), V.get(4)]
        lsp = self.label('spm')
        p(f'''s_or_b32 {self.sSP}, {self.sG}, {self.sV}
        s_cmp_eq_u32 {self.sSP}, 0
        s_cbranch_scc1 {lsp}
        {lb}:''')
        self.begin_ool(lsp)
        p(f'''s_lshl_b32 {self.st0}, {self.sR}, 13
        s_add_u32 {self.st0}, {self.st0}, {WX}
        v_lshlrev_b32 {a}, 11, {self.GK}
        v_lshl_add_u32 {a}, {self.L15}, 5, {a}''')
        self.addr64(self.sa, self.ws, self.st0)
        def issue():
            for i in range(4):
                for h in range(2): p(f'global_load_dwordx4 {X[8*i+4*h:8*i+4*h+4]}, {a}, {self.sa} offset:{512*i+16*h} sc1')
        def check():
            for i in range(8):
                p(f'v_bitop3_b32 {U[0]}, {X[4*i+1]}, {X[4*i+3]}, {self.sN} bitop3:0x7e')
                p(f'v_or_b32 {acc}, {U[0]}, {acc}' if i else f'v_mov_b32 {acc}, {U[0]}')
            p(f'v_cmp_ne_u32 vcc, 0, {acc}')
        issue(); self.poll(issue, check, 0)
        M0 = self.M[0]
        for col in range(2):
            for half in range(2):
                for i in range(4):
                    src = X[8*i+4*col+2*half]
                    p(f'v_lshlrev_b32 {U[8*half+i]}, 16, {src}\nv_and_b32 {U[8*half+4+i]}, 0xffff0000, {src}')
            MM = [M0[0], M0[1], junk[0], junk[1], M0[4], M0[5]] if col == 0 else [junk[0], junk[1], M0[2], M0[3], self.N2[0], self.N2[1]]
            self.mcalc(MM, U[0:4], U[4:8], U[8:12], U[12:16])
        p(f's_branch {lb}')
        self.end_ool()
        V.put(a, U, X, acc, *junk, self.WL, self.Cm, self.Sm)

    def t1_issue_setup(self):
        S, V = self.S, self.V
        self.sT1 = S.get(2); self.TL = V.get(16)
        self.p(f's_lshl_b32 {self.st0}, {self.sC}, 14\ns_lshl_b32 {self.st1}, {self.sV}, 12\ns_add_u32 {self.st0}, {self.st0}, {self.st1}')
        self.addr64(self.sT1, self.ws, self.st0)
    def t1_issue(self):
        for i in range(4): self.vm(f'global_load_dwordx4 {self.TL[4*i:4*i+4]}, {self.L16}, {self.sT1} offset:{1024*i} sc1', 't1ld')
    def middle(self, M, Pr, Pi, Qr, Qi, Fp, Fm, Pxr=None, Pxi=None, Qxr=None, Qxi=None, N2=None):
        p, V = self.P, self.V
        ppr, ppi, mmr, mmi, nr, ni = M
        n2r, n2i = N2 or (nr, ni)
        Pxr, Pxi, Qxr, Qxi = Pxr or Pr, Pxi or Pi, Qxr or Qr, Qxi or Qi
        T = V.get(8)
        N = ' neg_lo:[1,0,0] neg_hi:[1,0,0]'
        for h in range(2):
            s = lambda R: R[2*h:2*h+2]
            a, b, c, d = T[0:2], T[2:4], T[4:6], T[6:8]
            p(f'''v_pk_mul_f32 {a}, {s(ppr)}, {s(Pr)}
            v_pk_mul_f32 {b}, {s(ppr)}, {s(Pi)}
            v_pk_mul_f32 {c}, {s(mmr)}, {s(Qr)}
            v_pk_mul_f32 {d}, {s(mmr)}, {s(Qi)}
            v_pk_fma_f32 {a}, {s(ppi)}, {s(Pi)}, {a}{N}
            v_pk_fma_f32 {b}, {s(ppi)}, {s(Pr)}, {b}
            v_pk_fma_f32 {c}, {s(mmi)}, {s(Qi)}, {c}{N}
            v_pk_fma_f32 {d}, {s(mmi)}, {s(Qr)}, {d}
            v_pk_fma_f32 {a}, {s(ni)}, {s(Qxr)}, {a}{N}
            v_pk_fma_f32 {b}, {s(nr)}, {s(Qxr)}, {b}
            v_pk_fma_f32 {c}, {s(n2r)}, {s(Pxi)}, {c}
            v_pk_fma_f32 {d}, {s(n2r)}, {s(Pxr)}, {d}{N}
            v_pk_fma_f32 {a}, {s(nr)}, {s(Qxi)}, {a}{N}
            v_pk_fma_f32 {b}, {s(ni)}, {s(Qxi)}, {b}{N}
            v_pk_fma_f32 {c}, {s(n2i)}, {s(Pxr)}, {c}
            v_pk_fma_f32 {d}, {s(n2i)}, {s(Pxi)}, {d}''')
            for e in range(2):
                p(f'v_cvt_pk_bf16_f32 {Fp[2*h+e]}, {b[e]}, {a[e]}\nv_cvt_pk_bf16_f32 {Fm[2*h+e]}, {d[e]}, {c[e]}')
        V.put(T)
    def phase2(self, after_check=None):
        p, V, S = self.P, self.V, self.S
        TL = self.TL; F, Dr, Di = V.get(16), V.get(16), V.get(16)
        acc = V.get(); t = V.get(2)
        self.poll(self.t1_issue, lambda: self.check16(TL, acc, t), self.after('t1ld'))
        self.stamp('t1ok')
        for s in range(4):
            for i in range(4): p(f'v_mov_b32 {F[4*s+i]}, {TL[4*i+s]}')
            p(f'ds_write_b128 {self.aXW}, {F[4*s:4*s+4]} offset:{XI+1024*s}')
        if after_check: after_check()
        p('s_waitcnt lgkmcnt(0)\ns_barrier')
        for s in range(4): p(f'ds_read_b128 {F[4*s:4*s+4]}, {self.aXI} offset:{XI+1024*s}')
        lb, lep = self.label('ep'), self.label('epo')
        p(f's_or_b32 {self.st0}, {self.sC}, {self.sV}\ns_cmp_eq_u32 {self.st0}, 0\ns_cbranch_scc1 {lep}\n{lb}:')
        self.begin_ool(lep)
        p(f'''s_add_u32 {self.st0}, {self.sE}, 1
        v_mov_b32 {t[0]}, {self.st0}
        v_mov_b32 {t[1]}, 0
        s_mov_b64 exec, 1
        global_store_dword {t[1]}, {t[0]}, {self.sb}
        s_mov_b64 exec, -1
        s_waitcnt vmcnt(0)
        s_branch {lb}''')
        self.end_ool()
        q = lambda R, s: R[4*s:4*s+4]
        self.fft256(F, Dr, Di, (3, 2, 1, 0))
        lsp, ldone = self.label('sp'), self.label('spd')
        p(f's_cmp_eq_u32 {self.sSP}, 0\ns_cbranch_scc1 {lsp}')
        self.middle(self.M[0], q(Dr,0), q(Di,0), q(Dr,1), q(Di,1), q(F,0), q(F,1))
        p(f'{ldone}:')
        self.begin_ool(lsp)
        X, FX, Xr, Xi = TL, V.get(8), V.get(8), V.get(8); a = V.get()
        p(f's_lshl_b32 {self.st0}, {self.sR}, 12\ns_add_u32 {self.st0}, {self.st0}, {T1X}\nv_lshlrev_b32 {a}, 10, {self.GK}\nv_lshl_add_u32 {a}, {self.L15}, 4, {a}')
        self.addr64(self.sa, self.ws, self.st0)
        def issue():
            for i in range(4): p(f'global_load_dwordx4 {X[4*i:4*i+4]}, {a}, {self.sa} offset:{256*i} sc1')
        def check():
            for i in range(4):
                p(f'v_bitop3_b32 {t[0]}, {X[4*i+1]}, {X[4*i+3]}, {self.sN} bitop3:0x7e')
                p(f'v_or_b32 {acc}, {t[0]}, {acc}' if i else f'v_mov_b32 {acc}, {t[0]}')
            p(f'v_cmp_ne_u32 vcc, 0, {acc}')
        issue(); self.poll(issue, check, 0)
        for s in range(2):
            for i in range(4): p(f'v_mov_b32 {FX[4*s+i]}, {X[4*i+2*s]}')
        self.fft256(FX, Xr, Xi)
        self.middle(self.M[0], q(Dr,0), q(Di,0), q(Dr,1), q(Di,1), q(F,0), q(F,1), q(Xr,0), q(Xi,0), q(Xr,1), q(Xi,1), self.N2)
        p(f's_branch {ldone}')
        self.end_ool()
        V.put(FX, Xr, Xi, a)
        self.middle(self.M[1], q(Dr,2), q(Di,2), q(Dr,3), q(Di,3), q(F,2), q(F,3))
        self.fft256(F, Dr, Di)
        for rho in range(4):
            o = F[4*rho:4*rho+4]
            for s in range(4): p(f'v_cvt_pk_bf16_f32 {o[s]}, {Di[4*s+rho]}, {Dr[4*s+rho]}')
            self.tag4(o)
            p(f'ds_write_b128 {self.aEW}, {o} offset:{EX+1024*rho}')
        sa, st0, st1 = self.sa, self.st0, self.st1
        p(f'''s_lshl_b32 {st0}, {self.sV}, 12
        s_add_u32 {st0}, {st0}, {EX}
        v_add_u32 {acc}, {st0}, {self.L16}
        s_lshl_b32 {st0}, {self.sV}, 20
        s_lshl_b32 {st1}, {self.sC}, 6
        s_add_u32 {st0}, {st0}, {st1}
        s_add_u32 {st0}, {st0}, {T2}''')
        self.addr64(sa, self.ws, st0)
        p('s_waitcnt lgkmcnt(0)\ns_barrier')
        for i in range(4): p(f'ds_read_b128 {Dr[4*i:4*i+4]}, {acc} offset:{1024*i}')
        for i in range(4):
            if i: self.addr64(sa, sa, 16*16384)
            p(f's_waitcnt lgkmcnt({3-i})')
            self.vm(f'global_store_dwordx4 {self.aT2s}, {Dr[4*i:4*i+4]}, {sa} sc1', 't2st')
        self.stamp('t2st')
        V.put(F, Dr, Di, acc, t, self.aXW, self.aXI, self.aEW, self.aT2s, self.T16c, self.T16s, *self.M[0], *self.M[1], *self.N2)
        self.A.put(self.C16r, self.C16i); S.put(self.sT1)

    def consts3(self):
        p, V, A, S, L = self.P, self.V, self.A, self.S, self.L
        self.R4l, self.R4h = A.get(4), A.get(4)
        k, b, an, c, s, d = V.get(), V.get(), V.get(), V.get(), V.get(), V.get()
        m1, m2 = S.get(2), S.get(2)
        p(f'''v_bfe_u32 {k}, {L}, 3, 1
        v_bfe_u32 {b}, {L}, 1, 1
        v_lshl_add_u32 {k}, {k}, 1, {b}
        v_lshlrev_b32 {k}, 8, {k}
        v_add_u32 {k}, {self.sC}, {k}
        v_cvt_f32_u32 {k}, {k}
        v_mul_f32 {k}, {fl(1/1024)}, {k}
        v_and_b32 {b}, 1, {L}
        v_cvt_f32_u32 {b}, {b}
        v_mul_f32 {b}, {fl(-0.25)}, {b}
        v_bfe_u32 {c}, {L}, 2, 1
        v_cmp_eq_u32 {m1}, {c}, {self.GK}
        v_add_u32 {c}, 2, {c}
        v_cmp_eq_u32 {m2}, {c}, {self.GK}''')
        for r in range(4):
            p(f'''v_fmamk_f32 {an}, {k}, {fl(r)}, {b}
            v_cos_f32 {c}, {an}
            v_sin_f32 {s}, {an}
            v_mul_f32 {c}, {fl(2.0**-21)}, {c}
            v_mul_f32 {s}, {fl(-2.0**-21)}, {s}
            v_cvt_pk_bf16_f32 {d}, {c}, {s}
            v_cndmask_b32 {c}, 0, {d}, {m1}
            v_cndmask_b32 {s}, 0, {d}, {m2}
            v_accvgpr_write_b32 {self.R4l[r]}, {c}
            v_accvgpr_write_b32 {self.R4h[r]}, {s}''')
        S.put(m1, m2)
        self.aVW = V.get(4); self.aVR = V.get(4); self.aO = V.get()
        def vaddr(dst, q):
            p(f'''v_and_b32 {c}, 31, {q}
            v_lshrrev_b32 {s}, 5, {q}
            v_bfe_u32 {d}, {q}, 1, 3
            v_lshlrev_b32 {d}, 2, {d}
            v_xor_b32 {s}, {s}, {d}
            v_lshlrev_b32 {s}, 2, {s}
            v_lshl_add_u32 {s}, {c}, 7, {s}
            v_add_u32 {dst}, {s}, {b}''')
        m1 = S.get(2)
        p(f'''v_and_b32 {k}, 1, {self.GK}
        v_lshlrev_b32 {k}, 5, {k}
        v_lshl_add_u32 {k}, {self.L15}, 1, {k}
        s_lshl_b32 {self.st0}, {self.sV}, 7
        v_add_u32 {k}, {self.st0}, {k}
        v_lshlrev_b32 {b}, 13, {self.H}''')
        vaddr(self.aVW[0], k)
        p(f'v_sub_u32 {an}, {1024-1-64}, {k}'); vaddr(self.aVW[1], an)
        p(f'v_sub_u32 {an}, {1024-64}, {k}'); vaddr(self.aVW[3], an)
        p(f'''v_sub_u32 {an}, 0x400, {k}
        v_cmp_eq_u32 {m1}, 0, {k}
        v_mov_b32 {c}, 0x200
        v_cndmask_b32 {an}, {an}, {c}, {m1}''')
        vaddr(self.aVW[2], an)
        S.put(m1)
        p(f'''v_and_b32 {k}, 31, {L}
        v_bfe_u32 {c}, {L}, 1, 3
        v_xor_b32 {c}, {c}, {self.H}
        v_lshlrev_b32 {c}, 4, {c}
        v_lshl_add_u32 {k}, {k}, 7, {c}
        s_lshl_b32 {self.st0}, {self.sV}, 12
        v_add_u32 {self.aVR[0]}, {self.st0}, {k}''')
        for f in range(1, 4): p(f'v_xor_b32 {self.aVR[f]}, {32*f}, {self.aVR[0]}')
        if self.o.get('lin'):
            self.aOW, self.aOR = V.get(2), V.get()
            p(f'''v_bfe_u32 {k}, {self.PI}, 1, 1
            v_bfe_u32 {c}, {self.PI}, 3, 1
            v_lshl_or_b32 {k}, {c}, 1, {k}
            v_xor_b32 {k}, {k}, {self.H}
            v_lshlrev_b32 {k}, 4, {k}
            v_lshl_add_u32 {k}, {self.PI}, 6, {k}
            v_add_u32 {self.aOW[0]}, {self.st0}, {k}
            v_xor_b32 {self.aOW[1]}, 32, {self.aOW[0]}
            v_add_u32 {self.aOR}, {self.st0}, {self.L16}
            v_bfe_u32 {k}, {L}, 3, 1
            v_lshl_or_b32 {k}, {self.H}, 1, {k}
            v_xor_b32 {k}, {k}, {L}
            v_lshlrev_b32 {self.aO}, 4, {k}''')
        else:
            p(f'v_lshlrev_b32 {k}, 4, {self.H}\nv_lshl_add_u32 {self.aO}, {self.PI}, 6, {k}')
        V.put(k, b, an, c, s, d)
        self.sT2 = [S.get(2), S.get(2)]
        p(f's_lshl_b32 {self.st0}, {self.sC}, 14\ns_lshl_b32 {self.st1}, {self.sV}, 10\ns_add_u32 {self.st0}, {self.st0}, {self.st1}\ns_add_u32 {self.st0}, {self.st0}, {T2+4096}')
        self.addr64(self.sT2[0], self.ws, self.st0)
        self.addr64(self.sT2[1], self.sT2[0], 8192)
    def t2_issue(self):
        for r in range(4): self.vm(f'global_load_dwordx4 {self.TL[4*r:4*r+4]}, {self.L16}, {self.sT2[r>>1]} offset:{-4096*(1-(r&1))} sc1', 't2ld')
    def phase3(self):
        p, V, S = self.P, self.V, self.S
        TL = self.TL; F, Dr, Di = V.get(16), V.get(16), V.get(16)
        acc = V.get(); t = V.get(2)
        self.poll(self.t2_issue, lambda: self.check16(TL, acc, t), self.after('t2ld'))
        self.stamp('t2ok')
        for s in range(4):
            for i in range(4): p(f'v_mov_b32 {F[4*s+i]}, {TL[4*i+s]}')
        for s in range(4):
            p(f'v_mfma_f32_16x16x32_bf16 {Dr[4*s:4*s+4]}, {self.R4l}, {F[4*s:4*s+4]}, 0\nv_mfma_f32_16x16x32_bf16 {Di[4*s:4*s+4]}, {self.R4h}, {F[4*s:4*s+4]}, 0')
        for s in range(4):
            e, up = s >> 1, s & 1
            for hi, D in ((0, Dr), (1, Di)):
                for ml in range(2):
                    o = TL[4*s+2*hi+ml]
                    p(f'v_cvt_pk_bf16_f32 {o}, {"-" if up else ""}{D[4*s+2*ml+1]}, {D[4*s+2*ml]}')
                    if not up: a, off = self.aVW[0], 128*e + 8*hi
                    elif e: a, off = self.aVW[1], 8*(1-hi)
                    else: a, off = self.aVW[2+hi], 0
                    p(f'ds_write_b32 {a}, {o} offset:{off + 4096*ml}')
        sa, st0 = self.sa, self.st0
        p(f's_lshl_b32 {st0}, {self.sV}, 8\ns_add_u32 {st0}, {st0}, {self.sC}\ns_lshl_b32 {st0}, {st0}, 13\ns_add_u32 {st0}, {st0}, 4096')
        self.addr64(sa, self.out, st0)
        p('s_waitcnt lgkmcnt(0)\ns_barrier')
        for f in range(4): p(f'ds_read_b128 {F[4*f:4*f+4]}, {self.aVR[f]}')
        self.fft1024(F, Dr, Di, (3, 2, 1, 0))
        for row, D in ((0, Di), (1, Dr)):
            for hf in range(2):
                o = F[8*row+4*hf:8*row+4*hf+4]
                for k in range(4): p(f'v_cvt_pk_bf16_f32 {o[k]}, {D[8*hf+2*k]}, {D[8*hf+2*k+1]}')
                if self.o.get('lin'):
                    p(f'ds_write_b128 {self.aOW[hf]}, {o} offset:{2048*row}'); continue
                self.vm(f'global_store_dwordx4 {self.aO}, {o}, {sa} offset:{-4096*(1-row)+32*hf} {self.flag("out")}', 'out')
        if self.o.get('lin'):
            for i in range(4): p(f'ds_read_b128 {Dr[4*i:4*i+4]}, {self.aOR} offset:{1024*i}')
            for i in range(4):
                p(f's_waitcnt lgkmcnt({3-i})')
                self.vm(f'global_store_dwordx4 {self.aO}, {Dr[4*i:4*i+4]}, {sa} offset:{-4096*(1-(i>>1))+1024*(i&1)} {self.flag("out")}', 'out')
            V.put(self.aOW, self.aOR)
        self.stamp('outst')
        V.put(F, Dr, Di, acc, t, self.aVW, self.aVR, self.aO)
        S.put(*self.sT2); self.A.put(self.R4l, self.R4h)

    def tu_produce(self):
        p, V = self.P, self.V
        a, o, R = V.get(), V.get(), V.get(16)
        t = V.get(); L = self.L; sa, st0, st1 = self.sa, self.st0, self.st1
        p(f"""v_bfe_u32 {a}, {L}, 2, 2
        v_lshlrev_b32 {a}, 7, {a}
        v_lshrrev_b32 {t}, 4, {L}
        v_lshl_add_u32 {a}, {t}, 5, {a}
        v_and_b32 {t}, 3, {L}
        v_lshl_add_u32 {a}, {t}, 3, {a}
        s_lshl_b32 {st0}, {self.sV}, 12
        s_add_u32 {st0}, {st0}, {US}
        v_add_u32 {a}, {st0}, {a}""")
        for b in range(4):
            for h in range(2): p(f'ds_read_b64_tr_b16 {R[4*b+2*h:4*b+2*h+2]}, {a} offset:{1024*b+512*h}')
        p(f"""v_lshlrev_b32 {t}, 4, {t}
        v_lshrrev_b32 {o}, 2, {L}
        v_lshl_add_u32 {o}, {o}, 14, {t}
        s_lshr_b32 {st0}, {self.sC}, 4
        s_lshl_b32 {st0}, {st0}, 18
        s_and_b32 {st1}, {self.sC}, 15
        s_lshl_b32 {st1}, {st1}, 10
        s_add_u32 {st0}, {st0}, {st1}
        s_lshl_b32 {st1}, {self.sV}, 8
        s_add_u32 {st0}, {st0}, {st1}
        s_add_u32 {st0}, {st0}, {TU}""")
        self.addr64(sa, self.ws, st0)
        for b in range(4):
            p(f's_waitcnt lgkmcnt({6-2*b})')
            self.tag4(R[4*b:4*b+4])
            self.vm(f'global_store_dwordx4 {o}, {R[4*b:4*b+4]}, {sa} offset:{64*b} sc1', 'tust')
        V.put(a, o, R, t)
    def tu_setup(self):
        p, V, S = self.P, self.V, self.S
        self.aUW = V.get(); self.sTU = S.get(2); t = V.get()
        p(f"""v_and_b32 {t}, 3, {self.L}
        v_mul_u32_u24 {self.aUW}, {BW}, {t}
        v_lshrrev_b32 {t}, 2, {self.L}
        v_lshl_add_u32 {self.aUW}, {t}, 4, {self.aUW}
        s_lshl_b32 {self.st0}, {self.sV}, 10
        s_add_u32 {self.st0}, {self.st0}, {BB}
        v_add_u32 {self.aUW}, {self.st0}, {self.aUW}
        s_lshl_b32 {self.st0}, {self.sC}, 14
        s_lshl_b32 {self.st1}, {self.sV}, 12
        s_add_u32 {self.st0}, {self.st0}, {self.st1}
        s_add_u32 {self.st0}, {self.st0}, {TU}""")
        self.addr64(self.sTU, self.ws, self.st0)
        V.put(t)
    def tu_issue(self):
        if not hasattr(self, 'UL'): self.UL = self.V.get(16)
        for i in range(4): self.vm(f'global_load_dwordx4 {self.UL[4*i:4*i+4]}, {self.L16}, {self.sTU} offset:{1024*i} sc1', 'tuld')
    def tu_consume(self):
        p, V = self.P, self.V
        acc, t = V.get(), V.get(2)
        self.poll(self.tu_issue, lambda: self.check16(self.UL, acc, t), self.after('tuld'))
        for i in range(4): p(f'ds_write_b128 {self.aUW}, {self.UL[4*i:4*i+4]} offset:{UT+256*i}')
        V.put(acc, t, self.UL, self.aUW); self.S.put(self.sTU)

    def cmul(self, items):
        p = self.P
        for i, (d, x, e) in enumerate(items): p(f'v_pk_mul_f32 {self.CT[2*i:2*i+2]}, {x}, {e} op_sel:[0,0] op_sel_hi:[0,1]')
        for i, (d, x, e) in enumerate(items): p(f'v_pk_fma_f32 {d}, {x}, {e}, {self.CT[2*i:2*i+2]} op_sel:[1,1,0] op_sel_hi:[1,0,1] neg_lo:[0,1,0]')
    def krow(self, row, X, neg=False):
        p = self.P; o = self.KO[2*(row & 1):2*(row & 1)+2]
        for u in range(2): p(f'v_cvt_pk_bf16_f32 {o[u]}, {X[u][0]}, {"-" if neg else ""}{X[u][1]}')
        p(f'ds_write_b64 {self.aKW}, {o} offset:{KT+528*row}')
    def kgen_setup(self):
        p, V, S, L = self.P, self.V, self.S, self.L
        self.sB = S.get(); st0, st1 = self.st0, self.st1
        self.E = {n: [V.get(2), V.get(2)] for n in (1, 8, 128)}
        self.KY = [V.get(2), V.get(2)]; self.KX = [V.get(2), V.get(2)]; self.CT = V.get(4); self.KO = V.get(4)
        self.aKW, self.aKR = V.get(), V.get()
        dt, t0, t1, t2 = V.get(), V.get(), V.get(), V.get(); z = V.get(4)
        LOG2E = math.log2(math.e); hi = struct.unpack('<f', struct.pack('<f', LOG2E))[0]
        p(f"""s_mul_i32 {self.sB}, {self.sV}, {BW}
        s_add_u32 {self.sB}, {self.sB}, {BB}
        s_and_b32 {st0}, {self.sD}, 1
        s_lshl_b32 {st0}, {st0}, 4
        s_lshr_b32 {self.sLD}, {self.sLD}, {st0}
        s_lshl_b32 {self.sLD}, {self.sLD}, 16
        s_lshr_b32 {self.sDS}, {self.sDS}, {st0}
        s_lshl_b32 {self.sDS}, {self.sDS}, 16
        v_mov_b32 {t0}, {fl(hi)}
        v_mul_f32 {t1}, {self.sLD}, {t0}
        v_fma_f32 {t2}, {self.sLD}, {t0}, -{t1}
        v_mov_b32 {t0}, {fl(LOG2E-hi)}
        v_exp_f32 {dt}, {t1}
        v_fmac_f32 {t2}, {self.sLD}, {t0}
        v_mul_f32 {t2}, {fl(math.log(2))}, {t2}
        v_fmac_f32 {dt}, {dt}, {t2}
        v_cvt_pk_bf16_f32 {dt}, {dt}, {dt}
        v_lshlrev_b32 {dt}, 16, {dt}
        v_lshl_add_u32 {self.aKW}, {L}, 3, {self.sB}
        v_mul_u32_u24 {t0}, 528, {self.L15}
        v_lshl_add_u32 {t0}, {self.GK}, 4, {t0}
        v_add_u32 {self.aKR}, {self.sB}, {t0}
        v_mov_b32 {z[0]}, 0
        v_mov_b32 {z[1]}, 0
        v_mov_b32 {z[2]}, 0
        v_mov_b32 {z[3]}, 0
        v_lshl_add_u32 {t0}, {self.L15}, 4, {self.sB}
        ds_write_b128 {t0}, {z}
        v_and_b32 {t0}, 31, {L}
        v_lshl_add_u32 {t0}, {t0}, 4, {self.sB}
        ds_write_b128 {t0}, {z} offset:{UZ}""")
        un = lambda d, src, u: p(f'v_lshlrev_b32 {d}, 16, {src}' if u == 0 else f'v_and_b32 {d}, 0xffff0000, {src}')
        PR = self.PR
        for u in range(2):
            X, Y = self.KX[u], self.KY[u]
            un(X[0], PR[2], u); un(X[1], PR[3], u); un(Y[0], PR[4], u); un(Y[1], PR[5], u)
            p(f'v_mul_f32 {X[0]}, {dt}, {X[0]}\nv_mul_f32 {X[1]}, {dt}, {X[1]}')
        self.cmul([(self.KY[u], self.KY[u], self.KX[u]) for u in range(2)])
        for u in range(2):
            a, b = z[2*u], z[2*u+1]
            un(a, PR[0], u); un(b, PR[1], u)
            p(f"""v_mul_f32 {a}, {dt}, {a}
            v_mul_f32 {b}, {dt}, {b}
            v_mul_f32 {a}, {fl(LOG2E)}, {a}
            v_mul_f32 {b}, {fl(1/(2*math.pi))}, {b}""")
        for n in (1, 8, 128):
            for u in range(2):
                a, b = z[2*u], z[2*u+1]; E = self.E[n][u]
                if n == 1: p(f'v_exp_f32 {t0}, {a}\nv_fract_f32 {t1}, {b}')
                else: p(f'v_mul_f32 {t0}, {fl(n)}, {a}\nv_mul_f32 {t1}, {fl(n)}, {b}\nv_exp_f32 {t0}, {t0}\nv_fract_f32 {t1}, {t1}')
                p(f"""v_cos_f32 {E[0]}, {t1}
                v_sin_f32 {E[1]}, {t1}
                v_mul_f32 {E[0]}, {t0}, {E[0]}
                v_mul_f32 {E[1]}, {t0}, {E[1]}""")
        V.put(dt, t0, t1, t2, z, self.PR)
    def kgen_units(self):
        p, A, V = self.P, self.A, self.V; X, Y, E = self.KX, self.KY, self.E; U = []
        R2 = range(2)
        def first():
            p(f'v_mov_b32 {self.KO[0]}, 0x3f80\nv_mov_b32 {self.KO[1]}, 0x3f80\nds_write_b64 {self.aKW}, {self.KO[0:2]} offset:{KT}')
            self.krow(1, E[8], True)
        U.append(first)
        def unit(dst, src, e, row, neg=False):
            def f():
                self.cmul([(dst[u], src[u], e[u]) for u in R2])
                if row is not None: self.krow(row, dst, neg)
            U.append(f)
        for b in range(2, 16): unit(X, E[8] if b == 2 else X, E[8], b, True)
        U.append(lambda: self.krow(16, Y))
        for a in range(2):
            if a: unit(Y, Y, E[128], 24)
            for j in range(1, 8): unit(X, Y if j == 1 else X, E[1], 16+8*a+j)
        def reads1():
            self.BF, self.AF = A.get(32), [A.get(32), A.get(32), A.get(32)]
            for t in range(8):
                p(f'ds_read_b128 {self.BF[4*t:4*t+4]}, {self.aKR} offset:{KT+64*t}')
                p(f'ds_read_b128 {self.AF[0][4*t:4*t+4]}, {self.aKR} offset:{KT+16*528+64*t}')
        U.append(reads1)
        unit(E[1], E[1], E[1], None); unit(E[8], E[1], E[1], None)
        for a in range(2):
            unit(Y, Y, E[128], 4*a)
            for j in range(1, 4): unit(X, Y if j == 1 else X, E[1], 4*a+j)
        for a in range(4):
            unit(Y, Y, E[128], 8+2*a); unit(X, Y, E[8], 9+2*a)
        for a in range(9): unit(Y, Y, E[128], 16+a)
        def reads2():
            for k in range(1, 3):
                for t in range(8): p(f'ds_read_b128 {self.AF[k][4*t:4*t+4]}, {self.aKR} offset:{KT+16*528*(k-1)+64*t}')
            V.put(*E[1], *E[8], *E[128], *X, *Y, self.CT, self.KO, self.aKW, self.aKR)
        U.append(reads2)
        return U
    def kgen_mfma(self):
        p, V, L = self.P, self.V, self.L
        KD = V.get(12); a0, a1, a2, a3, t = V.get(), V.get(), V.get(), V.get(), V.get(); O = V.get(6)
        for k in range(3):
            p(f's_waitcnt lgkmcnt({(15, 8, 0)[k]})')
            for i in range(8):
                p(f'v_mfma_f32_16x16x32_bf16 {KD[4*k:4*k+4]}, {self.AF[k][4*i:4*i+4]}, {self.BF[4*i:4*i+4]}, {KD[4*k:4*k+4] if i else 0}')
            if k == 0:
                p(f"""v_lshlrev_b32 {a0}, 8, {self.H}
                v_lshl_add_u32 {a0}, {self.L15}, 4, {a0}
                v_and_b32 {t}, 1, {self.GK}
                v_lshl_add_u32 {a0}, {t}, 3, {a0}
                v_add_u32 {a0}, {self.sB}, {a0}
                v_lshl_add_u32 {a3}, {self.GK}, 7, {self.sB}
                v_sub_u32 {t}, 3, {self.H}
                v_lshlrev_b32 {t}, {t}, {self.L15}
                v_add_u32 {a1}, {a3}, {t}
                v_mul_u32_u24 {t}, 60, {self.H}
                v_add3_u32 {a2}, {a1}, {t}, 4
                v_lshl_add_u32 {a3}, {self.L15}, 1, {a3}
                v_cmp_eq_u32 vcc, 0, {L}
                v_mov_b32 {t}, {self.sDS}
                v_cndmask_b32 {t}, 0, {t}, vcc""")
        p(f'v_add_f32 {KD[0]}, {KD[0]}, {t}')
        for i in range(6): p(f'v_cvt_pk_bf16_f32 {O[i]}, {KD[2*i]}, {KD[2*i+1]}')
        p(f"""ds_write_b64 {a0}, {O[0:2]} offset:{KT}
        ds_write_b32 {a1}, {O[2]} offset:{KC}
        ds_write_b32 {a2}, {O[3]} offset:{KC}
        ds_write_b16 {a3}, {O[4]} offset:{KC+512}
        ds_write_b16_d16_hi {a3}, {O[4]} offset:{KC+512+32}
        ds_write_b16 {a3}, {O[5]} offset:{KC+512+64}
        ds_write_b16_d16_hi {a3}, {O[5]} offset:{KC+512+96}""")
        V.put(KD, a0, a1, a2, a3, t, O); self.A.put(self.BF, *self.AF)
    def kexpand(self):
        p, V, S, L = self.P, self.V, self.S, self.L
        sLO, sHI = S.get(), S.get()
        a, b, c = V.get(), V.get(), V.get(); R = V.get(8); O = V.get(16)
        p(f"""v_and_b32 {c}, 31, {L}
        v_lshl_add_u32 {a}, {c}, 3, {self.sB}
        v_lshl_add_u32 {b}, {L}, 2, {self.sB}
        v_add_u32 {b}, {KC}, {b}
        ds_read_b64 {R[0:2]}, {a} offset:{KC}
        ds_read_b32 {R[2]}, {a} offset:{KC+8}
        ds_read2_b32 {R[4:6]}, {b} offset0:64 offset1:65
        ds_read2_b32 {R[6:8]}, {b} offset0:128 offset1:129
        s_mov_b32 {sLO}, 0x01000100
        s_mov_b32 {sHI}, 0x03020302
        v_lshl_add_u32 {a}, {c}, 4, {self.sB}
        v_add_u32 {b}, {self.sB}, {self.L16}
        v_lshl_add_u32 {c}, {L}, 5, {self.sB}
        s_waitcnt lgkmcnt(2)
        v_perm_b32 {O[0]}, {R[0]}, {R[0]}, {sLO}
        v_alignbit_b32 {O[1]}, {R[1]}, {R[0]}, 16
        v_perm_b32 {O[2]}, {R[1]}, {R[1]}, {sLO}
        v_alignbit_b32 {O[3]}, {R[2]}, {R[1]}, 16
        ds_write_b128 {a}, {O[0:4]} offset:{KT+512}
        s_waitcnt lgkmcnt(2)
        v_perm_b32 {O[4]}, {R[4]}, {R[4]}, {sLO}
        v_mov_b32 {O[5]}, {R[4]}
        v_perm_b32 {O[6]}, {R[4]}, {R[4]}, {sHI}
        v_perm_b32 {O[7]}, {R[5]}, {R[5]}, {sLO}
        ds_write_b128 {b}, {O[4:8]} offset:{KT+1024}
        s_waitcnt lgkmcnt(2)
        v_perm_b32 {O[8]}, {R[6]}, {R[6]}, {sLO}
        v_mov_b32 {O[10]}, {R[6]}
        v_perm_b32 {O[11]}, {R[6]}, {R[6]}, {sHI}
        v_mov_b32 {O[9]}, {O[8]}
        v_perm_b32 {O[14]}, {R[7]}, {R[7]}, {sLO}
        v_mov_b32 {O[12]}, {O[11]}
        v_mov_b32 {O[13]}, {O[11]}
        v_mov_b32 {O[15]}, {O[14]}
        ds_write_b128 {c}, {O[8:12]} offset:{KT+2048}
        ds_write_b128 {c}, {O[12:16]} offset:{KT+2048+16}""")
        V.put(R); R = V.get(24)
        for r in range(4):
            p(f'ds_read_b64 {R[6*r:6*r+2]}, {b} offset:{KT-8+1024*r}\nds_read_b128 {R[6*r+2:6*r+6]}, {b} offset:{KT+1024*r}')
        p(f"""v_lshrrev_b32 {a}, 2, {L}
        v_lshlrev_b32 {a}, 8, {a}
        v_and_b32 {c}, 3, {L}
        v_lshl_add_u32 {a}, {c}, 4, {a}
        v_add_u32 {a}, {self.sB}, {a}""")
        for r in range(4):
            Q = R[6*r:6*r+6]
            p(f's_waitcnt lgkmcnt({min(15, 6-2*r+4*r)})')
            p(f'ds_write_b128 {a}, {Q[2:6]} offset:{KT+4096*r}')
            for k in range(4): p(f'v_alignbit_b32 {O[k]}, {Q[k+2]}, {Q[k+1]}, 16')
            p(f'ds_write_b128 {a}, {O[0:4]} offset:{KT+4096*r+64}')
            for k in range(4): p(f'v_mov_b32 {O[4+k]}, {Q[k+1]}')
            p(f'ds_write_b128 {a}, {O[4:8]} offset:{KT+4096*r+128}')
            for k in range(4): p(f'v_alignbit_b32 {O[8+k]}, {Q[k+1]}, {Q[k]}, 16')
            p(f'ds_write_b128 {a}, {O[8:12]} offset:{KT+4096*r+192}')
        V.put(a, b, c, R, O); S.put(sLO, sHI)
    def conv_setup(self):
        p, V, A, L = self.P, self.V, self.A, self.L
        self.aKA = V.get(2); self.aUB = V.get(); self.aYW = V.get(); self.aYR = V.get(); self.aYO = V.get(); self.TGY = V.get(2)
        self.ACC = V.get(32); self.CA = [A.get(32), A.get(32)]; self.CB = [A.get(32), A.get(32)]
        y, t, r4, cc = V.get(), V.get(), V.get(), V.get()
        p(f'v_bfe_u32 {r4}, {L}, 2, 2\nv_and_b32 {cc}, 3, {L}')
        for k in range(2):
            p(f"""v_lshlrev_b32 {y}, 1, {self.GK}
            v_sub_u32 {y}, {cc}, {y}
            v_lshl_add_u32 {y}, {y}, 2, {16-4*k}
            v_ashrrev_i32 {t}, 5, {y}
            v_lshlrev_b32 {t}, 8, {t}
            v_and_b32 {y}, 31, {y}
            v_lshl_add_u32 {y}, {y}, 1, {t}
            v_lshl_add_u32 {y}, {r4}, 6, {y}
            v_add_u32 {self.aKA[k]}, {self.sB}, {y}""")
        p(f"""v_lshlrev_b32 {y}, 4, {self.GK}
        v_lshl_add_u32 {y}, {self.L15}, 5, {y}
        v_add_u32 {self.aUB}, {self.sB}, {y}
        v_add_u32 {y}, {self.GK}, {r4}
        v_and_b32 {y}, 3, {y}
        v_lshlrev_b32 {y}, 3, {y}
        v_lshl_add_u32 {y}, {self.L15}, 5, {y}
        s_mul_i32 {self.st0}, {self.sV}, {YST}
        v_add_u32 {self.aYW}, {self.st0}, {y}
        v_add_u32 {y}, {self.GK}, {cc}
        v_and_b32 {y}, 3, {y}
        v_lshlrev_b32 {y}, 3, {y}
        v_lshl_add_u32 {y}, {self.GK}, 7, {y}
        v_mul_u32_u24 {t}, {YST}, {r4}
        s_lshl_b32 {self.st0}, {self.sV}, 9
        v_add3_u32 {self.aYR}, {y}, {t}, {self.st0}
        v_lshlrev_b32 {y}, 3, {self.L15}
        v_lshl_add_u32 {self.aYO}, {self.GK}, 13, {y}
        v_and_b32 {y}, 1, {L}
        v_cmp_eq_u32 vcc, 1, {y}
        v_mov_b32 {y}, {self.TG[0]}
        v_mov_b32 {t}, {self.TG[2]}
        v_cndmask_b32 {self.TGY[0]}, {y}, {t}, vcc
        v_mov_b32 {y}, {self.TG[1]}
        v_mov_b32 {t}, {self.TG[3]}
        v_cndmask_b32 {self.TGY[1]}, {y}, {t}, vcc""")
        V.put(y, t, r4, cc)
        self.started = set()
    def conv_reads(self, half, e0):
        n = 4 if half == 0 else 8; buf = e0 & 1; l = []
        for i in range(n):
            for t in range(2): l.append(f'ds_read_b64_tr_b16 {self.CA[buf][4*i+2*t:4*i+2*t+2]}, {self.aKA[t]} offset:{KT+256*(e0+8*i)}')
            l.append(f'ds_read_b128 {self.CB[buf][4*i:4*i+4]}, {self.aUB} offset:{UT-32+512*i-64*e0}')
        return l
    def conv_order(self, half):
        n = 4 if half == 0 else 8
        pairs = [(e1, g) for e1 in range(n) for g in range(n) if 4*half <= e1+g <= 4*half+3]
        out = []; have = set()
        while pairs:
            cost = lambda x: ((('a', x[0]) not in have)*2 + (('b', x[1]) not in have), x)
            x = min(pairs, key=cost); pairs.remove(x); out.append(x); have |= {('a', x[0]), ('b', x[1])}
        return out
    def conv_frag_reads(self, half, e0):
        buf = e0 & 1; l = []; seen = set()
        for e1, g in self.conv_order(half):
            if ('a', e1) not in seen:
                seen.add(('a', e1))
                for t in range(2): l.append(((half, e0, 'a', e1), f'ds_read_b64_tr_b16 {self.CA[buf][4*e1+2*t:4*e1+2*t+2]}, {self.aKA[t]} offset:{KT+256*(e0+8*e1)}'))
            if ('b', g) not in seen:
                seen.add(('b', g))
                l.append(((half, e0, 'b', g), f'ds_read_b128 {self.CB[buf][4*g:4*g+4]}, {self.aUB} offset:{UT-32+512*g-64*e0}'))
        return l
    def conv_request(self, step):
        self.dsq = []
        for k, x in self.conv_frag_reads(*step): self.P(x); self.dsq.append(k)
    def conv_run(self, steps, nxt):
        p = self.P
        for i, (h, e0) in enumerate(steps):
            n = steps[i+1] if i+1 < len(steps) else nxt
            pf = self.conv_frag_reads(*n) if n else []
            order = self.conv_order(h); buf = e0 & 1
            for k, (e1, g) in enumerate(order):
                need = [j for j, key in enumerate(self.dsq) if key in ((h, e0, 'a', e1), (h, e0, 'b', g))]
                if need:
                    left = len(self.dsq) - 1 - max(need)
                    p(f's_waitcnt lgkmcnt({min(15, left)})')
                    self.dsq = self.dsq[len(self.dsq)-min(15, left):] if left else []
                c = e1+g; acc = self.ACC[4*c:4*c+4]
                p(f'v_mfma_f32_16x16x32_bf16 {acc}, {self.CA[buf][4*e1:4*e1+4]}, {self.CB[buf][4*g:4*g+4]}, {acc if c in self.started else 0}')
                self.started.add(c)
                m = -(-len(pf)//(len(order)-k)) if pf else 0
                for _ in range(max(m, 1) if pf else 0):
                    key, x = pf.pop(0); p(x); self.dsq.append(key)
    def ds_other(self, n):
        self.dsq += [None]*n
    def y_stage(self, half):
        p, V = self.P, self.V; O = V.get(8)
        for i in range(4):
            c = 4*half+i
            p(f'v_cvt_pk_bf16_f32 {O[2*i]}, {self.ACC[4*c]}, {self.ACC[4*c+1]}\nv_cvt_pk_bf16_f32 {O[2*i+1]}, {self.ACC[4*c+2]}, {self.ACC[4*c+3]}')
            p(f'ds_write_b64 {self.aYW}, {O[2*i:2*i+2]} offset:{YS+512*c}')
        V.put(O)
    def y_read(self, half):
        self.YR = self.V.get(8)
        for k in range(4): self.p(f'ds_read_b64_tr_b16 {self.YR[2*k:2*k+2]}, {self.aYR} offset:{YS+2048*half+32*k}')
    def y_store(self, half):
        p = self.P; sa, st0, st1 = self.sa, self.st0, self.st1
        p(f"""s_and_b32 {st0}, {self.sC}, 0xf0
        s_lshl_b32 {st1}, {self.sV}, 2
        s_add_u32 {st0}, {st0}, {st1}
        s_lshl_b32 {st0}, {st0}, 4
        s_and_b32 {st1}, {self.sC}, 15
        s_add_u32 {st0}, {st0}, {st1}
        s_lshl_b32 {st0}, {st0}, 9
        s_add_u32 {st0}, {st0}, {TY+(half<<21)}""")
        self.addr64(sa, self.ws, st0)
        for k in range(4):
            for d in range(2): p(f'v_bfi_b32 {self.YR[2*k+d]}, {self.MK}, {self.YR[2*k+d]}, {self.TGY[d]}')
            self.vm(f'global_store_dwordx2 {self.aYO}, {self.YR[2*k:2*k+2]}, {sa} offset:{128*k} sc1', 'yst')
        self.V.put(self.YR)
    def ty_setup(self):
        p, V, S, L = self.P, self.V, self.S, self.L
        self.aGL, self.aGW, self.aGR, self.aGO = V.get(), V.get(), V.get(2), V.get()
        self.sTY, self.sYO = S.get(2), S.get(2); self.YL = [V.get(8), V.get(8)]
        hi, lo, t = V.get(), V.get(), V.get(); st0, st1 = self.st0, self.st1
        p(f"""v_lshrrev_b32 {hi}, 3, {L}
        v_and_b32 {lo}, 7, {L}
        v_lshlrev_b32 {t}, 4, {lo}
        v_lshl_add_u32 {self.aGL}, {hi}, 9, {t}
        v_lshl_add_u32 {self.aGO}, {hi}, 12, {t}
        v_xor_b32 {t}, {self.GK}, {lo}
        v_lshlrev_b32 {t}, 4, {t}
        s_lshl_b32 {st0}, {self.sV}, 12
        s_add_u32 {st0}, {st0}, {EX}
        v_lshl_add_u32 {self.aGW}, {hi}, 7, {t}
        v_add_u32 {self.aGW}, {st0}, {self.aGW}
        v_lshl_add_u32 {t}, {lo}, 8, {t}
        v_and_b32 {hi}, 1, {hi}
        v_lshl_add_u32 {t}, {hi}, 3, {t}
        v_add_u32 {self.aGR[0]}, {st0}, {t}
        v_xor_b32 {self.aGR[1]}, 64, {self.aGR[0]}
        s_lshl_b32 {st0}, {self.sC}, 13
        s_lshl_b32 {st1}, {self.sV}, 7
        s_add_u32 {st0}, {st0}, {st1}
        s_add_u32 {st0}, {st0}, {TY}""")
        self.addr64(self.sTY, self.ws, st0)
        p(f"""s_and_b32 {st0}, {self.sC}, 15
        s_lshl_b32 {st0}, {st0}, 2
        s_add_u32 {st0}, {st0}, {self.sV}
        s_lshl_b32 {st0}, {st0}, 16
        s_lshr_b32 {st1}, {self.sC}, 4
        s_lshl_b32 {st1}, {st1}, 7
        s_add_u32 {st0}, {st0}, {st1}
        s_add_u32 {st0}, {st0}, 2048""")
        self.addr64(self.sYO, self.out, st0)
        V.put(hi, lo, t)
    def ty_issue(self, half):
        Y = self.YL[half]
        self.addr64(self.sa, self.sTY, (half << 21) + 4096)
        for i in range(2): self.vm(f'global_load_dwordx4 {Y[4*i:4*i+4]}, {self.aGL}, {self.sa} offset:{-4096*(1-i)} sc1', f'tyld{half}')
    def ty_consume(self, half):
        p, V = self.P, self.V; Y = self.YL[half]
        acc, t = V.get(), V.get(2)
        def check():
            for d in range(4): p(f'v_bitop3_b32 {t[d&1] if d else acc}, {Y[d]}, {Y[4+d]}, {self.TG[d]} bitop3:0x7e' + (f'\nv_or3_b32 {acc}, {acc}, {t[0]}, {t[1]}' if d == 2 else ''))
            p(f'v_or_b32 {acc}, {acc}, {t[1]}\nv_and_b32 {acc}, 0x10001, {acc}\nv_cmp_ne_u32 vcc, 0, {acc}')
        self.poll(lambda: self.ty_issue(half), check, self.after(f'tyld{half}'))
        p(f'ds_write_b128 {self.aGW}, {Y[0:4]}\nv_xor_b32 {acc}, 64, {self.aGW}\nds_write_b128 {acc}, {Y[4:8]} offset:1024')
        for k in range(2): p(f'ds_read2_b64 {Y[4*k:4*k+4]}, {self.aGR[k]} offset0:0 offset1:16')
        self.addr64(self.sa, self.sYO, half << 22)
        for k in range(2):
            if k: self.addr64(self.sa, self.sa, 8*4096)
            p(f's_waitcnt lgkmcnt({1-k})')
            self.vm(f'global_store_dwordx4 {self.aGO}, {Y[4*k:4*k+4]}, {self.sa} {self.flag("out")}', 'yout')
        V.put(acc, t, Y)

    def finish(self):
        p, V = self.P, self.V
        if self.stamps:
            p('s_waitcnt vmcnt(0)')
            self.stamp('end'); c1 = self.S.get(2); p(f's_memtime {c1}\ns_waitcnt lgkmcnt(0)')
            p(f's_sub_u32 {c1[0]}, {c1[0]}, {self.clk0[0]}'); self.stn.append(('cyc', c1))
            d = V.get(); a = V.get()
            p(f's_lshl_b32 {self.st0}, s2, 2\ns_add_u32 {self.st0}, {self.st0}, {self.sV}\ns_lshl_b32 {self.st0}, {self.st0}, 7\ns_add_u32 {self.st0}, {self.st0}, {DBG}')
            self.addr64(self.sa, self.ws, self.st0)
            p(f'v_mov_b32 {a}, 0\ns_mov_b64 exec, 1')
            for i, (n, r) in enumerate(self.stn):
                p(f'v_mov_b32 {d}, {r[0]}\nglobal_store_dword {a}, {d}, {self.sa} offset:{4*i}\ns_nop 1')
            if self.o.get('dbgstamps'):
                p(f's_load_dwordx2 {self.sa}, s[0:1], 104\ns_waitcnt lgkmcnt(0)')
                for i, (n, r) in enumerate(self.stn):
                    p(f'v_mov_b32 {d}, {r[0]}\nglobal_atomic_umax {a}, {d}, {self.sa} offset:{4*i}\ns_nop 1')
                p(f's_not_b32 {self.st0}, {self.stn[0][1][0]}\nv_mov_b32 {d}, {self.st0}\nglobal_atomic_umax {a}, {d}, {self.sa} offset:60')
            amp = [k for k in self.o if k.startswith('amp=')]
            if amp:
                _, nm, wg = amp[0].split('=')
                r = dict(self.stn)[nm]; e = dict(self.stn)['end']; t = self.sb
                p(f'''s_lshl_b32 {self.st0}, s2, 2
                s_add_u32 {self.st0}, {self.st0}, {self.sV}
                s_cmp_lg_u32 {self.st0}, {4*int(wg)}
                s_cbranch_scc1 L_end
                s_sub_u32 {self.st0}, {r[0]}, {self.stn[0][1][0]}
                s_min_u32 {self.st0}, {self.st0}, 10000
                s_mul_i32 {self.st0}, {self.st0}, 20
                L_amp:
                s_sleep 8
                s_memrealtime {t}
                s_waitcnt lgkmcnt(0)
                s_sub_u32 {self.st1}, {t[0]}, {e[0]}
                s_cmp_lt_u32 {self.st1}, {self.st0}
                s_cbranch_scc1 L_amp''')
        p('L_end:\ns_endpgm')

    def emit(self):
        pad = self.p.pad(); errs = self.p.verify()
        for q in self.ool: pad += q.pad(); errs += q.verify()
        for e in errs: print('VERIFY', e, file=sys.stderr)
        hdr = open('cdna_kernels/%s.s.ref' % NAME).read().split('; Override launch')[0]
        nv = 256; na = max(8, self.A.hi)
        s = hdr + (('; cyc\n' if self.o.get('cyc') else '') + '; stamps: ' + ' '.join(n for n, _ in self.stn) + '\n' if self.stamps else '') + f'; @launch grid=(256,1,1) block=(256,1,1) lds={LDS_BYTES}\n'
        s += f'.amdgcn_target "amdgcn-amd-amdhsa--gfx950"\n.text\n.globl {NAME}_kernel\n.p2align 8\n.type {NAME}_kernel,@function\n{NAME}_kernel:\n'
        s += self.p.text() + ''.join(q.text() for q in self.ool) + 'L_codeend:\n'
        s += f'''.section .rodata,"a"
.p2align 6
.amdhsa_kernel {NAME}_kernel
  .amdhsa_next_free_vgpr {nv+na}
  .amdhsa_next_free_sgpr 102
  .amdhsa_accum_offset {nv}
  .amdhsa_group_segment_fixed_size 0
  .amdhsa_kernarg_size 120
  .amdhsa_user_sgpr_count 2
  .amdhsa_user_sgpr_kernarg_segment_ptr 1
  .amdhsa_system_sgpr_workgroup_id_x 1
  .amdhsa_float_denorm_mode_32 3
.end_amdhsa_kernel
'''
        n = sum(1 for i in self.p.ins if i.states)
        print(f'instrs {n} pad {pad} vgpr {self.V.hi} agpr {self.A.hi} sgpr {self.S.hi} errs {len(errs)}', file=sys.stderr)
        return s

def build_v2(stamps=False, opts=None):
    g = Gen(stamps, opts); p = g.P; o = g.o
    geti = lambda k, d: int(next((x.split('=')[1] for x in o if x.startswith(k + '=')), d))
    g.prologue(); g.consts1()
    g.loads_u(); g.loads_wx()
    g.consts2(); g.tu_setup(); g.t1_issue_setup()
    g.stamp('cons')
    g.loads_w()
    g.wait_vm('par'); g.kgen_setup()
    U = g.kgen_units(); n0, n1 = geti('n0', 8), geti('n1', 34)
    for f in U[:n0]: f()
    g.stamp('k0')
    g.phase1()
    g.wait_vm('u'); g.tu_produce()
    g.stamp('tust')
    g.wait_vm('W'); g.wstage(); g.mpre()
    if hasattr(g, 'PF'): g.V.put(g.PF)
    g.stamp('mpre')
    for f in U[n0:n1]: f()
    g.t1_issue()
    g.stamp('t1ld')
    for f in U[n1:]: f()
    g.kgen_mfma(); g.stamp('kmf'); g.kexpand()
    g.stamp('kdone')
    g.phase2(g.tu_issue)
    g.tu_consume()
    g.conv_setup(); g.consts3(); g.ty_setup()
    p('s_waitcnt lgkmcnt(0)\ns_barrier')
    g.stamp('c3')
    g.conv_request((0, 0))
    g.conv_run([(0, e) for e in range(8)], (1, 0))
    g.y_stage(0); g.ds_other(4)
    g.t2_issue()
    g.conv_run([(1, 0), (1, 1)], (1, 2))
    p('s_barrier')
    g.y_read(0); g.ds_other(4)
    g.conv_run([(1, 2), (1, 3)], (1, 4))
    g.y_store(0)
    g.conv_run([(1, e) for e in range(4, 8)], None)
    g.y_stage(1)
    p('s_waitcnt lgkmcnt(0)\ns_barrier')
    g.y_read(1); p('s_waitcnt lgkmcnt(0)'); g.y_store(1)
    g.ty_issue(0)
    g.stamp('cv')
    g.phase3()
    g.ty_issue(1)
    g.ty_consume(0)
    g.stamp('ty0')
    g.ty_consume(1)
    g.finish()
    return g

if __name__ == '__main__':
    g = globals()['build_' + sys.argv[2]]('-s' in sys.argv, {k: True for k in sys.argv[3:]})
    open(sys.argv[1], 'w').write(g.emit())
    print([n for n, _ in g.stn], file=sys.stderr)
```

```python
import numpy as np, re, struct
M = 0xffffffff
def f2u(x): return np.asarray(x, np.float32).view(np.uint32).astype(np.int64)
def u2f(x): return np.asarray(x, np.int64).astype(np.uint32).view(np.float32)
def bf(x):
    u = f2u(x); return ((u + 0x7fff + ((u >> 16) & 1)) >> 16) & 0xffff
def sx24(x): x = x & 0xffffff; return np.where(x >= 1 << 23, x - (1 << 24), x)
def run(lines, regs):
    def val(t, fl=False):
        t = t.strip(); neg = ab = False
        if t.startswith('-') and t[1:2] in 'va|': neg = True; t = t[1:]
        if t.startswith('abs('): ab = True; t = t[4:-1]
        if t in regs: v = regs[t]
        elif re.fullmatch(r'-?\d+\.\d+', t): v = int(f2u(float(t)))
        else: v = int(t, 0) & M
        v = np.zeros(64, np.int64) + v
        if ab: v = v & 0x7fffffff
        if neg: v = v ^ 0x80000000
        return v
    ex = np.ones(64, bool)
    for l in lines:
        l = l.split(';')[0].strip()
        if not l or l.startswith('s_nop'): continue
        if 'exec' in l:
            m = int(l.split(',')[1], 0); b = (m >> np.arange(32) & 1).astype(bool)
            if 'exec_lo' in l: ex[:32] = b
            elif 'exec_hi' in l: ex[32:] = b
            else: ex[:] = True
            continue
        mn, rest = l.split(None, 1); clamp = rest.endswith(' clamp'); rest = rest.replace(' clamp', '')
        o = [x.strip() for x in re.split(r',(?![^\[]*\])', rest)]; d = o[0]; a = [val(x) for x in (o[1:3] if mn.startswith('v_cndmask') else o[1:])]
        mn = mn.replace('_e64', '')
        s = lambda x: np.where(x >= 1 << 31, x - (1 << 32), x)
        F = lambda i: u2f(a[i])
        if mn.startswith('v_cmp'):
            op = mn.split('_')[2]; x, y = (s(a[0]), s(a[1])) if mn.endswith('i32') else (a[0], a[1])
            regs[d] = {'eq': x == y, 'ne': x != y, 'lt': x < y, 'gt': x > y, 'le': x <= y, 'ge': x >= y}[op]; continue
        if mn == 'v_cndmask_b32':
            m = regs[o[3]]; regs[d] = np.where(m, val(o[2]), val(o[1])); continue
        T = {'v_mov_b32': lambda: a[0], 's_mov_b32': lambda: a[0], 's_movk_i32': lambda: a[0], 'v_and_b32': lambda: a[0] & a[1], 'v_or_b32': lambda: a[0] | a[1], 'v_xor_b32': lambda: a[0] ^ a[1],
             'v_lshlrev_b32': lambda: a[1] << (a[0] & 31), 'v_lshrrev_b32': lambda: a[1] >> (a[0] & 31), 'v_ashrrev_i32': lambda: s(a[1]) >> (a[0] & 31),
             'v_add_u32': lambda: a[0] + a[1], 'v_sub_u32': lambda: a[0] - a[1], 'v_subrev_u32': lambda: a[1] - a[0], 'v_mul_u32_u24': lambda: (a[0] & 0xffffff)*(a[1] & 0xffffff),
             'v_mul_i32_i24': lambda: sx24(a[0])*sx24(a[1]), 'v_mad_u32_u24': lambda: (a[0] & 0xffffff)*(a[1] & 0xffffff) + a[2], 'v_mad_i32_i24': lambda: sx24(a[0])*sx24(a[1]) + a[2],
             'v_lshl_add_u32': lambda: (a[0] << (a[1] & 31)) + a[2], 'v_add_lshl_u32': lambda: (a[0] + a[1]) << (a[2] & 31), 'v_add3_u32': lambda: a[0] + a[1] + a[2],
             'v_lshl_or_b32': lambda: (a[0] << (a[1] & 31)) | a[2], 'v_and_or_b32': lambda: (a[0] & a[1]) | a[2], 'v_xad_u32': lambda: (a[0] ^ a[1]) + a[2],
             'v_bfe_u32': lambda: (a[0] >> a[1]) & ((1 << a[2]) - 1), 'v_bfi_b32': lambda: (a[0] & a[1]) | (~a[0] & a[2]), 'v_min_u32': lambda: np.minimum(a[0], a[1]), 'v_max_u32': lambda: np.maximum(a[0], a[1]),
             's_lshl_b32': lambda: a[0] << a[1], 's_lshr_b32': lambda: a[0] >> a[1], 's_add_u32': lambda: a[0] + a[1], 's_sub_u32': lambda: a[0] - a[1], 's_mul_i32': lambda: a[0]*a[1], 's_and_b32': lambda: a[0] & a[1], 's_xor_b32': lambda: a[0] ^ a[1],
             'v_cvt_f32_i32': lambda: f2u(s(a[0]).astype(np.float32)), 'v_cvt_f32_u32': lambda: f2u(a[0].astype(np.float32)),
             'v_add_f32': lambda: f2u(F(0) + F(1)), 'v_sub_f32': lambda: f2u(F(0) - F(1)), 'v_mul_f32': lambda: f2u(F(0)*F(1)),
             'v_cvt_pk_bf16_f32': lambda: bf(F(0)) | (bf(F(1)) << 16), 'v_accvgpr_write_b32': lambda: a[0]}
        r = T[mn]() & M
        if clamp: r = f2u(np.clip(u2f(r), 0, 1))
        regs[d] = r if ex.all() or mn.startswith('s_') else np.where(ex, r, regs[d])
    return regs
```

```python
import sys, math, struct, re
import numpy as np
from dsl import *

NAME = "concat_heads__spectral_gfnet__ssm_conv_s4__prompt"
def fl(x): return hex(struct.unpack('<I', struct.pack('<f', x))[0])
def fbits(x): return np.asarray(x, np.float32).view(np.uint32)
def bf(x):
    u = fbits(x).astype(np.uint64); return ((u + 0x7fff + ((u >> 16) & 1)) >> 16).astype(np.uint32) & 0xffff
def pk(a, b): return bf(a) | (bf(b) << 16)

T1, T2, TU, TY, T1X, WX, EOFF, DBG = 0, 4 << 20, 8 << 20, 12 << 20, 20 << 20, (20 << 20) + (64 << 10), (20 << 20) + (128 << 10), 24 << 20
TW = 16 << 20
WS = 0
A0, PL = 16384, 4608
XI, XS1 = A0, 4112
US = A0 + 4*PL; EX = US
GY = US + 16384
KB, KW = 0, 20384
KT = 256
S5, S3, S9, S7 = KT + 4384, KT + 7680, KT + 10976, KT + 13184
UTO = KT + 15360 + 512
SMO = UTO + 2048
YO = KT
LDS_BYTES = 81920
assert 4*KW <= LDS_BYTES and UTO + 4096 <= KW and KT + 16896 <= SMO and GY + 8192 <= LDS_BYTES and KW % 128 == 32
KO2, KE3, KO3, KC1, KE2, DUMP, CPB = 0, 256, 448, 1024, 1296, 1552, 386
NV, NA = 208, 48
SPIN_MAX = 4000
lane = np.arange(64)
L15, GK, H = lane & 15, lane >> 4, lane >> 5
def PI(i): return (i & 0x13) | ((i >> 2 & 1) << 3) | ((i >> 3 & 1) << 2)
kb = lambda v: KB + KW*v
ut = lambda v: kb(v) + UTO
sm = lambda v: kb(v) + SMO

def cs(rev): return np.cos(2*np.pi*rev), np.sin(2*np.pi*rev)

def shared_tables():
    q = []
    k = PI(lane & 31)
    ang = [[k*(8*f + 4*H + jj) for jj in range(4)] for f in range(4)]
    for f in range(4): q.append([pk(*cs(a/32)) for a in ang[f]])
    for f in range(4): q.append([pk(-cs(a/32)[1], cs(a/32)[0]) for a in ang[f]])
    for f in range(4): q.append([fbits(cs(a/1024)[0]) for a in ang[f]])
    for f in range(4): q.append([fbits(cs(a/1024)[1]) for a in ang[f]])
    a16 = [L15*(4*GK + jj) for jj in range(4)]
    q.append([pk(*cs(a/16)) for a in a16]); q.append([pk(-cs(a/16)[1], cs(a/16)[0]) for a in a16])
    q.append([fbits(cs(a/256)[0]) for a in a16]); q.append([fbits(cs(a/256)[1]) for a in a16])
    return q
def band_tables():
    q = []
    for lo, hi in ((-6, -2), (-5, -3), (-8, 0), (-7, -1)):
        one = lambda s: ((8*GK + s - 16 - L15 >= lo) & (8*GK + s - 16 - L15 <= hi))*1.0
        q.append([pk(one(2*d), one(2*d+1)) for d in range(4)])
    return q
def cm_tables():
    q = []
    for r in range(4):
        th = [(r + 4*L15 + 256*GK + 64*rho)/2048 for rho in range(4)]
        q.append([fbits(cs(t)[1]) for t in th]); q.append([fbits(cs(t)[0]) for t in th])
    return q

def wave_values(v):
    d = {}
    r4, cc = lane >> 2 & 3, lane & 3
    d['aXR'] = A0 + PL*v + (r4 & 1)*2176 + (4*H + (r4 >> 1))*64 + 32*(GK & 1) + 8*cc
    d['aZW'] = A0 + PL*v + (lane & 31)*144 + 32*H
    for t in range(4):
        ql = 128*v + 32*t + 2*L15 + (GK & 1)
        q = np.where(H == 0, ql, np.where(ql == 0, 512, 1024 - ql))
        d[f'aZR{t}'] = A0 + PI(q >> 5)*144 + (q & 31)*4
    d['aZX'] = A0 + np.where(H == 0, 16*144, 0)
    d['aC'] = (64*GK + r4)*16384 + cc*16
    d['uld'] = (lane >> 3)*2048 + (lane & 7)*16
    sg = 1 - 2*(lane & 1)
    d['wxs'] = sg; d['wxa'] = sg*(GK + 1024*(lane >> 2 & 1)); d['wxc'] = (lane >> 3 & 1)*1024
    d['wxo'] = r4*8 + (lane & 1)*4
    d['pwv'] = (lane >> 3)*4104 + (lane & 7)*73
    d['wgv'] = (64*GK + L15)*4104
    d['aTR'] = ut(v) + r4*128 + GK*32 + cc*8
    d['aTO'] = (lane >> 2)*16384 + cc*16
    d['aKR'] = kb(v) + KT + L15*528 + GK*16
    d['aZ0'] = np.where(lane < 32, kb(v) + 16*L15, ut(v) - 512 + 16*(lane & 31))
    d['r4k'] = fbits(r4/1024); d['r4b'] = fbits((lane & 1)*0.25); d['r4s'] = (lane >> 1 & 1) << 31
    d['r4m1'] = np.where(GK == (lane & 2), 0xffffffff, 0); d['r4m2'] = np.where(GK == (lane & 2) + 1, 0xffffffff, 0)
    m = 2*(lane >> 3 & 1) + (lane >> 1 & 1)
    d['r4ik'] = fbits(m*0.25); d['r4ib'] = fbits((lane & 1)*-0.25)
    d['r4l'] = np.where(GK == (lane >> 2 & 1), 0xffffffff, 0); d['r4h'] = np.where(GK == (lane >> 2 & 1) + 2, 0xffffffff, 0)
    d['aWR'] = WS + 4096*v + 4*lane
    d['aXW'] = XI + cc*XS1 + (lane >> 2)*64 + 16*(v ^ (2*(GK & 1)))
    d['aXI'] = XI + v*XS1 + L15*64 + 16*(GK ^ (2*(L15 >> 2 & 1)))
    d['aEW'] = EX + GK*4096 + L15*64 + ((v + (L15 >> 1)) & 3)*16
    d['aER'] = EX + 4096*v + 16*lane
    d['aT2s'] = (lane >> 2)*16384 + ((lane - (lane >> 3)) & 3)*16
    d['aUW'] = ut(cc) + (64*v + (lane >> 2))*16
    d['aK0'] = kb(v) + KT + 256*H + 16*L15 + 8*(GK & 1)
    for rho in range(4):
        mu = 64 + 16*(2*(GK - 2) + (rho >> 1)) + L15
        hi = np.where(rho & 1, KO2 + 2*(159 - mu), np.where(mu == 64, KC1 + 256, KE2 + 2*(160 - mu)))
        d[f'aK1{rho}'] = sm(v) + np.where(GK < 2, KC1 + 2*(64*GK + 4*L15 + rho), hi)
        a = 4*GK + rho; mp = 64 + 8*a + (L15 >> 1)
        adr = np.where(L15 & 1, KO3 + 2*(127 - mp), np.where(mp == 64, KE2 + 2*(160 - 128), KE3 + 2*(128 - mp)))
        ok = (a < 8) | ((a == 8) & (L15 == 0))
        d[f'aK2{rho}'] = sm(v) + np.where(ok, adr, DUMP)
    d['aSZ'] = sm(v) + 16*lane
    d['aE1r'] = sm(v) + KC1 + 8*(lane & 31)
    d['aE1w'] = kb(v) + KT + 512 + 16*(lane & 31)
    d['aE2r'] = kb(v) + KT + 16*lane
    d['aE2w'] = kb(v) + KT + (lane >> 2)*256 + cc*16
    d['aB16'] = kb(v) + KT + 4096 + r4*64 + cc*16
    d['aPad'] = kb(v) + np.array([S5, S3, S9, S7])[lane >> 1 & 3] - 32 + 16*(lane & 1)
    d['aSm'] = sm(v) + 0*lane
    for k in range(4):
        def byte(i):
            lag = 512 - r4 + i
            lo = np.where(lag == 509, 0, np.where(lag == 510, 2, 4))
            z = (lag > 514) | (cc > 0)
            return np.where(z, 0x0c0c, lo | (lo + 1) << 8)
        d[f'sel{k}'] = byte(2*k) | byte(2*k+1) << 16
        hit = lambda s: np.isin(1040 + L15 - 8*GK - s, (1027, 1028))
        d[f'pm{k}'] = np.where(hit(2*k), 0xffff, 0) | np.where(hit(2*k+1), 0xffff0000, 0)
    sadr = lambda pc: 8*pc + 8*(pc >> 4)
    for t in range(2):
        y = 16 - 8*GK - 4*t + 4*cc
        d[f'aKA{t}'] = kb(v) + KT + (y >> 5)*256 + r4*64 + (y & 31)*2
        nu = 8*(GK & 1) + 4*t + r4
        d[f'aS2{t}'] = kb(v) + np.where(H == 0, S5 + sadr(2*nu - 3 + cc), S3 + sadr(2*nu - 2 + cc))
        d[f'aS3{t}'] = kb(v) + np.where(H == 0, S9 + sadr(4*nu - 3 + cc), S7 + sadr(4*nu - 1 + cc))
    d['aUB'] = ut(v) - 32 - 448 + 32*L15 + 16*GK
    d['aSW'] = kb(v) + 32*L15 + 8*GK + 8*(L15 >> 2)
    d['aR2'] = sm(v) + np.where(H == 0, KE2, KO2) + 2*(158 - 2*L15 + 8*(GK & 1)) - 32*8
    d['aR3'] = sm(v) + np.where(H == 0, KE3, KO3) + np.where(L15 & 1, 0, CPB) + 2*(127 - L15 + 8*(GK & 1)) - 32*7
    d['aYW'] = kb(v) + YO + 32*L15 + 8*((GK + (L15 >> 2)) & 3)
    d['aYR'] = kb(r4) + YO + 512*v + 128*GK + 8*((cc + GK) & 3)
    d['aYO'] = GK*8192 + L15*8
    d['odd'] = np.where(lane & 1, 0xffffffff, 0)
    vad = lambda q: A0 + 8192*H + (q & 31)*128 + (((q >> 5) ^ ((q >> 1 & 7) << 2)) << 2)
    k0 = 128*v + 32*(GK & 1) + 2*L15
    d['aVW0'] = vad(k0); d['aVW1'] = vad(1024 - 65 - k0); d['aVW2'] = vad(np.where(k0 == 0, 512, 1024 - k0)); d['aVW3'] = vad(1024 - 64 - k0)
    for f in range(4): d[f'aVR{f}'] = A0 + 4096*v + (lane & 31)*128 + 16*((2*f + H) ^ (lane >> 1 & 7))
    n2 = PI(lane & 31); fz = (n2 >> 1 & 1) | (n2 >> 3 & 1) << 1
    for hf in range(2): d[f'aOW{hf}'] = A0 + 4096*v + n2*64 + 16*((2*hf + H) ^ fz)
    d['aOR'] = A0 + 4096*v + 16*lane
    d['aO'] = 16*(lane ^ ((lane >> 3 & 1) | H << 1))
    hi, lo = lane >> 3, lane & 7
    d['aGL'] = hi*512 + lo*16; d['aGO'] = hi*4096 + lo*16
    for i in range(2):
        d[f'aGW{i}'] = GY + 2048*v + 1024*i + hi*128 + 16*(lo ^ GK ^ (4*i))
        d[f'aGR{i}'] = GY + 2048*v + lo*256 + 16*(lo ^ GK ^ (4*i)) + 8*(hi & 1)
    return {k: (np.asarray(x, np.int64) + 0*lane) & 0xffffffff for k, x in d.items()}

GROUPS = {'E': 'aZR0 aZR1 aZR2 aZR3'.split()}
def build_table():
    quads = []; off = {}
    W = [wave_values(v) for v in range(4)]
    for g, names in GROUPS.items():
        assert len(names) % 4 == 0
        off[g] = 1024*len(quads)
        for v in range(4):
            for i in range(0, len(names), 4): quads.append([W[v][n] for n in names[i:i+4]])
    data = np.array([np.stack([np.asarray(c, np.int64) for c in q], axis=1) for q in quads]).astype(np.uint32)
    return data.reshape(-1), off

def unpack_pk(text):
    out = []
    for l in text.split('\n'):
        l = l.strip(); neg = 'neg_lo' in l; mn, rest = l.split(None, 1)
        ops = [int(re.match(r'v\[(\d+):', x.strip()).group(1)) for x in re.split(r',(?![^\[]*\])', rest.split(' neg')[0])]
        for e in range(2):
            r = [f'v{o+e}' for o in ops]
            if 'mul' in mn: out.append(f'v_mul_f32 {r[0]}, {r[1]}, {r[2]}')
            elif neg: out.append(f'v_fma_f32 {r[0]}, -{r[1]}, {r[2]}, {r[3]}')
            else: out.append(f'v_fmac_f32 {r[0]}, {r[1]}, {r[2]}')
    return '\n'.join(out)

class Gen:
    def __init__(self, stamps=False, opts=None):
        self.stamps = stamps; self.o = opts or {}; self.stn = []
        self.tins = 's_memtime' if self.o.get('cyc') else 's_memrealtime'
        self.lbl = 0; self.ool = []; self.mains = []; self.roles = []
        self.table, self.toff = build_table(); self.t = {}; self.junk = []; self.plain = False; self.bg = []; self.inbg = False; self.bgt = 0; self.bgi = 80
    def role(self, name):
        self.p = self.main = Prog(); self.mains.append(self.p); self.rn = name
        self.V = Alloc('v', NV, 1); self.A = Alloc('a', NA); self.S = Alloc('s', 102, 32); self.roles.append((name, self.V, self.A, self.S))
        self.vmlog = []; self.t = {}; self.junk = []; self.stn = []; self.pend = []; self.so = {}
        for k in ('TL', 'UL', 'YL'): self.__dict__.pop(k, None)
    def X(self, n):
        try: return self.A.get(n)
        except RuntimeError: return self.V.get(n)
    def putX(self, *rs):
        for r in rs: (self.A if r.k == 'a' else self.V).put(r)
    def flag(self, k, d=''):
        return next((x.split('=')[1].replace('+', ' ') for x in self.o if x.startswith(k + '=')), d)
    def P(self, text):
        for l in text.split('\n'):
            if not l.strip(): continue
            self.p(l)
            if self.bg and self.p is self.main and not self.inbg:
                i = self.p.ins[-1]
                self.bgt += {'mfma': 4*i.passes, 'ds': 8, 'vmem': -10**6}.get(i.kind, 4)
                if i.kind == 'vmem': self.bgt = 0
                if self.bgt >= self.bgi and i.kind in ('valu', 'mfma') and not i.mn.startswith(('v_cmp', 'v_readfirst')):
                    self.inbg = True; self.bg.pop(0)(); self.inbg = False; self.bgt = 0
    def background(self, l, interval=80): self.bg += l; self.bgi = interval; self.bgt = 0
    def bgflush(self):
        self.inbg = True
        while self.bg: self.bg.pop(0)()
        self.inbg = False
    def stamp(self, name):
        if not self.stamps: return
        if self.flag('only') and name not in self.flag('only').split(',') + ['end']: return
        r = self.S.get(2); self.stn.append((name, r)); self.p(f'{self.tins} {r}')
    def label(self, base):
        self.lbl += 1; return f'L{base}{self.lbl}'
    def vm(self, text, tag):
        self.p(text)
        if self.p is self.main: self.vmlog.append(tag)
    def after(self, tag):
        return len(self.vmlog) - 1 - max(i for i, t in enumerate(self.vmlog) if t == tag)
    def wait_vm(self, tag): self.p(f's_waitcnt vmcnt({self.after(tag)})')
    def begin_ool(self, lb):
        q = Prog(); self.ool.append(q); self.p = q; q(f'{lb}:')
    def end_ool(self): self.p = self.main
    def srd(self, base, nbytes):
        r = self.S.get(4)
        self.p(f's_mov_b32 {r[0]}, {base[0]}\ns_mov_b32 {r[1]}, {base[1]}\ns_mov_b32 {r[2]}, {nbytes}\ns_mov_b32 {r[3]}, 0x20000')
        return r
    def sexpr(self, terms, const=0, dst=None):
        dst = dst or self.S.get(); first = True
        for reg, mult in terms:
            sh = mult.bit_length() - 1
            if first:
                self.p(f's_lshl_b32 {dst}, {reg}, {sh}' if mult == 1 << sh else f's_mul_i32 {dst}, {reg}, {mult}'); first = False
            elif mult == 1: self.p(f's_add_u32 {dst}, {dst}, {reg}')
            else:
                self.p(f's_lshl_b32 {self.st0}, {reg}, {sh}' if mult == 1 << sh else f's_mul_i32 {self.st0}, {reg}, {mult}')
                self.p(f's_add_u32 {dst}, {dst}, {self.st0}')
        if const: self.p(f's_add_u32 {dst}, {dst}, {const}')
        return dst
    def splus(self, src, const):
        d = self.S.get(); self.p(f's_add_u32 {d}, {src}, {const}'); return d
    def group_loads(self, g):
        names = GROUPS[g]; n = len(names)//4; l = []
        so = [None]; RR = [self.V.get(4) for _ in range(n)]
        for i in range(n):
            for k in range(4):
                if names[4*i+k] in self.t: self.junk.append(RR[i][k])
                else: self.t[names[4*i+k]] = RR[i][k]
        def mk(i):
            def f():
                if i % 4 == 0:
                    if so[0] is None: so[0] = self.sexpr([(self.sV, 1024*n)], self.toff[g])
                    else: self.p(f's_add_u32 {so[0]}, {so[0]}, 4096')
                R = RR[i]
                self.vm(f'buffer_load_dwordx4 {R}, {self.L16}, {self.rT}, {so[0]} offen offset:{1024*(i % 4)}', 'g' + g)
                if i == n-1: self.S.put(so[0])
            return f
        return [mk(i) for i in range(n)]
    def free(self, *names): self.V.put(*[self.t.pop(n) for n in names])

    def prologue(self):
        p, V, S = self.P, self.V, self.S; B = self.rn == 'B'
        P = lambda b: Reg('s', b, 2)
        self.x, self.wr, self.wi, self.u = P(4), P(6), P(8), P(10)
        self.par = [P(12), P(14), P(16), P(18), P(20), P(22)]
        self.ldt, self.dsk, self.out, self.ws = P(24), P(26), P(28), P(30)
        self.sV, self.sC, self.sR, self.sG = S.get(), S.get(), S.get(), S.get()
        self.L = L = V.get(); self.L16 = V.get(); t = V.get(); self.PF = V.get()
        self.st0, self.st1 = S.get(), S.get(); self.sa = S.get(2); self.rT = rT = S.get(4)
        st0, st1, sa = self.st0, self.st1, self.sa
        sV, sC, sR, sG = self.sV, self.sC, self.sR, self.sG
        pc = 'L_pc' + self.rn
        if B: p('L_B:\ns_cmp_ge_u32 s2, 512\ns_cbranch_scc1 L_end\ns_sub_u32 s2, s2, 256')
        if self.stamps:
            r = S.get(2); self.stn.append(('start', r)); p(f'{self.tins} {r}')
            self.clk0 = S.get(2); p(f's_memtime {self.clk0}')
        if not B: p(f's_cmp_ge_u32 s2, 256\ns_cbranch_scc1 L_B\ns_setprio {self.flag("prio", 3)}')
        p(f'''s_getpc_b64 {sa}
        {pc}:
        s_load_dwordx16 s[4:19], s[0:1], 0
        s_lshr_b32 {st0}, s2, 3
        v_lshrrev_b32 {t}, 6, v0
        v_and_b32 {L}, 63, v0''')
        if not B:
            p(f'''s_lshl_b32 {st1}, {st0}, 12
            s_and_b32 {st1}, {st1}, 0x7fff
            v_lshl_add_u32 {self.PF}, {t}, 3, {L}
            v_lshl_add_u32 {self.PF}, {self.PF}, 7, {st1}
            v_min_u32 {self.PF}, L_tblend-{pc}-64, {self.PF}
            s_mov_b64 exec, 0xff''')
            self.vm(f'global_load_dword {self.PF}, {self.PF}, {sa}', 'pf')
            p('s_mov_b64 exec, -1')
        p(f'''v_readfirstlane_b32 {sV}, {t}
        s_load_dwordx8 s[20:27], s[0:1], 64
        s_load_dwordx2 s[28:29], s[0:1], 96
        s_load_dwordx2 s[30:31], s[0:1], 112
        v_lshlrev_b32 {self.L16}, 4, {L}
        s_and_b32 {sC}, s2, 7
        s_lshl_b32 {sC}, {sC}, 5
        s_add_u32 {sC}, {sC}, {st0}
        s_add_u32 {rT[0]}, {sa[0]}, L_tbl-{pc}
        s_addc_u32 {rT[1]}, {sa[1]}, 0''')
        self.sE = S.get(); self.sE2 = S.get(); self.sb = S.get(2); self.sD = S.get()
        self.sTau = S.get(); self.sGam = S.get()
        p(f's_lshl2_add_u32 {self.sD}, {sC}, {sV}')
        if not B:
            self.sJ = self.sexpr([(sV, 256), (sC, 1)])
            p(f's_mul_i32 {st1}, {sV}, {PL}\ns_add_u32 m0, {st1}, {A0}\ns_lshl_b32 {st0}, {self.sJ}, 12')
        p('s_waitcnt lgkmcnt(0)')
        self.stamp('karg')
        if not B:
            p(f's_add_u32 {sa[0]}, {self.x[0]}, {st0}\ns_addc_u32 {sa[1]}, {self.x[1]}, 0')
            self.vm(f'global_load_lds_dwordx4 {self.L16}, {sa}', 'x')
            self.vm(f'global_load_lds_dwordx4 {self.L16}, {sa} offset:1024', 'x')
            p(f's_add_u32 m0, {st1}, {A0+128}\ns_nop 0')
            self.vm(f'global_load_lds_dwordx4 {self.L16}, {sa} offset:2048', 'x')
            self.vm(f'global_load_lds_dwordx4 {self.L16}, {sa} offset:3072', 'x')
        else: self.loads_par()
        p(f'''s_add_u32 {self.sb[0]}, {self.ws[0]}, {EOFF}
        s_addc_u32 {self.sb[1]}, {self.ws[1]}, 0
        s_lshr_b32 {self.sGam}, {sC}, 4
        s_lshl_b32 {st0}, {self.sGam}, 7
        s_add_u32 {st0}, {st0}, 256
        s_load_dword {self.sE2}, {self.sb}, {st0}
        {'' if B else f's_load_dword {self.sE}, {self.sb}, 0'}
        s_lshr_b32 {sR}, {sC}, 6
        s_and_b32 {sG}, {sC}, 63
        s_and_b32 {self.sTau}, {sC}, 15
        s_mov_b32 {rT[2]}, {4*len(self.table)}
        s_mov_b32 {rT[3]}, 0x20000''')
        V.put(t)
    def loads_par(self):
        p, V, st1 = self.P, self.V, self.st1
        self.PR = V.get(6); t = V.get(); self.sLD = self.S.get(); self.sDS = self.S.get()
        p(f'''s_lshl_b32 {st1}, {self.sD}, 8
        v_lshl_add_u32 {t}, {self.L}, 2, {st1}
        s_lshr_b32 {st1}, {self.sD}, 1
        s_lshl_b32 {st1}, {st1}, 2
        s_load_dword {self.sLD}, {self.ldt}, {st1}
        s_load_dword {self.sDS}, {self.dsk}, {st1}''')
        for i in range(6): self.vm(f'global_load_dword {self.PR[i]}, {t}, {self.par[i]}', 'par')
        V.put(t)
    def offsets1(self):
        p, S, sC, sV = self.P, self.S, self.sC, self.sV
        self.rW = self.srd(self.ws, 1 << 28)
        so = self.so
        so['t1st'] = [self.sexpr([(sV, 1 << 18), (sC, 64)], T1)]
        for t_ in range(1, 4): so['t1st'].append(self.splus(so['t1st'][0], 65536*t_))
        so['wx'] = self.sexpr([(sV, 8192), (sC, 32)], WX)
    def offsets2(self):
        p, S, sC, sV, so = self.P, self.S, self.sC, self.sV, self.so
        self.rO = self.srd(self.out, 8 << 20)
        so['t1ld'] = self.sexpr([(sC, 16384), (sV, 4096)], T1)
        if self.flag('tw'): so['twld'] = self.splus(so['t1ld'], TW - T1)
    def wvals(self, t, a, b, gk):
        L = self.L
        if not self.flag('tw'): return f'''v_and_b32 {t['wgv']}, 15, {L}
        v_lshl_add_u32 {t['wgv']}, {gk}, 6, {t['wgv']}
        v_mul_u32_u24 {t['wgv']}, 4104, {t['wgv']}'''
        t['aWQ'] = self.V.get(); t['aTO'] = self.V.get()
        return f'''v_lshlrev_b32 {t['aWQ']}, 2, {b}
        v_xor_b32 {t['aWQ']}, {t['aWQ']}, {a}
        v_lshl_add_u32 {t['aWQ']}, {b}, 4, {t['aWQ']}
        s_lshl_b32 {self.st1}, {self.sV}, 12
        v_lshl_add_u32 {t['aWQ']}, {t['aWQ']}, 4, {self.st1}
        v_lshlrev_b32 {t['wgv']}, 6, {gk}
        v_xor_b32 {t['wgv']}, {t['wgv']}, {self.L16}
        v_and_b32 {t['wgv']}, 0xf0, {t['wgv']}
        v_mul_u32_u24 {t['aTO']}, 4104, {gk}
        v_add_u32 {t['wgv']}, {t['wgv']}, {t['aTO']}
        v_lshlrev_b32 {t['aTO']}, 4, {b}
        v_lshl_add_u32 {t['aTO']}, {a}, 14, {t['aTO']}'''
    def early_values(self):
        p, V, t, L = self.P, self.V, self.t, self.L
        for n in 'wxs wxa wxc wxo wgv aC aZX aXR aZW r4k r4b r4s r4m1 r4m2 r4ik r4ib r4l r4h odd'.split(): t[n] = V.get()
        a, b, gk = V.get(), V.get(), V.get()
        p(f'''v_lshrrev_b32 {a}, 3, {L}
        v_and_b32 {b}, 7, {L}
        v_lshrrev_b32 {gk}, 4, {L}
        v_and_b32 {b}, 1, {L}
        v_sub_u32 {t['odd']}, 0, {b}
        v_or_b32 {t['wxs']}, 1, {t['odd']}
        v_cvt_f32_u32 {b}, {b}
        v_mul_f32 {t['r4b']}, {fl(0.25)}, {b}
        v_mul_f32 {t['r4ib']}, {fl(-0.25)}, {b}
        v_and_b32 {a}, 1, {a}
        v_lshlrev_b32 {t['wxc']}, 10, {a}
        v_bfe_u32 {b}, {L}, 1, 1
        v_lshlrev_b32 {t['r4s']}, 31, {b}
        v_lshl_add_u32 {a}, {a}, 1, {b}
        v_cvt_f32_u32 {a}, {a}
        v_mul_f32 {t['r4ik']}, {fl(0.25)}, {a}
        v_bfe_u32 {a}, {L}, 2, 2
        v_and_b32 {b}, 4, {t['odd']}
        v_lshl_add_u32 {t['wxo']}, {a}, 3, {b}
        v_cvt_f32_u32 {a}, {a}
        v_mul_f32 {t['r4k']}, {fl(1/1024)}, {a}
        v_bfe_u32 {a}, {L}, 2, 1
        v_cmp_eq_u32 vcc, {a}, {gk}
        v_lshlrev_b32 {b}, 10, {a}
        v_add_u32 {a}, 2, {a}
        v_cndmask_b32 {t['r4l']}, 0, -1, vcc
        v_cmp_eq_u32 vcc, {a}, {gk}
        v_mul_i32_i24 {t['wxa']}, {t['wxs']}, {b}
        v_and_b32 {a}, 2, {L}
        v_cndmask_b32 {t['r4h']}, 0, -1, vcc
        v_cmp_eq_u32 vcc, {a}, {gk}
        v_add_u32 {a}, 1, {a}
        v_and_b32 {b}, 15, {L}
        v_cndmask_b32 {t['r4m1']}, 0, -1, vcc
        v_cmp_eq_u32 vcc, {a}, {gk}
        v_lshrrev_b32 {a}, 2, {L}
        v_and_b32 {b}, 3, {L}
        v_cndmask_b32 {t['r4m2']}, 0, -1, vcc
        {self.wvals(t, a, b, gk)}
        v_lshlrev_b32 {b}, 4, {b}
        v_and_b32 {a}, 3, {a}
        v_lshl_add_u32 {a}, {gk}, 6, {a}
        v_lshl_add_u32 {t['aC']}, {a}, 14, {b}
        v_cmp_gt_u32 vcc, 32, {L}
        v_mov_b32 {a}, {A0}
        v_mov_b32 {b}, {A0 + 16*144}
        v_cndmask_b32 {t['aZX']}, {a}, {b}, vcc
        s_mul_i32 {self.st0}, {self.sV}, {PL}
        s_add_u32 {self.st0}, {self.st0}, {A0}
        v_and_b32 {a}, 0x28, {L}
        v_and_b32 {b}, 3, {L}
        v_add_lshl_u32 {a}, {a}, {b}, 3
        v_and_b32 {b}, 16, {L}
        v_lshl_add_u32 {a}, {b}, 1, {a}
        v_bfe_u32 {b}, {L}, 2, 1
        v_mul_u32_u24 {b}, 2176, {b}
        v_add3_u32 {t['aXR']}, {a}, {b}, {self.st0}
        v_and_b32 {a}, 31, {L}
        v_mul_u32_u24 {a}, 144, {a}
        v_and_b32 {b}, 32, {L}
        v_add3_u32 {t['aZW']}, {a}, {b}, {self.st0}''')
        V.put(a, b, gk)
    def dft_consts(self):
        p, V, A, L = self.P, self.V, self.A, self.L
        self.CFr, self.CFi = A.get(16), A.get(16); self.TWc, self.TWs = V.get(16), V.get(16)
        k, b, an, c, s, d, d2, sgn = [V.get() for _ in range(8)]
        p(f'''v_and_b32 {k}, 0x13, {L}
        v_bfe_u32 {b}, {L}, 2, 1
        v_lshl_or_b32 {k}, {b}, 3, {k}
        v_bfe_u32 {b}, {L}, 3, 1
        v_lshl_or_b32 {k}, {b}, 2, {k}
        v_lshrrev_b32 {b}, 5, {L}
        v_cvt_f32_u32 {k}, {k}
        v_cvt_f32_u32 {b}, {b}
        v_mul_f32 {k}, {fl(1/32)}, {k}
        v_mul_f32 {b}, {b}, {k}
        v_mul_f32 {b}, 4.0, {b}
        v_and_b32 {sgn}, 0x80008000, {self.t['odd']}''')
        for f in range(2):
            for jj in range(4):
                i = 4*f + jj
                p(f'''v_fmamk_f32 {an}, {k}, {fl(8*f+jj)}, {b}
                v_cos_f32 {c}, {an}
                v_sin_f32 {s}, {an}
                v_mul_f32 {an}, {fl(1/32)}, {an}
                v_cvt_pk_bf16_f32 {d}, {c}, {s}
                v_cos_f32 {self.TWc[i]}, {an}
                v_cvt_pk_bf16_f32 {d2}, -{s}, {c}
                v_sin_f32 {self.TWs[i]}, {an}
                v_fmac_f32 {an}, 0.5, {k}
                v_accvgpr_write_b32 {self.CFr[i]}, {d}
                v_accvgpr_write_b32 {self.CFi[i]}, {d2}
                v_cos_f32 {self.TWc[8+i]}, {an}
                v_xor_b32 {d}, {sgn}, {d}
                v_xor_b32 {d2}, {sgn}, {d2}
                v_sin_f32 {self.TWs[8+i]}, {an}
                v_accvgpr_write_b32 {self.CFr[8+i]}, {d}
                v_accvgpr_write_b32 {self.CFi[8+i]}, {d2}''')
        V.put(k, b, an, c, s, d, d2, sgn)
    def c16_loads(self):
        self.C16r, self.C16i = self.A.get(4), self.A.get(4); self.T16c, self.T16s = self.V.get(4), self.V.get(4)
        o = self.S.get(); self.p(f's_mov_b32 {o}, {self.toff["C16"]}')
        return self.tloads([self.C16r, self.C16i, self.T16c, self.T16s], o, 'c16')
    def tloads(self, regs, o, tag):
        def mk(k):
            def f():
                self.vm(f'buffer_load_dwordx4 {regs[k]}, {self.L16}, {self.rT}, {o} offen offset:{1024*k}', tag)
                if k == len(regs)-1: self.S.put(o)
            return f
        return [mk(k) for k in range(len(regs))]
    def loads_u(self):
        p, S = self.P, self.S; sa, st0, st1 = self.sa, self.st0, self.st1
        o = self.sexpr([(self.sTau, 1 << 18), (self.sV, 1 << 16), (self.sGam, 128)])
        r = self.srd(self.u, 4 << 20)
        m = self.sexpr([(self.sV, KW)], UTO)
        def mk(i):
            def f():
                self.p(f's_add_u32 m0, {m}, {1024*i}')
                self.p(f's_add_u32 {o}, {o}, 16384' if i else 's_nop 0')
                self.vm(f'buffer_load_dwordx4 {self.t["uld"]}, {r}, {o} offen lds', 'u')
                if i == 3: S.put(o, r, m); self.free('uld')
            return f
        return [mk(i) for i in range(4)]
    def loads_wx(self):
        p, V, t = self.P, self.V, self.t
        self.WXV = V.get(); a = V.get()
        p(f'''s_movk_i32 {self.st1}, 1026
        v_mad_i32_i24 {a}, {t['wxs']}, {self.sD}, {t['wxa']}
        v_and_b32 {a}, 0x7ff, {a}
        v_mad_u32_u24 {a}, {a}, {self.st1}, {t['wxc']}
        s_mov_b64 exec, 0x3333''')
        self.vm(f'global_load_ushort {self.WXV}, {a}, {self.wr}', 'wx')
        p('s_mov_b64 exec, 0xcccc')
        self.vm(f'global_load_ushort {self.WXV}, {a}, {self.wi} ; nocheck', 'wx')
        p('s_mov_b64 exec, -1')
        V.put(a); self.free('wxs', 'wxa', 'wxc')
    def wx_steps(self):
        V, t = self.V, self.t; a, b = V.get(), V.get(); W = self.WXV
        def last():
            self.p('s_mov_b64 exec, 0x3333')
            self.vm(f'buffer_store_dword {W}, {t["wxo"]}, {self.rW}, {self.so["wx"]} offen sc1', 'wxst')
            self.p('s_mov_b64 exec, -1'); V.put(a, b); self.S.put(self.so['wx'])
        D = 'row_mask:0xf bank_mask:0xf'
        return [lambda: (self.wait_vm('wx'), self.p(f"v_lshlrev_b32 {W}, 16, {W}\nv_and_b32 {a}, {t['odd']}, {t['r4s']}\nv_xor_b32 {W}, {W}, {a}\nv_mov_b32 {b}, {self.sN}")),
                lambda: self.p(f"v_add_f32_dpp {a}, {W}, {W} quad_perm:[1,0,3,2] {D}\nv_mul_f32 {a}, 0.5, {a}"),
                lambda: self.p(f"v_mov_b32_dpp {W}, {a} quad_perm:[2,3,0,1] {D}\nv_cvt_pk_bf16_f32 {W}, {a}, {W}\nv_bfi_b32 {W}, {t['odd']}, {b}, {W}"),
                last]
    def w_srd(self):
        p, S = self.P, self.S; r = self.rWW = S.get(4); self.sWH = S.get()
        p(f'''s_bitcmp1_b32 {self.sV}, 0
        s_cselect_b32 {r[0]}, {self.wi[0]}, {self.wr[0]}
        s_cselect_b32 {r[1]}, {self.wi[1]}, {self.wr[1]}
        s_mov_b32 {r[2]}, {2048*1026}
        s_mov_b32 {r[3]}, 0x20000
        s_lshr_b32 {self.sWH}, {self.sV}, 1''')
    def w_prefetch(self):
        p, V, S = self.P, self.V, self.S
        self.w_srd(); self.PW = V.get(); x = V.get(); a = S.get(); b = S.get()
        p(f'''v_and_b32 {x}, 7, {self.L}
        v_mul_u32_u24 {x}, 4104, {x}
        v_lshrrev_b32 {self.PW}, 3, {self.L}
        v_lshlrev_b32 {self.PW}, 7, {self.PW}
        v_min_u32 {self.PW}, 511, {self.PW}
        v_add_u32 {self.PW}, {self.PW}, {x}
        s_and_b32 {a}, {self.sC}, 31
        s_and_b32 {b}, {self.sC}, 32''')
        o = self.sexpr([(a, 64*1026), (self.sWH, 32*1026), (self.sR, 1026), (b, 16)])
        p('s_mov_b32 exec_hi, 0xff')
        self.vm(f'buffer_load_ubyte {self.PW}, {self.PW}, {self.rWW}, {o} offen', 'pw')
        p('s_mov_b32 exec_hi, -1')
        V.put(x); S.put(a, b, o, self.rWW, self.sWH)
    def w_setup(self):
        self.w_srd()
        self.oW = self.sexpr([(self.sWH, 1024*1026), (self.sR, 1026), (self.sG, 16)]); self.S.put(self.sWH)
    def w_loads(self):
        self.WL = self.V.get(16)
        def mk(i):
            def f():
                if i: self.p(f's_add_u32 {self.oW}, {self.oW}, {64*1026}')
                self.vm(f'buffer_load_dwordx4 {self.WL[4*i:4*i+4]}, {self.t["wgv"]}, {self.rWW}, {self.oW} offen', 'W')
                if i == 3: self.free('wgv'); self.S.put(self.oW, self.rWW)
            return f
        return [mk(i) for i in range(4)]
    def w_rows(self):
        p, V, S, sC = self.P, self.V, self.S, self.sC
        r = S.get(4); self.WL = V.get(16); a, b = S.get(), S.get()
        p(f'''s_bitcmp1_b32 {sC}, 7
        s_cselect_b32 {r[0]}, {self.wi[0]}, {self.wr[0]}
        s_cselect_b32 {r[1]}, {self.wi[1]}, {self.wr[1]}
        s_mov_b32 {r[2]}, {2048*1026}
        s_mov_b32 {r[3]}, 0x20000
        s_bfe_u32 {a}, {sC}, 0x10006
        s_lshl_b32 {a}, {a}, 10
        s_bfe_u32 {b}, {sC}, 0x20004
        s_add_u32 {a}, {a}, {b}
        s_bfe_u32 {b}, {sC}, 0x20002
        s_lshl_b32 {b}, {b}, 8
        s_add_u32 {a}, {a}, {b}
        s_and_b32 {b}, {sC}, 3
        s_lshl4_add_u32 {a}, {b}, {a}''')
        o = self.sexpr([(a, 1026), (self.sV, 256)]); m = self.sexpr([(self.sV, 4096)])
        p(f'''s_bfe_u32 {a}, {sC}, 0x20004
        s_lshl2_add_u32 {a}, {a}, {self.sV}
        s_lshl_b32 {a}, {a}, 18
        s_and_b32 {b}, {sC}, 15
        s_lshl_b32 {b}, {b}, 6
        s_add_u32 {a}, {a}, {b}
        s_bfe_u32 {b}, {sC}, 0x10006
        s_lshl_b32 {b}, {b}, 11
        s_add_u32 {a}, {a}, {b}
        s_lshr_b32 {b}, {sC}, 7
        s_lshl_b32 {b}, {b}, 10
        s_add_u32 {a}, {a}, {b}
        s_add_u32 {a}, {a}, {TW}''')
        self.so['twst'] = [a] + [self.splus(a, 4096*j) for j in range(1, 4)]; S.put(b)
        def mk(i):
            def f():
                self.p(f's_add_u32 m0, {m}, {WS+1024*i}')
                self.p(f's_add_u32 {o}, {o}, {64*1026}' if i else 's_nop 0')
                self.vm(f'buffer_load_dwordx4 {self.t["wgv"]}, {r}, {o} offen lds', 'W')
                if i == 3: self.free('wgv'); S.put(o, r, m)
            return f
        return [mk(i) for i in range(4)]
    def tw_produce(self):
        p, V = self.P, self.V; R = V.get(16)
        for rho in range(4): p(f'ds_read_b128 {self.WL[4*rho:4*rho+4]}, {self.t["aWQ"]} offset:{WS+1024*rho}')
        p('s_waitcnt lgkmcnt(0)'); self.free('aWQ')
        for j in range(4):
            for rho in range(4): p(f'v_bfi_b32 {R[4*j+rho]}, {self.MK}, {self.WL[4*rho+j]}, {self.TG[rho]}')
            self.vm(f'buffer_store_dwordx4 {R[4*j:4*j+4]}, {self.t["aTO"]}, {self.rW}, {self.so["twst"][j]} offen sc1', 'twst')
        self.pend.append(R); self.S.put(*self.so['twst']); self.free('aTO')
    def tw_issue(self):
        self.ldw = [f'buffer_load_dwordx4 {self.WL[4*i:4*i+4]}, {self.L16}, {self.rW}, {self.so["twld"]} offen offset:{1024*i} sc1' for i in range(4)]
        for x in self.ldw: self.vm(x, 'twld')
    def tw_consume(self):
        acc, tt = self.V.get(), self.V.get(2)
        self.poll_chunks(self.WL, self.ldw, self.TG, self.after('twld'), acc, tt)
        self.V.put(acc, tt); self.S.put(self.so['twld'])
    def radix4_fwd(self):
        p, V, A, t = self.P, self.V, self.A, self.t
        self.R4a, self.R4b = A.get(4), A.get(4)
        w, an, c, s, d = V.get(), V.get(), V.get(), V.get(), V.get()
        p(f"v_cvt_f32_u32 {w}, {self.sC}\nv_fmac_f32 {t['r4b']}, {w}, {t['r4k']}\nv_fmamk_f32 {t['r4ik']}, {w}, {fl(1/1024)}, {t['r4ik']}")
        for m in range(4):
            p(f'''v_fmamk_f32 {an}, {t['r4k']}, {fl(256*m)}, {t['r4b']}
            v_sin_f32 {s}, {an}
            v_cos_f32 {c}, {an}
            v_xor_b32 {s}, {t['r4s']}, {s}
            v_cvt_pk_bf16_f32 {d}, {c}, {s}
            v_and_b32 {w}, {t['r4m1']}, {d}
            v_and_b32 {d}, {t['r4m2']}, {d}
            v_accvgpr_write_b32 {self.R4a[m]}, {w}
            v_accvgpr_write_b32 {self.R4b[m]}, {d}''')
        V.put(w, an, c, s, d); self.free('r4k', 'r4b', 'r4m1', 'r4m2')
    def radix4_inv(self):
        p, V, A, t = self.P, self.V, self.A, self.t
        self.R4l, self.R4h = A.get(4), A.get(4)
        w, an, c, s, d = V.get(), V.get(), V.get(), V.get(), V.get()
        for m in range(4):
            p(f'''v_fmamk_f32 {an}, {t['r4ik']}, {fl(m)}, {t['r4ib']}
            v_cos_f32 {c}, {an}
            v_sin_f32 {s}, {an}
            v_mul_f32 {c}, {fl(2.0**-21)}, {c}
            v_mul_f32 {s}, {fl(-2.0**-21)}, {s}
            v_cvt_pk_bf16_f32 {d}, {c}, {s}
            v_and_b32 {w}, {t['r4l']}, {d}
            v_and_b32 {d}, {t['r4h']}, {d}
            v_accvgpr_write_b32 {self.R4l[m]}, {w}
            v_accvgpr_write_b32 {self.R4h[m]}, {d}''')
        V.put(w, an, c, s, d); self.free('r4ik', 'r4ib', 'r4l', 'r4h')
    def tags(self, sE):
        p, V, S = self.P, self.V, self.S
        TG = S.get(4); sN = S.get(); st0, st1 = self.st0, self.st1
        p(f'''s_not_b32 {sN}, {sE}
        s_mul_i32 {st0}, {sE}, 0x9e3779b1
        s_lshr_b32 {st1}, {st0}, 15
        s_and_b32 {TG[1]}, {st1}, 0x10001
        s_lshr_b32 {st1}, {st0}, 14
        s_and_b32 {TG[2]}, {st1}, 0x10001
        s_lshr_b32 {st1}, {st0}, 13
        s_and_b32 {TG[3]}, {st1}, 0x10001
        s_lshr_b32 {st1}, {st0}, 12
        s_and_b32 {st1}, {st1}, 0x10000
        s_and_b32 {TG[0]}, {sN}, 1
        s_or_b32 {TG[0]}, {TG[0]}, {st1}''')
        return TG, sN
    def mask(self):
        self.MK = self.V.get(); self.p(f'v_mov_b32 {self.MK}, 0xfffefffe')
    def epoch_advance(self, cond, sE, off, tt):
        p = self.P; lb, lep = self.label('ep'), self.label('epo')
        p(f's_or_b32 {self.st0}, {cond}, {self.sV}\ns_cmp_eq_u32 {self.st0}, 0\ns_cbranch_scc1 {lep}\n{lb}:')
        self.begin_ool(lep)
        p(f'''s_add_u32 {self.st0}, {sE}, 1
        v_mov_b32 {tt[0]}, {self.st0}
        {off(tt[1])}
        s_mov_b64 exec, 1
        global_store_dword {tt[1]}, {tt[0]}, {self.sb}
        s_mov_b64 exec, -1
        s_branch {lb}''')
        self.end_ool()
    def offsets_b(self):
        so, sC, sV = self.so, self.sC, self.sV
        self.rW = self.srd(self.ws, 1 << 28)
        so['tuld'] = self.sexpr([(sC, 16384), (sV, 4096)], TU)
        so['tust'] = self.sexpr([(self.sGam, 1 << 18), (self.sTau, 1024), (sV, 256)], TU)
        so['tyst'] = [self.sexpr([(self.sGam, 1 << 17), (sV, 1 << 15), (self.sTau, 512)], TY)]
        so['tyst'].append(self.splus(so['tyst'][0], 1 << 21))
    def late_offsets(self):
        so, sC, sV = self.so, self.sC, self.sV
        so['t2st'] = [self.sexpr([(sV, 1 << 20), (sC, 64)], T2)]
        for i in range(1, 4): so['t2st'].append(self.splus(so['t2st'][0], i << 18))
        so['t2ld'] = [self.sexpr([(sC, 16384), (sV, 1024)], T2)]
        for i in range(1, 4): so['t2ld'].append(self.splus(so['t2ld'][0], 4096*i))
        so['tyld'] = self.sexpr([(sC, 8192), (sV, 128)], TY)
        so['oA'] = [self.sexpr([(self.sJ, 8192)])]; so['oA'].append(self.splus(so['oA'][0], 4096))
        so['oY'] = self.sexpr([(self.sTau, 1 << 18), (sV, 1 << 16), (self.sGam, 128)], 2048)

    def checked(self, text, expect, hook=None):
        import vsim
        for v in range(4):
            regs = {str(self.L): lane.astype(np.int64), str(self.L16): 16*lane.astype(np.int64), str(self.sV): v}
            W = wave_values(v); vsim.run(text.split('\n'), regs)
            for r, want in expect.items():
                w = (want(W, v) if callable(want) else W[want]) & 0xffffffff
                assert (regs[str(r)] == w).all(), (v, r, want, regs[str(r)], w)
        ls = [l for l in text.split('\n') if l.strip()]
        n = len(ls) if hook is None else hook[0]
        self.P('\n'.join(ls[:n]))
        if hook:
            for f in hook[1]: f()
            self.P('\n'.join(ls[n:]))
    def fields(self):
        V = self.V; f = {n: V.get() for n in 'l15 gk h r4 cc q2 g1'.split()}; L = self.L
        txt = f"""v_and_b32 {f['l15']}, 15, {L}
        v_lshrrev_b32 {f['gk']}, 4, {L}
        v_lshrrev_b32 {f['h']}, 5, {L}
        v_bfe_u32 {f['r4']}, {L}, 2, 2
        v_and_b32 {f['cc']}, 3, {L}
        v_lshrrev_b32 {f['q2']}, 2, {L}
        v_bfe_u32 {f['g1']}, {L}, 4, 1
        """
        return f, txt
    def values_b(self, hook=None):
        V, S, t, L, L16, sV = self.V, self.S, self.t, self.L, self.L16, self.sV
        f, x = self.fields(); l15, gk, h, r4, cc, q2, g1 = f.values()
        names = 'uld aTR aTO aKR bL16 b0 bE aE1r aE2w b16 aK0 aPad aUB aSW aYW aYR aYO aUW aKA0 aKA1 aS20 aS21 aS30 aS31 aR2 aR3 aK10 aK11 aK12 aK13 aK20 aK2z sel0 sel1 sel2'.split()
        for n in names: t[n] = V.get()
        a, b, c = V.get(), V.get(), V.get(); sB = self.sKM = S.get(); k0, k1 = self.st0, self.st1
        x += f"""s_mul_i32 {sB}, {sV}, {KW}
        v_lshrrev_b32 {a}, 3, {L}
        v_and_b32 {b}, 0x70, {L16}
        v_lshl_add_u32 {t['uld']}, {a}, 11, {b}
        v_lshlrev_b32 {c}, 4, {cc}
        v_lshl_add_u32 {t['aTO']}, {q2}, 14, {c}
        v_lshl_add_u32 {a}, {q2}, 8, {c}
        v_add_u32 {t['aE2w']}, {sB}, {a}
        v_lshl_add_u32 {a}, {gk}, 2, {cc}
        v_lshl_add_u32 {a}, {r4}, 4, {a}
        v_lshl_add_u32 {t['aTR']}, {a}, 3, {sB}
        v_mul_u32_u24 {a}, 33, {l15}
        v_add_u32 {a}, {a}, {gk}
        v_lshl_add_u32 {t['aKR']}, {a}, 4, {sB}
        v_add_u32 {t['bL16']}, {sB}, {L16}
        v_mov_b32 {t['b0']}, {sB}
        v_and_b32 {a}, 31, {L}
        v_lshl_add_u32 {t['bE']}, {a}, 4, {sB}
        v_lshl_add_u32 {t['aE1r']}, {a}, 3, {sB}
        v_lshl_add_u32 {t['b16']}, {l15}, 4, {sB}
        v_lshl_add_u32 {a}, {h}, 5, {g1}
        v_lshl_add_u32 {t['aK0']}, {a}, 3, {t['b16']}
        v_bfe_u32 {a}, {L}, 1, 2
        v_mul_u32_u24 {a}, 3296, {a}
        v_min_u32 {a}, 8800, {a}
        v_and_b32 {b}, 16, {L16}
        v_add3_u32 {t['aPad']}, {a}, {b}, {sB}
        v_lshl_add_u32 {a}, {l15}, 1, {gk}
        v_lshl_add_u32 {t['aUB']}, {a}, 4, {sB}
        v_lshl_add_u32 {c}, {l15}, 5, {sB}
        v_add_u32 {a}, {gk}, {r4}
        v_lshl_add_u32 {t['aSW']}, {a}, 3, {c}
        v_and_b32 {a}, 3, {a}
        v_lshl_add_u32 {t['aYW']}, {a}, 3, {c}
        v_add_u32 {a}, {gk}, {cc}
        v_and_b32 {a}, 3, {a}
        v_lshl_add_u32 {a}, {gk}, 4, {a}
        v_mul_u32_u24 {b}, {KW}, {r4}
        v_lshl_add_u32 {a}, {a}, 3, {b}
        s_lshl_b32 {k0}, {sV}, 9
        v_add_u32 {t['aYR']}, {k0}, {a}
        v_lshlrev_b32 {a}, 3, {l15}
        v_lshl_add_u32 {t['aYO']}, {gk}, 13, {a}
        v_mul_u32_u24 {a}, {KW}, {cc}
        v_lshl_add_u32 {a}, {q2}, 4, {a}
        s_lshl_b32 {k0}, {sV}, 10
        v_add_u32 {t['aUW']}, {k0}, {a}
        s_add_u32 {k0}, {sB}, {KT}
        v_lshl_add_u32 {c}, {r4}, 6, {k0}
        v_lshlrev_b32 {a}, 1, {gk}
        v_sub_u32 {a}, {cc}, {a}
        """
        for k in range(2):
            x += f"""v_lshl_add_u32 {b}, {a}, 2, {16-4*k}
            v_lshl_add_u32 {t[f'aKA{k}']}, {b}, 1, {c}
            v_ashrrev_i32 {b}, 31, {b}
            v_and_b32 {b}, 192, {b}
            v_sub_u32 {t[f'aKA{k}']}, {t[f'aKA{k}']}, {b}
            """
        x += f"v_lshl_add_u32 {c}, {g1}, 3, {r4}\n"
        for nm, sh, arr, dist in (('aS2', 1, S5, S3-S5), ('aS3', 2, S9, S7-S9)):
            x += f"""v_lshl_add_u32 {a}, {h}, {sh-1}, {cc}
            v_lshl_add_u32 {a}, {c}, {sh}, {a}
            s_add_u32 {k0}, {sB}, {arr}
            v_mul_u32_u24 {t[nm+'1']}, {dist}, {h}
            v_add_u32 {t[nm+'1']}, {k0}, {t[nm+'1']}
            v_add_u32 {a}, -3, {a}
            v_ashrrev_i32 {b}, 4, {a}
            v_add_lshl_u32 {b}, {a}, {b}, 3
            v_add_u32 {t[nm+'0']}, {t[nm+'1']}, {b}
            v_add_u32 {a}, {4 << sh}, {a}
            v_ashrrev_i32 {b}, 4, {a}
            v_add_lshl_u32 {b}, {a}, {b}, 3
            v_add_u32 {t[nm+'1']}, {t[nm+'1']}, {b}
            """
        x += f"""s_add_u32 {k0}, {sB}, {SMO}
        v_lshl_add_u32 {c}, {g1}, 4, {k0}
        v_mul_u32_u24 {a}, {KE2-KO2}, {h}
        v_lshl_add_u32 {a}, {l15}, 2, {a}
        v_sub_u32 {a}, {c}, {a}
        v_add_u32 {t['aR2']}, {KE2+60}, {a}
        v_and_b32 {b}, 1, {L}
        v_mul_u32_u24 {a}, {CPB}, {b}
        v_lshl_add_u32 {a}, {l15}, 1, {a}
        v_sub_u32 {a}, {c}, {a}
        v_mul_u32_u24 {c}, {KO3-KE3}, {h}
        v_add_u32 {a}, {KE3+CPB+30}, {a}
        v_add_u32 {t['aR3']}, {a}, {c}
        v_mul_u32_u24 {b}, {KO3-KE3-2}, {b}
        v_and_b32 {a}, 14, {L}
        v_lshl_add_u32 {a}, {gk}, 6, {a}
        v_sub_u32 {a}, {b}, {a}
        s_add_u32 {k1}, {k0}, {KE3+128}
        v_add_u32 {a}, {k1}, {a}
        s_add_u32 {k1}, {k0}, {DUMP}
        v_mov_b32 {c}, {k1}
        v_cmp_gt_u32 vcc, 33, {L}
        v_add_u32 {b}, -48, {a}
        s_add_u32 {k1}, {k0}, {KE2+64}
        v_cndmask_b32 {t['aK20']}, {c}, {a}, vcc
        v_cmp_gt_u32 vcc, 32, {L}
        v_lshl_add_u32 {a}, {gk}, 4, {l15}
        v_lshlrev_b32 {a}, 3, {a}
        v_cndmask_b32 {t['aK2z']}, {c}, {b}, vcc
        v_lshl_add_u32 {b}, {gk}, 5, {l15}
        v_lshlrev_b32 {b}, 1, {b}
        v_sub_u32 {b}, {KE2+320-KC1}, {b}
        v_cndmask_b32 {a}, {b}, {a}, vcc
        v_cmp_ne_u32 vcc, 0, {L}
        v_mov_b32 {c}, {k1}
        s_add_u32 {k1}, {k0}, {KC1}
        v_add_u32 {a}, {k1}, {a}
        v_cndmask_b32 {t['aK20']}, {c}, {t['aK20']}, vcc
        v_mul_u32_u24 {b}, {KE2-KO2+4}, {h}
        v_sub_u32 {b}, {a}, {b}
        v_add_u32 {t['aK11']}, 2, {b}
        v_mul_u32_u24 {b}, 36, {h}
        v_sub_u32 {b}, 4, {b}
        v_add_u32 {t['aK12']}, {a}, {b}
        v_add_u32 {t['aK13']}, {t['aK11']}, {b}
        v_cmp_ne_u32 vcc, 32, {L}
        s_add_u32 {k1}, {k1}, 256
        v_mov_b32 {c}, {k1}
        v_mov_b32 {t['sel0']}, 0x0c0c0c0c
        v_cndmask_b32 {t['aK10']}, {c}, {a}, vcc
        v_mov_b32 {t['sel1']}, {t['sel0']}
        v_mov_b32 {t['sel2']}, {t['sel0']}
        """
        T = [[0x5040504, 0x5040504, 0x5040302, 0x3020100], [0xc0c0504, 0x5040504, 0x5040504, 0x5040504], [None, None, 0xc0c0504, 0x5040504]]
        for r in range(4):
            x += f"s_mov_b32 exec_lo, {hex(0x10001 << 4*r)}\ns_mov_b32 exec_hi, {hex(0x10001 << 4*r)}\n"
            for k in range(3):
                if T[k][r]: x += f"v_mov_b32 {t[f'sel{k}']}, {hex(T[k][r])}\n"
        x += "s_mov_b64 exec, -1\n"
        self.BD = self.X(16); self.PM = V.get(8); D = V.get(8); o2 = V.get(2)
        x += f"""v_lshlrev_b32 {a}, 3, {gk}
        v_sub_u32 {a}, {a}, {l15}
        v_cvt_f32_i32 {a}, {a}
        """
        for s_ in range(8):
            x += f"v_add_f32 {D[s_]}, {fl(s_-12.0)}, {a}\nv_add_f32 {b}, {fl(s_-12.5)}, {a}\nv_sub_f32 {self.PM[s_]}, 1.0, abs({b})\n"
            x += f"v_add_f32_e64 {self.PM[s_]}, {self.PM[s_]}, {self.PM[s_]} clamp\n"
        for k, hw in enumerate((3.0, 2.0, 5.0, 4.0)):
            hs = {3.0: k1, 5.0: k1}.get(hw, str(hw))
            if hs is k1: x += f"s_mov_b32 {k1}, {fl(hw)}\n"
            for d in range(4):
                x += f"v_sub_f32 {o2[0]}, {hs}, abs({D[2*d]}) clamp\nv_sub_f32 {o2[1]}, {hs}, abs({D[2*d+1]}) clamp\n"
                if self.BD.k == 'a': x += f"v_cvt_pk_bf16_f32 {b}, {o2[0]}, {o2[1]}\nv_accvgpr_write_b32 {self.BD[4*k+d]}, {b}\n"
                else: x += f"v_cvt_pk_bf16_f32 {self.BD[4*k+d]}, {o2[0]}, {o2[1]}\n"
        E = {t[n]: n for n in 'uld aTO aYO aKA0 aKA1 aS20 aS21 aS30 aS31 aR2 aR3 aK10 aK11 aK12 aK13 aK20 aSW sel0 sel1 sel2'.split()}
        rel = {'aTR': ('aTR', UTO), 'aKR': ('aKR', KT), 'bL16': ('aE2r', KT), 'b0': ('aSm', SMO), 'bE': ('aE1w', KT+512), 'aE1r': ('aE1r', SMO+KC1), 'aE2w': ('aE2w', KT),
               'b16': ('aB16', KT+4096), 'aK0': ('aK0', KT), 'aPad': ('aPad', S5-32), 'aUB': ('aUB', UTO-480), 'aYW': ('aYW', YO), 'aYR': ('aYR', YO), 'aUW': ('aUW', UTO)}
        for n, (w, o) in rel.items(): E[t[n]] = (lambda W, v, w=w, o=o: W[w] - o)
        E[t['aK2z']] = lambda W, v: np.where(lane < 32, W['aK23'], sm(v) + DUMP)
        bt = band_tables()
        for k in range(16): E[self.BD[k]] = (lambda W, v, k=k: np.asarray(bt[k >> 2][k & 3], np.int64))
        for k in range(8): E[self.PM[k]] = (lambda W, v, k=k: np.where(W[f'pm{k >> 1}'] >> (16*(k & 1)) & 1, 0x3f800000, 0))
        self.checked(x, E, hook)
        V.put(a, b, c, D, o2, *f.values())
    def values_m(self):
        V, t, L, L16, sV = self.V, self.t, self.L, self.L16, self.sV
        f, x = self.fields(); l15, gk, h, r4, cc, q2, g1 = f.values()
        names = 'aXW aXI aEW aER aT2s aWR'.split()
        for n in names: t[n] = V.get()
        a, b = V.get(), V.get(); k0 = self.st0
        x += f"""v_mul_u32_u24 {a}, {XS1}, {cc}
        v_lshl_add_u32 {a}, {q2}, 6, {a}
        v_lshlrev_b32 {b}, 1, {g1}
        v_xor_b32 {b}, {sV}, {b}
        v_lshl_add_u32 {t['aXW']}, {b}, 4, {a}
        v_and_b32 {b}, 1, {r4}
        v_lshlrev_b32 {b}, 1, {b}
        v_xor_b32 {b}, {gk}, {b}
        v_lshl_add_u32 {b}, {l15}, 2, {b}
        s_mul_i32 {k0}, {sV}, {XS1}
        v_lshl_add_u32 {t['aXI']}, {b}, 4, {k0}
        v_bfe_u32 {b}, {L}, 1, 3
        v_add_u32 {b}, {sV}, {b}
        v_and_b32 {b}, 3, {b}
        v_lshl_add_u32 {b}, {l15}, 2, {b}
        v_lshl_add_u32 {b}, {gk}, 8, {b}
        v_lshlrev_b32 {t['aEW']}, 4, {b}
        s_lshl_b32 {k0}, {sV}, 12
        v_add_u32 {t['aER']}, {k0}, {L16}
        v_lshl_add_u32 {t['aWR']}, {L}, 2, {k0}
        v_lshrrev_b32 {a}, 3, {L}
        v_sub_u32 {a}, {L}, {a}
        v_and_b32 {a}, 3, {a}
        v_lshlrev_b32 {a}, 4, {a}
        v_lshl_add_u32 {t['aT2s']}, {q2}, 14, {a}
        """
        rel = {'aXW': XI, 'aXI': XI, 'aEW': EX, 'aER': EX, 'aT2s': 0, 'aWR': WS}
        self.checked(x, {t[n]: (lambda W, v, n=n, o=o: W[n] - o) for n, o in rel.items()})
        p, A = self.P, self.A
        self.C16r, self.C16i = A.get(4), A.get(4)
        self.T16c, self.T16s, self.Cm, self.Sm = V.get(4), V.get(4), V.get(4), V.get(4)
        k, an, c, s, d = cc, q2, r4, h, g1
        p(f"""v_cvt_f32_u32 {k}, {l15}
        v_cvt_f32_u32 {b}, {gk}
        v_mul_f32 {k}, {fl(1/16)}, {k}
        v_mul_f32 {d}, {b}, {k}
        v_mul_f32 {d}, 4.0, {d}""")
        for jj in range(4):
            p(f"""v_fmamk_f32 {an}, {k}, {fl(jj)}, {d}
            v_cos_f32 {c}, {an}
            v_sin_f32 {s}, {an}
            v_mul_f32 {an}, {fl(1/16)}, {an}
            v_cvt_pk_bf16_f32 {a}, {c}, {s}
            v_cos_f32 {self.T16c[jj]}, {an}
            v_cvt_pk_bf16_f32 {b}, -{s}, {c}
            v_sin_f32 {self.T16s[jj]}, {an}
            v_accvgpr_write_b32 {self.C16r[jj]}, {a}
            v_accvgpr_write_b32 {self.C16i[jj]}, {b}""")
        p(f"""v_lshl_add_u32 {c}, {gk}, 6, {l15}
        v_lshl_add_u32 {c}, {c}, 2, {self.sR}
        v_cvt_f32_u32 {c}, {c}
        v_mul_f32 {c}, {fl(1/2048)}, {c}""")
        for rho in range(4):
            p(f"v_add_f32 {an}, {fl(rho/32)}, {c}\nv_sin_f32 {self.Cm[rho]}, {an}\nv_cos_f32 {self.Sm[rho]}, {an}")
        V.put(a, b, *f.values())
    def values_l(self):
        V, t, L, L16, sV = self.V, self.t, self.L, self.L16, self.sV
        f, x = self.fields(); l15, gk, h, r4, cc, q2, g1 = f.values()
        names = 'aVW0 aVW1 aVW2 aVW3 aVR0 aVR1 aVR2 aVR3 aOW0 aOW1 aOR aO aGW0 aGW1 aGR0 aGR1 aGL aGO'.split()
        for n in names: t[n] = V.get()
        a, b, c, k = V.get(), V.get(), V.get(), V.get(); k0 = self.st0; self.kGY = self.st1
        def vad(dst, q): return f"""v_lshrrev_b32 {a}, 5, {q}
        v_bfe_u32 {b}, {q}, 1, 3
        v_lshlrev_b32 {b}, 2, {b}
        v_xor_b32 {a}, {a}, {b}
        v_and_b32 {b}, 31, {q}
        v_lshl_add_u32 {a}, {b}, 5, {a}
        v_lshl_add_u32 {dst}, {a}, 2, {r4}
        """
        x += f"""v_lshlrev_b32 {r4}, 13, {h}
        v_lshl_add_u32 {k}, {g1}, 4, {l15}
        s_lshl_b32 {k0}, {sV}, 7
        v_lshl_add_u32 {k}, {k}, 1, {k0}
        """ + vad(t['aVW0'], k) + f"v_sub_u32 {c}, {1024-65}, {k}\n" + vad(t['aVW1'], c) + f"v_sub_u32 {c}, {1024-64}, {k}\n" + vad(t['aVW3'], c)
        x += f"v_cmp_ne_u32 vcc, 0, {k}\nv_sub_u32 {c}, 0x400, {k}\nv_mov_b32 {a}, 0x200\ns_lshl_b32 {k0}, {sV}, 12\nv_cndmask_b32 {c}, {a}, {c}, vcc\n" + vad(t['aVW2'], c)
        x += f"""v_and_b32 {a}, 31, {L}
        v_bfe_u32 {b}, {L}, 1, 3
        v_xor_b32 {b}, {b}, {h}
        v_lshl_add_u32 {b}, {a}, 3, {b}
        v_lshl_add_u32 {t['aVR0']}, {b}, 4, {k0}
        v_xor_b32 {t['aVR1']}, 32, {t['aVR0']}
        v_xor_b32 {t['aVR2']}, 64, {t['aVR0']}
        v_xor_b32 {t['aVR3']}, 0x60, {t['aVR0']}
        v_add_u32 {t['aOR']}, {k0}, {L16}
        v_bfe_u32 {a}, {L}, 2, 1
        v_bfe_u32 {b}, {L}, 3, 1
        v_and_b32 {c}, 0x13, {L}
        v_lshl_or_b32 {c}, {a}, 3, {c}
        v_lshl_or_b32 {c}, {b}, 2, {c}
        v_bfe_u32 {k}, {L}, 1, 1
        v_lshl_or_b32 {k}, {a}, 1, {k}
        v_xor_b32 {k}, {k}, {h}
        v_lshl_add_u32 {k}, {c}, 2, {k}
        v_lshl_add_u32 {t['aOW0']}, {k}, 4, {k0}
        v_xor_b32 {t['aOW1']}, 32, {t['aOW0']}
        v_lshl_or_b32 {b}, {h}, 1, {b}
        v_xor_b32 {b}, {b}, {L}
        v_lshlrev_b32 {t['aO']}, 4, {b}
        v_lshrrev_b32 {a}, 3, {L}
        v_and_b32 {b}, 7, {L}
        v_lshlrev_b32 {c}, 4, {b}
        v_lshl_add_u32 {t['aGL']}, {a}, 9, {c}
        v_lshl_add_u32 {t['aGO']}, {a}, 12, {c}
        v_xor_b32 {c}, {b}, {gk}
        s_lshl_b32 {k0}, {sV}, 11
        v_lshl_add_u32 {c}, {c}, 4, {k0}
        v_lshl_add_u32 {t['aGW0']}, {a}, 7, {c}
        v_xor_b32 {t['aGW1']}, 64, {t['aGW0']}
        v_lshl_add_u32 {c}, {b}, 8, {c}
        v_and_b32 {a}, 8, {L}
        v_add3_u32 {t['aGR0']}, {c}, {a}, {self.kGY}
        v_xor_b32 {t['aGR1']}, 64, {t['aGR0']}
        """
        x = f"s_mov_b32 {self.kGY}, {GY}\n" + x
        rel = {n: A0 for n in names[:11]}; rel.update({'aO': 0, 'aGW0': GY, 'aGW1': GY + 1024, 'aGR0': 0, 'aGR1': 0, 'aGL': 0, 'aGO': 0})
        self.checked(x, {t[n]: (lambda W, v, n=n, o=o: W[n] - o) for n, o in rel.items()})
        V.put(a, b, c, k, *f.values())

    def fft1024(self, FA, Dr, Di, waits):
        p = self.P
        for st in range(2):
            for f in range(4):
                if st == 0: p(f's_waitcnt lgkmcnt({waits[f]})')
                p(f'v_mfma_f32_32x32x16_bf16 {Dr}, {FA[4*f:4*f+4]}, {self.CFr[4*f:4*f+4]}, {Dr if f else 0}')
                p(f'v_mfma_f32_32x32x16_bf16 {Di}, {FA[4*f:4*f+4]}, {self.CFi[4*f:4*f+4]}, {Di if f else 0}')
            if st == 0: self.twiddle(Dr, Di, self.TWc, self.TWs, FA)
    def twiddle(self, Dr, Di, Tc, Ts, F):
        p, V = self.P, self.V
        T = V.get(8); n = Dr.n//2
        if self.plain:
            for k in range(0, Dr.n, 4):
                for e in range(4): p(f'v_mul_f32 {T[e]}, {Dr[k+e]}, {Tc[(k+e) % Tc.n]}\nv_mul_f32 {T[4+e]}, {Di[k+e]}, {Tc[(k+e) % Tc.n]}')
                for e in range(4): p(f'v_fmac_f32 {T[e]}, {Di[k+e]}, {Ts[(k+e) % Tc.n]}\nv_fma_f32 {T[4+e]}, -{Dr[k+e]}, {Ts[(k+e) % Tc.n]}, {T[4+e]}')
                for e in range(4): p(f'v_cvt_pk_bf16_f32 {F[k+e]}, {T[e]}, {T[4+e]}')
            V.put(T); return
        for k0 in range(0, n, 2):
            ks = (k0, k0+1)
            tt = {k: (T[4*(k-k0):4*(k-k0)+2], T[4*(k-k0)+2:4*(k-k0)+4]) for k in ks}
            s2 = lambda R, k: R[(2*k) % R.n:(2*k) % R.n+2]
            for k in ks: p(f'v_pk_mul_f32 {tt[k][0]}, {s2(Dr,k)}, {s2(Tc,k)}\nv_pk_mul_f32 {tt[k][1]}, {s2(Di,k)}, {s2(Tc,k)}')
            for k in ks: p(f'v_pk_fma_f32 {tt[k][0]}, {s2(Di,k)}, {s2(Ts,k)}, {tt[k][0]}\nv_pk_fma_f32 {tt[k][1]}, {s2(Dr,k)}, {s2(Ts,k)}, {tt[k][1]} neg_lo:[1,0,0] neg_hi:[1,0,0]')
            for k in ks:
                for e in range(2): p(f'v_cvt_pk_bf16_f32 {F[2*k+e]}, {tt[k][0][e]}, {tt[k][1][e]}')
        V.put(T)
    def fft256(self, F, Dr, Di, waits=None):
        p = self.P; n = F.n//4
        q = lambda R, s: R[4*s:4*s+4]
        for s in range(n):
            if waits: p(f's_waitcnt lgkmcnt({waits[s]})')
            p(f'v_mfma_f32_16x16x32_bf16 {q(Dr,s)}, {q(F,s)}, {self.C16r}, 0\nv_mfma_f32_16x16x32_bf16 {q(Di,s)}, {q(F,s)}, {self.C16i}, 0')
        self.twiddle(Dr, Di, self.T16c, self.T16s, F)
        for s in range(n):
            p(f'v_mfma_f32_16x16x32_bf16 {q(Dr,s)}, {self.C16r}, {q(F,s)}, 0\nv_mfma_f32_16x16x32_bf16 {q(Di,s)}, {self.C16i}, {q(F,s)}, 0')
    def tag4(self, R, TG=None):
        for d in range(4): self.P(f'v_bfi_b32 {R[d]}, {self.MK}, {R[d]}, {(TG or self.TG)[d]}')
    def check16(self, R, acc, t, TG=None):
        p = self.P; TG = TG or self.TG
        for d in range(4):
            p(f'v_bitop3_b32 {t[0]}, {R[d]}, {R[4+d]}, {TG[d]} bitop3:0x7e')
            p(f'v_bitop3_b32 {t[1]}, {R[8+d]}, {R[12+d]}, {TG[d]} bitop3:0x7e')
            p(f'v_or3_b32 {acc}, {t[0]}, {t[1]}, {acc if d else 0}')
        p(f'v_and_b32 {acc}, 0x10001, {acc}\nv_cmp_ne_u32 vcc, 0, {acc}')
    def check_nonce(self, X, n, acc, t):
        for i in range(n):
            self.p(f'v_bitop3_b32 {t if i else acc}, {X[4*i+1]}, {X[4*i+3]}, {self.sN} bitop3:0x7e')
            if i: self.p(f'v_or_b32 {acc}, {t}, {acc}')
        self.p(f'v_cmp_ne_u32 vcc, 0, {acc}')
    def poll(self, issue, check, first_wait):
        ok, re_, lp = self.label('ok'), self.label('re'), self.label('lp')
        cnt = self.st1; outer = self.p
        self.p(f's_waitcnt vmcnt({first_wait})')
        check()
        self.p(f's_cbranch_vccnz {re_}\n{ok}:')
        self.begin_ool(re_)
        self.p(f's_movk_i32 {cnt}, {SPIN_MAX}\n{lp}:\ns_sleep {self.flag("bo", 4)}')
        issue()
        self.p('s_waitcnt vmcnt(0)')
        check()
        self.p(f's_cbranch_vccz {ok}\ns_sub_u32 {cnt}, {cnt}, 1\ns_cmp_lg_u32 {cnt}, 0\ns_cbranch_scc1 {lp}\ns_branch {ok}')
        self.p = outer

    def poll_chunks(self, R, loads, TG, first_wait, acc, tt):
        ok, re_, lp = self.label('ok'), self.label('re'), self.label('lp')
        cnt = self.st1; outer = self.p; n = len(loads); p = self.P
        p(f's_waitcnt vmcnt({first_wait})')
        if n == 4: self.check16(R, acc, tt, TG)
        else:
            for d in range(4): p(f'v_bitop3_b32 {tt[d&1] if d else acc}, {R[d]}, {R[4+d]}, {TG[d]} bitop3:0x7e' + (f'\nv_or3_b32 {acc}, {acc}, {tt[0]}, {tt[1]}' if d == 2 else ''))
            p(f'v_or_b32 {acc}, {acc}, {tt[1]}\nv_and_b32 {acc}, 0x10001, {acc}\nv_cmp_ne_u32 vcc, 0, {acc}')
        p(f's_cbranch_vccnz {re_}\n{ok}:')
        self.begin_ool(re_)
        any_ = self.S.get(2); D = 'row_mask:0xf bank_mask:0xf'
        p(f's_movk_i32 {cnt}, {SPIN_MAX}\n{lp}:\ns_sleep {self.flag("bo", 6)}\ns_mov_b64 {any_}, 0')
        for i in range(n):
            sk = self.label('sk'); q = R[4*i:4*i+4]
            p(f'''v_xor_b32 {acc}, {TG[0]}, {q[0]}
            v_bitop3_b32 {acc}, {q[1]}, {TG[1]}, {acc} bitop3:0xbe
            v_bitop3_b32 {acc}, {q[2]}, {TG[2]}, {acc} bitop3:0xbe
            v_bitop3_b32 {acc}, {q[3]}, {TG[3]}, {acc} bitop3:0xbe
            v_and_b32 {acc}, 0x10001, {acc}
            v_or_b32_dpp {acc}, {acc}, {acc} quad_perm:[1,0,3,2] {D}
            v_or_b32_dpp {acc}, {acc}, {acc} quad_perm:[2,3,0,1] {D}
            v_cmp_ne_u32 vcc, 0, {acc}
            s_or_b64 {any_}, {any_}, vcc
            s_cbranch_vccz {sk}
            s_mov_b64 exec, vcc
            {loads[i]}
            s_mov_b64 exec, -1
            {sk}:''')
        p(f'''s_cmp_eq_u64 {any_}, 0
        s_cbranch_scc1 {ok}
        s_waitcnt vmcnt(0)
        s_sub_u32 {cnt}, {cnt}, 1
        s_cmp_lg_u32 {cnt}, 0
        s_cbranch_scc1 {lp}
        s_branch {ok}''')
        self.S.put(any_); self.p = outer

    def phase1(self, bg1):
        p, V, S, t = self.P, self.V, self.S, self.t
        FA, Dr, Di = V.get(16), V.get(16), V.get(16)
        self.wait_vm('x')
        self.stamp('xland')
        for f in range(4):
            for k in range(2): p(f'ds_read_b64_tr_b16 {FA[4*f+2*k:4*f+2*k+2]}, {t["aXR"]} offset:{512*f+128*k}')
        self.background(bg1, 32)
        self.fft1024(FA, Dr, Di, (6, 4, 2, 0))
        self.bgflush(); self.stamp('f1')
        for g in range(4):
            for jj in range(4): p(f'v_cvt_pk_bf16_f32 {FA[4*g+jj]}, {Dr[4*g+jj]}, {Di[4*g+jj]}')
            p(f'ds_write_b128 {t["aZW"]}, {FA[4*g:4*g+4]} offset:{64*(g>>1)+16*(g&1)}')
        self.wait_vm('gE')
        p('s_waitcnt lgkmcnt(0)'); self.stamp('zw'); p('s_barrier'); self.stamp('s1')
        for k in range(4):
            a = t[f'aZR{k}']
            p(f'ds_read2st64_b32 {FA[4*k:4*k+2]}, {a} offset0:0 offset1:18\nds_read2st64_b32 {FA[4*k+2:4*k+4]}, {a} offset0:36 offset1:54')
        for k in range(4):
            p(f's_waitcnt lgkmcnt({6-2*k})')
            p(f'v_mfma_f32_16x16x32_bf16 {Dr[4*k:4*k+4]}, {self.R4a}, {FA[4*k:4*k+4]}, 0\nv_mfma_f32_16x16x32_bf16 {Di[4*k:4*k+4]}, {self.R4b}, {FA[4*k:4*k+4]}, 0')
        for k in range(4):
            o = FA[4*k:4*k+4]
            p(f'''v_cvt_pk_bf16_f32 {o[0]}, {Dr[4*k]}, {Dr[4*k+1]}
            v_cvt_pk_bf16_f32 {o[1]}, {Dr[4*k+2]}, {Dr[4*k+3]}
            v_cvt_pk_bf16_f32 {o[2]}, {Di[4*k]}, {Di[4*k+1]}
            v_cvt_pk_bf16_f32 {o[3]}, {Di[4*k+2]}, {Di[4*k+3]}''')
            self.tag4(o)
            self.vm(f'buffer_store_dwordx4 {o}, {t["aC"]}, {self.rW}, {self.so["t1st"][k]} offen sc1', 't1st')
        self.stamp('t1st')
        S.put(*self.so['t1st'])
        l0, ld = self.label('x0'), self.label('xd')
        p(f's_cmp_eq_u32 {self.sV}, 0\ns_cbranch_scc1 {l0}\n{ld}:')
        self.begin_ool(l0)
        X = Dr; st0 = self.st0
        p(f'''s_nop 0
        ds_read2st64_b32 {X[0:2]}, {t["aZX"]} offset0:0 offset1:18
        ds_read2st64_b32 {X[2:4]}, {t["aZX"]} offset0:36 offset1:54
        v_lshlrev_b32 {X[8]}, 8, {self.L}
        s_lshl_b32 {st0}, {self.sC}, 4
        s_add_u32 {st0}, {st0}, {T1X}
        s_waitcnt lgkmcnt(0)
        v_mfma_f32_16x16x32_bf16 {X[4:8]}, {self.R4a}, {X[0:4]}, 0
        v_mov_b32 {X[1]}, {self.sN}
        v_mov_b32 {X[3]}, {self.sN}
        v_cvt_pk_bf16_f32 {X[0]}, {X[4]}, {X[5]}
        v_cvt_pk_bf16_f32 {X[2]}, {X[6]}, {X[7]}
        s_mov_b32 exec_lo, 0x00010001
        s_mov_b32 exec_hi, 0x00010001
        buffer_store_dwordx4 {X[0:4]}, {X[8]}, {self.rW}, {st0} offen sc1
        s_mov_b64 exec, -1
        s_branch {ld}
''')
        self.end_ool()
        self.pend = [FA, Dr, Di]
        self.free('aXR', 'aZW', 'aZX', 'aC', 'aZR0', 'aZR1', 'aZR2', 'aZR3'); self.A.put(self.R4a, self.R4b)
    def release_pending(self): self.V.put(*self.pend); self.pend = []

    def wstage(self):
        p = self.P
        p(f's_lshl_b32 {self.st0}, {self.sV}, 10\ns_add_u32 m0, {self.st0}, {WS}\ns_nop 0')
        for rho in range(4):
            for s in range(4): p(f'ds_write_addtid_b32 {self.WL[4*rho+s]} offset:{4096*s+256*rho}')
    def cm_load(self):
        self.Cm, self.Sm = self.V.get(4), self.V.get(4)
        o = self.sexpr([(self.sR, 2048)], self.toff['CM'])
        return self.tloads([self.Cm, self.Sm], o, 'cm')
    def mcalc(self, M, W0r, W0i, W1r, W1i):
        p = self.P
        for h in range(2):
            s2 = lambda R: R[2*h:2*h+2]
            l = ((W0r, W1r, M[0], M[2], M[4]), (W0i, W1i, M[1], M[3], M[5]))
            for (a, b, pp, mm, nn) in l: p(f'v_pk_add_f32 {s2(nn)}, {s2(a)}, {s2(b)} neg_lo:[0,1] neg_hi:[0,1]\nv_pk_add_f32 {s2(a)}, {s2(a)}, {s2(b)}')
            for (a, b, pp, mm, nn) in l: p(f'v_pk_fma_f32 {s2(pp)}, {s2(self.Cm)}, {s2(nn)}, {s2(a)} neg_lo:[1,0,0] neg_hi:[1,0,0]\nv_pk_fma_f32 {s2(mm)}, {s2(self.Cm)}, {s2(nn)}, {s2(a)}')
            for (a, b, pp, mm, nn) in l: p(f'v_pk_mul_f32 {s2(nn)}, {s2(self.Sm)}, {s2(nn)}')
    def m_read(self):
        for k in range(8): self.p(f'ds_read2st64_b32 {self.WL[2*k:2*k+2]}, {self.t["aWR"]} offset0:{2*k} offset1:{2*k+1}')
        self.free('aWR')
    def mpre(self):
        p, V, S = self.P, self.V, self.S; R = self.WL
        self.M = [[V.get(4) for _ in range(6)] for _ in range(2)]
        U = V.get(16)
        for u in range(2):
            for i in range(16):
                p(f'v_lshlrev_b32 {U[i]}, 16, {R[i]}' if u == 0 else f'v_and_b32 {U[i]}, 0xffff0000, {R[i]}')
            self.mcalc(self.M[u], U[0:4], U[4:8], U[8:12], U[12:16])
        self.N2 = [V.get(4), V.get(4)]; self.sSP = S.get()
        lb, lsp = self.label('nosp'), self.label('spm')
        X2 = V.get(16); acc = V.get(); a = V.get(); junk = [V.get(4), V.get(4)]
        p(f's_or_b32 {self.sSP}, {self.sG}, {self.sV}\ns_cmp_eq_u32 {self.sSP}, 0\ns_cbranch_scc1 {lsp}\n{lb}:')
        self.begin_ool(lsp)
        p(f'''s_lshl_b32 {self.st0}, {self.sR}, 13
        s_add_u32 {self.st0}, {self.st0}, {WX}
        v_lshrrev_b32 {a}, 4, {self.L}
        v_lshlrev_b32 {a}, 11, {a}
        v_and_b32 {acc}, 15, {self.L}
        v_lshl_add_u32 {a}, {acc}, 5, {a}''')
        M0 = self.M[0]; XX = (R, X2)
        def issue():
            for col in range(2):
                for i in range(4): p(f'buffer_load_dwordx4 {XX[col][4*i:4*i+4]}, {a}, {self.rW}, {self.st0} offen offset:{512*i+16*col} sc1')
        def check():
            self.check_nonce(R, 4, acc, U[0]); p(f'v_mov_b32 {U[1]}, {acc}'); self.check_nonce(X2, 4, acc, U[0])
            p(f'v_or_b32 {acc}, {acc}, {U[1]}\nv_cmp_ne_u32 vcc, 0, {acc}')
        issue(); self.poll(issue, check, 0)
        for col in range(2):
            for half in range(2):
                for i in range(4):
                    src = XX[col][4*i+2*half]
                    p(f'v_lshlrev_b32 {U[8*half+i]}, 16, {src}\nv_and_b32 {U[8*half+4+i]}, 0xffff0000, {src}')
            MM = [M0[0], M0[1], junk[0], junk[1], M0[4], M0[5]] if col == 0 else [junk[0], junk[1], M0[2], M0[3], self.N2[0], self.N2[1]]
            self.mcalc(MM, U[0:4], U[4:8], U[8:12], U[12:16])
        p(f's_branch {lb}')
        self.end_ool()
        V.put(a, U, X2, acc, *junk, self.WL, self.Cm, self.Sm)

    def t1_issue(self):
        if not hasattr(self, 'TL'): self.TL = self.V.get(16)
        self.ld1 = [f'buffer_load_dwordx4 {self.TL[4*i:4*i+4]}, {self.L16}, {self.rW}, {self.so["t1ld"]} offen offset:{1024*i} sc1' for i in range(4)]
        for x in self.ld1: self.vm(x, 't1ld')
    def middle(self, M, Pr, Pi, Qr, Qi, Fp, Fm, Pxr=None, Pxi=None, Qxr=None, Qxi=None, N2=None):
        p, V = self.P, self.V
        ppr, ppi, mmr, mmi, nr, ni = M
        n2r, n2i = N2 or (nr, ni)
        Pxr, Pxi, Qxr, Qxi = Pxr or Pr, Pxi or Pi, Qxr or Qr, Qxi or Qi
        T = V.get(8); N = ' neg_lo:[1,0,0] neg_hi:[1,0,0]'
        for h in range(2):
            s = lambda R: R[2*h:2*h+2]
            a, b, c, d = T[0:2], T[2:4], T[4:6], T[6:8]
            pp = (lambda x: p(unpack_pk(x))) if self.plain else p
            pp(f'''v_pk_mul_f32 {a}, {s(ppr)}, {s(Pr)}
            v_pk_mul_f32 {b}, {s(ppr)}, {s(Pi)}
            v_pk_mul_f32 {c}, {s(mmr)}, {s(Qr)}
            v_pk_mul_f32 {d}, {s(mmr)}, {s(Qi)}
            v_pk_fma_f32 {a}, {s(ppi)}, {s(Pi)}, {a}{N}
            v_pk_fma_f32 {b}, {s(ppi)}, {s(Pr)}, {b}
            v_pk_fma_f32 {c}, {s(mmi)}, {s(Qi)}, {c}{N}
            v_pk_fma_f32 {d}, {s(mmi)}, {s(Qr)}, {d}
            v_pk_fma_f32 {a}, {s(ni)}, {s(Qxr)}, {a}{N}
            v_pk_fma_f32 {b}, {s(nr)}, {s(Qxr)}, {b}
            v_pk_fma_f32 {c}, {s(n2r)}, {s(Pxi)}, {c}
            v_pk_fma_f32 {d}, {s(n2r)}, {s(Pxr)}, {d}{N}
            v_pk_fma_f32 {a}, {s(nr)}, {s(Qxi)}, {a}{N}
            v_pk_fma_f32 {b}, {s(ni)}, {s(Qxi)}, {b}{N}
            v_pk_fma_f32 {c}, {s(n2i)}, {s(Pxr)}, {c}
            v_pk_fma_f32 {d}, {s(n2i)}, {s(Pxi)}, {d}''')
            for e in range(2):
                p(f'v_cvt_pk_bf16_f32 {Fp[2*h+e]}, {b[e]}, {a[e]}\nv_cvt_pk_bf16_f32 {Fm[2*h+e]}, {d[e]}, {c[e]}')
        V.put(T)
    def phase2(self, after_check=None, after_middle=None):
        p, V, S, t = self.P, self.V, self.S, self.t
        TL = self.TL; F, Dr, Di = V.get(16), V.get(16), V.get(16)
        acc = V.get(); tt = V.get(2)
        self.poll_chunks(TL, self.ld1, self.TG, self.after('t1ld'), acc, tt)
        self.stamp('t1ok')
        for s in range(4):
            for i in range(4): p(f'v_mov_b32 {F[4*s+i]}, {TL[4*i+s]}')
            p(f'ds_write_b128 {t["aXW"]}, {F[4*s:4*s+4]} offset:{XI+1024*s}')
        if after_check: after_check()
        p('s_waitcnt lgkmcnt(0)\ns_barrier')
        for s in range(4): p(f'ds_read_b128 {F[4*s:4*s+4]}, {t["aXI"]} offset:{XI+1024*s}')
        self.epoch_advance(self.sC, self.sE, lambda r: f'v_mov_b32 {r}, 0', tt)
        q = lambda R, s: R[4*s:4*s+4]
        self.fft256(F, Dr, Di, (3, 2, 1, 0))
        lsp, ldone = self.label('sp'), self.label('spd')
        p(f's_cmp_eq_u32 {self.sSP}, 0\ns_cbranch_scc1 {lsp}')
        self.middle(self.M[0], q(Dr,0), q(Di,0), q(Dr,1), q(Di,1), q(F,0), q(F,1))
        p(f'{ldone}:')
        self.begin_ool(lsp)
        X, FX, Xr, Xi = TL, V.get(8), TL[0:8], TL[8:16]; a = V.get()
        p(f'''s_lshl_b32 {self.st0}, {self.sR}, 12
        s_add_u32 {self.st0}, {self.st0}, {T1X}
        v_lshrrev_b32 {a}, 4, {self.L}
        v_lshlrev_b32 {a}, 10, {a}
        v_and_b32 {acc}, 15, {self.L}
        v_lshl_add_u32 {a}, {acc}, 4, {a}''')
        def issue():
            for i in range(4): p(f'buffer_load_dwordx4 {X[4*i:4*i+4]}, {a}, {self.rW}, {self.st0} offen offset:{256*i} sc1')
        issue(); self.poll(issue, lambda: self.check_nonce(X, 4, acc, tt[0]), 0)
        for s in range(2):
            for i in range(4): p(f'v_mov_b32 {FX[4*s+i]}, {X[4*i+2*s]}')
        self.fft256(FX, Xr, Xi)
        self.middle(self.M[0], q(Dr,0), q(Di,0), q(Dr,1), q(Di,1), q(F,0), q(F,1), q(Xr,0), q(Xi,0), q(Xr,1), q(Xi,1), self.N2)
        p(f's_branch {ldone}')
        self.end_ool()
        V.put(FX, a)
        self.middle(self.M[1], q(Dr,2), q(Di,2), q(Dr,3), q(Di,3), q(F,2), q(F,3))
        V.put(*self.M[0], *self.M[1], *self.N2)
        if after_middle: after_middle()
        self.fft256(F, Dr, Di)
        for rho in range(4):
            o = F[4*rho:4*rho+4]
            for s in range(4): p(f'v_cvt_pk_bf16_f32 {o[s]}, {Di[4*s+rho]}, {Dr[4*s+rho]}')
            self.tag4(o)
            p(f'ds_write_b128 {t["aEW"]}, {o} offset:{EX+1024*rho}')
        p('s_waitcnt lgkmcnt(0)\ns_barrier')
        for i in range(4): p(f'ds_read_b128 {Dr[4*i:4*i+4]}, {t["aER"]} offset:{EX+1024*i}')
        for i in range(4):
            p(f's_waitcnt lgkmcnt({3-i})')
            self.vm(f'buffer_store_dwordx4 {Dr[4*i:4*i+4]}, {t["aT2s"]}, {self.rW}, {self.so["t2st"][i]} offen sc1', 't2st')
        self.stamp('t2st')
        self.pend = [Dr]
        V.put(F, Di, acc, tt, self.T16c, self.T16s)
        self.free('aXW', 'aXI', 'aEW', 'aER', 'aT2s')
        self.A.put(self.C16r, self.C16i); S.put(self.so['t1ld'], *self.so['t2st'], self.sSP)

    def t2_issue(self):
        self.ld2 = [f'buffer_load_dwordx4 {self.TL[4*r:4*r+4]}, {self.L16}, {self.rW}, {self.so["t2ld"][r]} offen sc1' for r in range(4)]
        for x in self.ld2: self.vm(x, 't2ld')
    def phase3(self, after_check=None):
        p, V, S, t = self.P, self.V, self.S, self.t
        TL = self.TL; F, Dr, Di = V.get(16), V.get(16), V.get(16)
        acc = V.get(); tt = V.get(2)
        self.poll_chunks(TL, self.ld2, self.TG, self.after('t2ld'), acc, tt)
        self.stamp('t2ok')
        if after_check: after_check()
        for s in range(4):
            for i in range(4): p(f'v_mov_b32 {F[4*s+i]}, {TL[4*i+s]}')
        for s in range(4):
            p(f'v_mfma_f32_16x16x32_bf16 {Dr[4*s:4*s+4]}, {self.R4l}, {F[4*s:4*s+4]}, 0\nv_mfma_f32_16x16x32_bf16 {Di[4*s:4*s+4]}, {self.R4h}, {F[4*s:4*s+4]}, 0')
        for s in range(4):
            e, up = s >> 1, s & 1; w = []
            for hi, D in ((0, Dr), (1, Di)):
                for ml in range(2):
                    o = TL[4*s+2*hi+ml]
                    p(f'v_cvt_pk_bf16_f32 {o}, {"-" if up else ""}{D[4*s+2*ml+1]}, {D[4*s+2*ml]}')
                    if not up: a, off = t['aVW0'], 128*e + 8*hi
                    elif e: a, off = t['aVW1'], 8*(1-hi)
                    else: a, off = t[f'aVW{2+hi}'], 0
                    w.append(f'ds_write_b32 {a}, {o} offset:{A0 + off + 4096*ml}')
            for x in w: p(x)
        p('s_waitcnt lgkmcnt(0)\ns_barrier')
        for f in range(4): p(f'ds_read_b128 {F[4*f:4*f+4]}, {t[f"aVR{f}"]} offset:{A0}')
        self.fft1024(F, Dr, Di, (3, 2, 1, 0))
        for row, D in ((0, Di), (1, Dr)):
            for hf in range(2):
                o = F[8*row+4*hf:8*row+4*hf+4]
                for k in range(4): p(f'v_cvt_pk_bf16_f32 {o[k]}, {D[8*hf+2*k]}, {D[8*hf+2*k+1]}')
                p(f'ds_write_b128 {t[f"aOW{hf}"]}, {o} offset:{A0+2048*row}')
        for i in range(4): p(f'ds_read_b128 {Dr[4*i:4*i+4]}, {t["aOR"]} offset:{A0+1024*i}')
        for i in range(4):
            p(f's_waitcnt lgkmcnt({3-i})')
            self.vm(f'buffer_store_dwordx4 {Dr[4*i:4*i+4]}, {t["aO"]}, {self.rO}, {self.so["oA"][i>>1]} offen offset:{1024*(i&1)} {self.flag("out", "sc1")}', 'out')
        self.stamp('outst')
        V.put(F, Di, acc, tt)

    def tu_produce(self, lg=0):
        p, V, t = self.P, self.V, self.t
        R = V.get(16)
        for b in range(4):
            for h in range(2): p(f'ds_read_b64_tr_b16 {R[4*b+2*h:4*b+2*h+2]}, {t["aTR"]} offset:{UTO+1024*b+512*h}')
        for b in range(4):
            p(f's_waitcnt lgkmcnt({6-2*b})')
            self.tag4(R[4*b:4*b+4])
            self.vm(f'buffer_store_dwordx4 {R[4*b:4*b+4]}, {t["aTO"]}, {self.rW}, {self.so["tust"]} offen offset:{64*b} sc1', 'tust')
        self.pend.append(R); self.free('aTR', 'aTO'); self.S.put(self.so['tust'])
    def tu_issue(self):
        if not hasattr(self, 'UL'): self.UL = self.V.get(16)
        self.ldu = [f'buffer_load_dwordx4 {self.UL[4*i:4*i+4]}, {self.L16}, {self.rW}, {self.so["tuld"]} offen offset:{1024*i} sc1' for i in range(4)]
        for x in self.ldu: self.vm(x, 'tuld')
    def tu_consume(self):
        p, V = self.P, self.V
        acc, tt = V.get(), V.get(2)
        self.poll_chunks(self.UL, self.ldu, self.TG, self.after('tuld'), acc, tt)
        for i in range(4): p(f'ds_write_b128 {self.t["aUW"]}, {self.UL[4*i:4*i+4]} offset:{UTO+256*i}')
        V.put(acc, tt, self.UL); self.free('aUW'); self.S.put(self.so['tuld'])

    def cmul(self, items):
        p = self.P
        for i, (d, x, e) in enumerate(items): p(f'v_pk_mul_f32 {self.CT[2*i:2*i+2]}, {x}, {e} op_sel:[0,0] op_sel_hi:[0,1]')
        for i, (d, x, e) in enumerate(items): p(f'v_pk_fma_f32 {d}, {x}, {e}, {self.CT[2*i:2*i+2]} op_sel:[1,1,0] op_sel_hi:[1,0,1] neg_lo:[0,1,0]')
    def krow(self, row, X, neg=False):
        k = len(self.kq)//2; o = self.KO[2*k:2*k+2]
        for u in range(2):
            self.P(f'v_cvt_pk_bf16_f32 {o[u]}, {X[u][0]}, {"-" if neg else ""}{X[u][1]}')
            self.kq.append(f'ds_write_addtid_b32 {o[u]} offset:{KB+KT+528*row+256*u}')
        if k == 3: self.kflush()
    def kflush(self):
        for x in self.kq: self.p(x)
        self.kq = []
    def km0(self): self.p(f's_mov_b32 m0, {self.sKM}')
    def kgen_setup(self, landed=None):
        p, V, S, t = self.P, self.V, self.S, self.t
        st0 = self.st0; self.kq = []
        self.E = {n: [V.get(2), V.get(2)] for n in (1, 8, 128)}
        self.KY = [V.get(2), V.get(2)]; self.KX = [V.get(2), V.get(2)]; self.CT = V.get(4); self.KO = V.get(8)
        dt, t0, t1, t2 = V.get(), V.get(), V.get(), V.get(); z = V.get(4)
        LOG2E = math.log2(math.e); hi = struct.unpack('<f', struct.pack('<f', LOG2E))[0]
        p(f"""s_and_b32 {st0}, {self.sD}, 1
        s_lshl_b32 {st0}, {st0}, 4
        s_lshr_b32 {self.sLD}, {self.sLD}, {st0}
        s_lshl_b32 {self.sLD}, {self.sLD}, 16
        s_lshr_b32 {self.sDS}, {self.sDS}, {st0}
        s_lshl_b32 {self.sDS}, {self.sDS}, 16
        v_mov_b32 {t0}, {fl(hi)}
        v_mul_f32 {t1}, {self.sLD}, {t0}
        v_fma_f32 {t2}, {self.sLD}, {t0}, -{t1}
        v_mov_b32 {t0}, {fl(LOG2E-hi)}
        v_exp_f32 {dt}, {t1}
        v_fmac_f32 {t2}, {self.sLD}, {t0}
        v_mul_f32 {t2}, {fl(math.log(2))}, {t2}
        v_fmac_f32 {dt}, {dt}, {t2}
        v_cvt_pk_bf16_f32 {dt}, {dt}, {dt}
        v_lshlrev_b32 {dt}, 16, {dt}""")
        self.km0()
        self.stamp('p0'); self.wait_vm('par'); self.stamp('par')
        if landed: landed()
        un = lambda d, src, u: p(f'v_lshlrev_b32 {d}, 16, {src}' if u == 0 else f'v_and_b32 {d}, 0xffff0000, {src}')
        PR = self.PR
        for u in range(2):
            X, Y = self.KX[u], self.KY[u]
            un(X[0], PR[2], u); un(X[1], PR[3], u); un(Y[0], PR[4], u); un(Y[1], PR[5], u)
            p(f'v_pk_mul_f32 {X}, {X}, {Reg("v", dt.b, 1)}' if False else f'v_mul_f32 {X[0]}, {dt}, {X[0]}\nv_mul_f32 {X[1]}, {dt}, {X[1]}')
        self.cmul([(self.KY[u], self.KY[u], self.KX[u]) for u in range(2)])
        for u in range(2):
            a, b = z[2*u], z[2*u+1]
            un(a, PR[0], u); un(b, PR[1], u)
            p(f"""v_mul_f32 {a}, {dt}, {a}
            v_mul_f32 {b}, {dt}, {b}
            v_mul_f32 {a}, {fl(LOG2E)}, {a}
            v_mul_f32 {b}, {fl(1/(2*math.pi))}, {b}""")
        for n in (1, 8, 128):
            for u in range(2):
                a, b = z[2*u], z[2*u+1]; E = self.E[n][u]
                if n == 1: p(f'v_exp_f32 {t0}, {a}\nv_fract_f32 {t1}, {b}')
                else: p(f'v_mul_f32 {t0}, {fl(n)}, {a}\nv_mul_f32 {t1}, {fl(n)}, {b}\nv_exp_f32 {t0}, {t0}\nv_fract_f32 {t1}, {t1}')
                p(f"""v_cos_f32 {E[0]}, {t1}
                v_sin_f32 {E[1]}, {t1}
                v_mul_f32 {E[0]}, {t0}, {E[0]}
                v_mul_f32 {E[1]}, {t0}, {E[1]}""")
        V.put(dt, t0, t1, t2, z, self.PR)
    def zero_fill(self, early):
        z = self.V.get(4); t = self.t
        for k in range(4): self.p(f'v_mov_b32 {z[k]}, 0')
        if early: self.p(f"ds_write_b128 {t['bE']}, {z}")
        else: self.p(f"ds_write_b128 {t['bE']}, {z} offset:{UTO-512}\nds_write_b128 {t['bL16']}, {z} offset:{SMO}\nds_write_b128 {t['bL16']}, {z} offset:{SMO+1024}")
        self.V.put(z)
    def kgen_units(self):
        p, A, V = self.P, self.A, self.V; X, Y, E = self.KX, self.KY, self.E; U = []
        aKR = self.t['aKR']
        def first():
            for u in range(2):
                p(f'v_mov_b32 {self.KO[u]}, 0x3f80'); self.kq.append(f'ds_write_addtid_b32 {self.KO[u]} offset:{KB+KT+256*u}')
            self.krow(1, E[8], True)
        U.append(first)
        def unit(dst, src, e, row, neg=False):
            def f():
                self.cmul([(dst[u], src[u], e[u]) for u in range(2)])
                if row is not None: self.krow(row, dst, neg)
            U.append(f)
        for b in range(2, 16): unit(X, E[8] if b == 2 else X, E[8], b, True)
        U.append(lambda: self.krow(16, Y))
        for a in range(2):
            if a: unit(Y, Y, E[128], 24)
            for j in range(1, 8): unit(X, Y if j == 1 else X, E[1], 16+8*a+j)
        def reads1():
            self.kflush()
            self.BF, self.AF = self.X(32), [self.X(32), self.X(32), self.X(32)]
            for k in range(8):
                p(f'ds_read_b128 {self.BF[4*k:4*k+4]}, {aKR} offset:{KT+64*k}')
                p(f'ds_read_b128 {self.AF[0][4*k:4*k+4]}, {aKR} offset:{KT+16*528+64*k}')
        U.append(reads1)
        unit(E[1], E[1], E[1], None); unit(E[8], E[1], E[1], None)
        for a in range(2):
            unit(Y, Y, E[128], 4*a)
            for j in range(1, 4): unit(X, Y if j == 1 else X, E[1], 4*a+j)
        for a in range(4):
            unit(Y, Y, E[128], 8+2*a); unit(X, Y, E[8], 9+2*a)
        for a in range(9): unit(Y, Y, E[128], 16+a)
        def reads2():
            self.kflush()
            for k in range(1, 3):
                for i in range(8): p(f'ds_read_b128 {self.AF[k][4*i:4*i+4]}, {aKR} offset:{KT+16*528*(k-1)+64*i}')
            V.put(*E[1], *E[8], *E[128], *X, *Y, self.CT, self.KO); self.free('aKR'); self.S.put(self.sKM)
        U.append(reads2)
        return U
    def kgen_mfma(self, waits):
        p, V, t = self.P, self.V, self.t
        KD = V.get(12); d = V.get(); O = V.get(6)
        for k in range(3):
            p(f's_waitcnt lgkmcnt({waits[k]})')
            for i in range(8):
                p(f'v_mfma_f32_16x16x32_bf16 {KD[4*k:4*k+4]}, {self.AF[k][4*i:4*i+4]}, {self.BF[4*i:4*i+4]}, {KD[4*k:4*k+4] if i else 0}')
            if k == 0: p(f'v_cmp_eq_u32 vcc, 0, {self.L}\nv_mov_b32 {d}, {self.sDS}\nv_cndmask_b32 {d}, 0, {d}, vcc')
            if k == 1:
                p(f'v_add_f32 {KD[0]}, {KD[0]}, {d}')
                for i in range(2): p(f'v_cvt_pk_bf16_f32 {O[i]}, {KD[2*i]}, {KD[2*i+1]}')
            if k == 2:
                p(f'ds_write_b64 {t["aK0"]}, {O[0:2]} offset:{KT}')
                for i in range(2, 4): p(f'v_cvt_pk_bf16_f32 {O[i]}, {KD[2*i]}, {KD[2*i+1]}')
                for rho in range(4): p(f'ds_write_b16{"_d16_hi" if rho & 1 else ""} {t[f"aK1{rho}"]}, {O[2+(rho>>1)]}')
        self.putX(self.BF, *self.AF)
        R = V.get(6)
        p(f"""ds_read_b64 {R[0:2]}, {t['aE1r']} offset:{SMO+KC1}
        ds_read_b32 {R[2]}, {t['aE1r']} offset:{SMO+KC1+8}
        ds_read_b32 {R[4]}, {t['b0']} offset:{SMO+KC1+252}
        ds_read_b32 {R[5]}, {t['b0']} offset:{SMO+KC1+256}""")
        for i in range(4, 6): p(f'v_cvt_pk_bf16_f32 {O[i]}, {KD[2*i]}, {KD[2*i+1]}')
        for cp in range(2):
            for rho in range(4): p(f'ds_write_b16{"_d16_hi" if rho & 1 else ""} {t["aK2z" if rho else "aK20"]}, {O[4+(rho>>1)]} offset:{CPB*cp + (48-16*rho if rho else 0)}')
        V.put(KD, d, O); self.KR = R
        self.free('aK0', 'aK10', 'aK11', 'aK12', 'aK13', 'aK20', 'aK2z', 'aE1r')
    def kexpand(self):
        p, V, S, A, t = self.P, self.V, self.S, self.A, self.t
        sLO = S.get(); R = self.KR; O = V.get(12); Q = V.get(6); z = V.get(4); self.PA = V.get(4); PM = self.PM
        p(f"""s_mov_b32 {sLO}, 0x01000100
        ds_read_u16 {self.PA[0]}, {t['b0']} offset:{SMO+KE2+64}
        s_waitcnt lgkmcnt(11)
        v_perm_b32 {O[0]}, {R[0]}, {R[0]}, {sLO}
        v_alignbit_b32 {O[1]}, {R[1]}, {R[0]}, 16
        v_perm_b32 {O[2]}, {R[1]}, {R[1]}, {sLO}
        v_alignbit_b32 {O[3]}, {R[2]}, {R[1]}, 16
        ds_write_b128 {t['bE']}, {O[0:4]} offset:{KT+512}
        ds_read_b64 {Q[0:2]}, {t['bL16']} offset:{KT-8}
        ds_read_b128 {Q[2:6]}, {t['bL16']} offset:{KT}
        s_waitcnt lgkmcnt(12)""")
        for k in range(3): p(f'v_perm_b32 {O[4+k]}, {R[5]}, {R[4]}, {t[f"sel{k}"]}')
        p(f'v_mov_b32 {O[7]}, 0')
        for k in range(4): p(f'v_mov_b32 {z[k]}, 0')
        p(f"ds_write_b128 {t['b16']}, {O[4:8]} offset:{KT+4096}\nds_write_b128 {t['aPad']}, {z} offset:{S5-32}")
        self.K2, self.K3, self.KA = self.X(24), self.X(16), self.X(68)
        for dl in range(3, 9):
            for h in range(2): p(f'ds_read2_b32 {self.K2[4*(dl-3)+2*h:4*(dl-3)+2*h+2]}, {t["aR2"]} offset0:{8*(8-dl)+2*h} offset1:{8*(8-dl)+2*h+1}')
        p('s_waitcnt lgkmcnt(14)')
        p(f'v_lshlrev_b32 {self.PA[0]}, 16, {self.PA[0]}')
        w = t['aE2w']
        p(f'ds_write_b128 {w}, {Q[2:6]} offset:{KT}')
        for k in range(4): p(f'v_alignbit_b32 {O[k]}, {Q[k+2]}, {Q[k+1]}, 16')
        p(f'ds_write_b128 {w}, {O[0:4]} offset:{KT+64}')
        for k in range(4): p(f'v_mov_b32 {O[4+k]}, {Q[k+1]}')
        p(f'ds_write_b128 {w}, {O[4:8]} offset:{KT+128}')
        for k in range(4): p(f'v_alignbit_b32 {O[8+k]}, {Q[k+1]}, {Q[k]}, 16')
        p(f'ds_write_b128 {w}, {O[8:12]} offset:{KT+192}')
        for k in range(8): p(f'v_mul_f32 {PM[k]}, {self.PA[0]}, {PM[k]}')
        for k in range(4): p(f'v_cvt_pk_bf16_f32 {self.PA[k]}, {PM[2*k]}, {PM[2*k+1]}')
        for dl in range(4, 8):
            for h in range(2): p(f'ds_read2_b32 {self.K3[4*(dl-4)+2*h:4*(dl-4)+2*h+2]}, {t["aR3"]} offset0:{8*(7-dl)+2*h} offset1:{8*(7-dl)+2*h+1}')
        for e in range(17):
            for k in range(2): p(f'ds_read_b64_tr_b16 {self.KA[4*e+2*k:4*e+2*k+2]}, {t[f"aKA{k}"]} offset:{256*e}')
        V.put(R, O, Q, z, PM); S.put(sLO)
        self.free('bE', 'bL16', 'b0', 'b16', 'aE2w', 'aPad', 'sel0', 'sel1', 'sel2', 'aKA0', 'aKA1', 'aR2', 'aR3')
    def band_loads(self):
        self.BD = self.X(16)
        o = self.S.get(); self.p(f's_mov_b32 {o}, {self.toff["BAND"]}')
        return self.tloads([self.BD[4*k:4*k+4] for k in range(4)], o, 'band')

    def conv_plan(self):
        l = []
        s2 = lambda j: [('r2', c, ('S2', j), ('K2', 2*c-j)) for c in range(2, 8) if 2*c-8 <= j <= 2*c-3]
        s3 = lambda j: [('r3', c, ('S3', j), ('K3', c-j)) for c in range(4, 8) if j <= c-4]
        later = {26: s2(4) + s3(0), 28: s2(5) + s3(1), 30: s3(2) + s3(3), 36: s2(6), 38: s2(7), 44: s2(8), 46: s2(9), 48: s2(10), 50: s2(11)}
        for f in range(-7, 57):
            if f % 8 == 0 and 0 <= f <= 40:
                for k in range(4 if f <= 24 else 2): l.append(('band', f//8, ('BD', k), ('B', f)))
            if f in (0, 8, 16, 24): l.append(('patch', 4 + f//8, ('PA', 0), ('B', f)))
            for c in range(8):
                e = 8*c - f
                if 0 <= e <= 16: l.append(('dense', c, ('KA', e), ('B', f)))
            if f in (18, 20, 22, 23): l += s2({18: 0, 20: 1, 22: 2, 23: 3}[f])
            l += later.get(f, [])
            if f == 24: l.append(('mark', 'half0'))
        return l
    def conv_setup(self):
        V, A = self.V, self.A
        self.ACC = V.get(32); self.BT = V.get(8); self.BO = V.get(4)
        self.ring = {'B': [self.X(4) for _ in range(7)], 'S': [self.X(4) for _ in range(3)]}
        self.plan = self.conv_plan(); self.pc = 0; self.dsq = []; self.started = set()
        self.slot = {}; self.issued = set(); self.written = set(); self.post = []; self.nband = 0
        self.lastuse = {}; self.order = []
        for i, x in enumerate(self.plan):
            if x[0] == 'mark': continue
            for k in x[2:4]:
                if k[0] in ('B', 'S2', 'S3'):
                    if k not in self.lastuse: self.order.append(k)
                    self.lastuse[k] = i
        self.TGY = V.get(2); t = self.t; t['odd'] = V.get()
        self.p(f'v_and_b32 {t["odd"]}, 1, {self.L}\nv_sub_u32 {t["odd"]}, 0, {t["odd"]}')
        for d in range(2):
            self.p(f'v_mov_b32 {self.TGY[d]}, {self.TG[d]}\nv_mov_b32 {self.BO[0]}, {self.TG[2+d]}\nv_bfi_b32 {self.TGY[d]}, {t["odd"]}, {self.BO[0]}, {self.TGY[d]}')
        self.free('odd')
    def conv_reg(self, k):
        if k[0] == 'KA': return self.KA[4*k[1]:4*k[1]+4]
        if k[0] == 'K2': return self.K2[4*(k[1]-3):4*(k[1]-3)+4]
        if k[0] == 'K3': return self.K3[4*(k[1]-4):4*(k[1]-4)+4]
        if k[0] == 'BD': return self.BD[4*k[1]:4*k[1]+4]
        if k[0] == 'PA': return self.PA
        return self.slot[k]
    def conv_try_read(self):
        if not self.order: return 0
        k = self.order[0]; pool = self.ring['B' if k[0] == 'B' else 'S']; t = self.t
        if not pool: return 0
        if k[0] == 'S2' and not all((ty, c) in self.written for ty in (0, 1) for c in range((128*k[1]+127)//256 + 1)): return 0
        if k[0] == 'S3' and not all((ty, k[1]) in self.written for ty in (2, 3)): return 0
        R = pool.pop(0); self.slot[k] = R; self.order.pop(0)
        if k[0] == 'B':
            self.p(f'ds_read_b128 {R}, {t["aUB"]} offset:{UTO-32+64*k[1]}'); self.dsq.append(k); return 1
        for h in range(2):
            self.p(f'ds_read_b64_tr_b16 {R[2*h:2*h+2]}, {t[("aS2" if k[0] == "S2" else "aS3") + str(h)]} offset:{(272 if k[0] == "S2" else 544)*k[1]}')
            self.dsq.append(k)
        return 2
    def conv_prime(self, n=5):
        for _ in range(n): self.conv_try_read()
    def conv_post(self, force=False):
        if not self.post or (self.post[0][0] > self.pc and not force): return 0
        _, x, key = self.post.pop(0)
        self.p(x)
        if key: self.dsq.append(None); self.written.add(key)
        return 1
    def conv_run(self, until=None, count=None, side=None):
        p = self.P; side = list(side or []); n = 0
        end = len(self.plan) if until is None and count is None else None
        if until: end = self.plan.index(('mark', until))
        if count: end = min(len(self.plan), self.pc + count)
        total = end - self.pc; every = max(1, total//(len(side)+1)) if side else 0
        while self.pc < end:
            x = self.plan[self.pc]
            if x[0] == 'mark': self.pc += 1; continue
            kind, c, ka, kbk = x
            for k in (ka, kbk):
                while k[0] in ('B', 'S2', 'S3') and k not in self.slot:
                    if not self.conv_try_read(): assert self.conv_post(True), (x, self.order[:3])
            need = [j for j, key in enumerate(self.dsq) if key in (ka, kbk)]
            if need:
                left = min(15, len(self.dsq) - 1 - max(need))
                p(f's_waitcnt lgkmcnt({left})'); self.dsq = self.dsq[len(self.dsq)-left:] if left else []
            if kind == 'band':
                while len(self.post) > 3: self.conv_post(True)
                b = self.nband & 1; self.nband += 1; D = self.BT[4*b:4*b+4]; o = self.BO[2*b:2*b+2]
                p(f'v_mfma_f32_16x16x32_bf16 {D}, {self.conv_reg(ka)}, {self.conv_reg(kbk)}, 0')
                self.post += [(self.pc+3, f'v_cvt_pk_bf16_f32 {o[0]}, {D[0]}, {D[1]}', None), (self.pc+3, f'v_cvt_pk_bf16_f32 {o[1]}, {D[2]}, {D[3]}', None),
                              (self.pc+4, f'ds_write_b64 {self.t["aSW"]}, {o} offset:{(S5, S3, S9, S7)[ka[1]]+544*c}', (ka[1], c))]
            else:
                acc = self.ACC[4*c:4*c+4]
                p(f'v_mfma_f32_16x16x32_bf16 {acc}, {self.conv_reg(ka)}, {self.conv_reg(kbk)}, {acc if c in self.started else 0}')
                self.started.add(c)
            for k in (ka, kbk):
                if self.lastuse.get(k) == self.pc: self.ring['B' if k[0] == 'B' else 'S'].append(self.slot[k])
            self.pc += 1; n += 1
            if side and n % every == 0: side.pop(0)()
            elif self.conv_post(): self.conv_post()
            else: self.conv_try_read()
        for f in side: f()
    def ds_other(self, n): self.dsq += [None]*n
    def y_stage(self, half):
        p, V = self.P, self.V; O = V.get(8)
        for i in range(4):
            c = 4*half+i
            p(f'v_cvt_pk_bf16_f32 {O[2*i]}, {self.ACC[4*c]}, {self.ACC[4*c+1]}\nv_cvt_pk_bf16_f32 {O[2*i+1]}, {self.ACC[4*c+2]}, {self.ACC[4*c+3]}')
        for i in range(4): p(f'ds_write_b64 {self.t["aYW"]}, {O[2*i:2*i+2]} offset:{YO+512*(4*half+i)}')
        V.put(O); self.ds_other(4)
    def y_read(self, half):
        self.YR = self.V.get(8)
        for k in range(4): self.p(f'ds_read_b64_tr_b16 {self.YR[2*k:2*k+2]}, {self.t["aYR"]} offset:{YO+2048*half+32*k}')
        self.ds_other(4)
    def y_stores(self, half):
        YR = self.YR
        def mk(k):
            def f():
                for d in range(2): self.p(f'v_bfi_b32 {YR[2*k+d]}, {self.MK}, {YR[2*k+d]}, {self.TGY[d]}')
                self.vm(f'buffer_store_dwordx2 {YR[2*k:2*k+2]}, {self.t["aYO"]}, {self.rW}, {self.so["tyst"][half]} offen offset:{128*k} sc1', 'yst')
                if k == 3: self.V.put(YR)
            return f
        return [mk(k) for k in range(4)]
    def ty_issue(self, half):
        if not hasattr(self, 'YL'): self.YL = [self.V.get(8), self.V.get(8)]; self.ldy = {}
        Y = self.YL[half]; o = [self.splus(self.so['tyld'], (half << 21) + 4096*i) for i in range(2)]
        self.ldy[half] = [f'buffer_load_dwordx4 {Y[4*i:4*i+4]}, {self.t["aGL"]}, {self.rW}, {o[i]} offen sc1' for i in range(2)]
        for x in self.ldy[half]: self.vm(x, f'tyld{half}')
    def ty_consume(self, half):
        p, V, t = self.P, self.V, self.t; Y = self.YL[half]
        acc, tt = V.get(), V.get(2)
        self.poll_chunks(Y, self.ldy[half], self.TU, self.after(f'tyld{half}'), acc, tt)
        if half == 0: self.epoch_advance(self.sTau, self.sE2, lambda r: f's_lshl_b32 {self.st0}, {self.sGam}, 7\ns_add_u32 {self.st0}, {self.st0}, 256\nv_mov_b32 {r}, {self.st0}', tt)
        for i in range(2): p(f'ds_write_b128 {t[f"aGW{i}"]}, {Y[4*i:4*i+4]} offset:{GY+1024*i}')
        for k in range(2): p(f'ds_read2_b64 {Y[4*k:4*k+4]}, {t[f"aGR{k}"]} offset0:0 offset1:16')
        for k in range(2):
            p(f's_add_u32 {self.st0}, {self.so["oY"]}, {(half << 22) + 32768*k}\ns_waitcnt lgkmcnt({1-k})')
            self.vm(f'buffer_store_dwordx4 {Y[4*k:4*k+4]}, {t["aGO"]}, {self.rO}, {self.st0} offen {self.flag("out", "sc1")}', 'yout')
        V.put(acc, tt)

    def finish(self):
        p, V = self.P, self.V
        if self.stamps:
            p('s_waitcnt vmcnt(0)')
            self.stamp('end'); c1 = self.S.get(2); p(f's_memtime {c1}\ns_waitcnt lgkmcnt(0)')
            p(f's_sub_u32 {c1[0]}, {c1[0]}, {self.clk0[0]}'); self.stn.append(('cyc', c1))
            d = V.get(); a = V.get()
            p(f's_lshl_b32 {self.st0}, s2, 2\ns_add_u32 {self.st0}, {self.st0}, {self.sV}\ns_lshl_b32 {self.st0}, {self.st0}, 7\ns_add_u32 {self.st0}, {self.st0}, {DBG + (131072 if self.rn == "B" else 0)}')
            self.names = getattr(self, 'names', {}); self.names[self.rn] = [n for n, _ in self.stn]
            p(f'v_mov_b32 {a}, 0\ns_mov_b64 exec, 1')
            for i, (n, r) in enumerate(self.stn):
                p(f'v_mov_b32 {d}, {r[0]}\nbuffer_store_dword {d}, {a}, {self.rW}, {self.st0} offen offset:{4*i}\ns_nop 1')
            amp = [k for k in self.o if k.startswith('amp=')]
            if amp and self.rn == 'A':
                _, nm, wg = amp[0].split('=')
                r = dict(self.stn)[nm]; e = dict(self.stn)['end']; t = self.sa
                p(f'''s_lshl_b32 {self.st0}, s2, 2
                s_add_u32 {self.st0}, {self.st0}, {self.sV}
                s_cmp_lg_u32 {self.st0}, {4*int(wg)}
                s_cbranch_scc1 L_end
                s_sub_u32 {self.st0}, {r[0]}, {self.stn[0][1][0]}
                s_min_u32 {self.st0}, {self.st0}, 10000
                s_mul_i32 {self.st0}, {self.st0}, 20
                L_amp:
                s_sleep 8
                s_memrealtime {t}
                s_waitcnt lgkmcnt(0)
                s_sub_u32 {self.st1}, {t[0]}, {e[0]}
                s_cmp_lt_u32 {self.st1}, {self.st0}
                s_cbranch_scc1 L_amp''')
        p('s_endpgm' if self.rn == 'A' else 'L_end:\ns_endpgm')

    def emit(self):
        pad = 0; errs = []
        for q in self.mains + self.ool: pad += q.pad(); errs += q.verify()
        for e in errs: print('VERIFY', e, file=sys.stderr)
        hdr = open('cdna_kernels/%s.s.ref' % NAME).read().split('; Override launch')[0]
        nv = NV; na = NA
        s = hdr + (('; cyc\n' if self.o.get('cyc') else '') + '; stamps: ' + ' '.join(self.names['A']) + '\n; stampsB: ' + ' '.join(self.names['B']) + '\n' if self.stamps else '')
        s += f'; @launch grid=(512,1,1) block=(256,1,1) lds={LDS_BYTES}\n'
        s += f'.amdgcn_target "amdgcn-amd-amdhsa--gfx950"\n.text\n.globl {NAME}_kernel\n.p2align 8\n.type {NAME}_kernel,@function\n{NAME}_kernel:\n'
        s += ''.join(q.text() for q in self.mains + self.ool) + 'L_codeend:\n'
        s += '; constant tables: DFT fragments, twiddles, window masks, per-lane addresses\n.p2align 8\n.type L_tbl,@object\nL_tbl:\n'
        tb = self.table
        s += ''.join('.long ' + ','.join(hex(int(x)) for x in tb[i:i+16]) + '\n' for i in range(0, len(tb), 16)) + 'L_tblend:\n.size L_tbl, .-L_tbl\n'
        s += f'''.section .rodata,"a"
.p2align 6
.amdhsa_kernel {NAME}_kernel
  .amdhsa_next_free_vgpr {nv+na}
  .amdhsa_next_free_sgpr 102
  .amdhsa_accum_offset {nv}
  .amdhsa_group_segment_fixed_size 0
  .amdhsa_kernarg_size 120
  .amdhsa_user_sgpr_count 2
  .amdhsa_user_sgpr_kernarg_segment_ptr 1
  .amdhsa_system_sgpr_workgroup_id_x 1
  .amdhsa_float_denorm_mode_32 3
.end_amdhsa_kernel
'''
        n = [sum(1 for i in q.ins if i.states) for q in self.mains]
        print(f'instrs {n} pad {pad} regs {[(r, v.hi, a.hi, s_.hi) for r, v, a, s_ in self.roles]} errs {len(errs)} table {4*len(tb)} lds {LDS_BYTES}', file=sys.stderr)
        return s

def interleave(units, side, g):
    side = list(side); every = max(1, len(units)//(len(side)+1)) if side else 0
    for i, f in enumerate(units):
        f()
        if side and (i+1) % every == 0: side.pop(0)()
    for f in side: f()

def build_v7(stamps=False, opts=None):
    g = Gen(stamps, opts); p = g.P
    geti = lambda k, d: int(g.flag(k, d))
    plain = g.flag('plain', '23')
    g.role('A')
    g.prologue()
    for f in g.group_loads('E'): f()
    g.early_values()
    g.dft_consts()
    g.stamp('b')
    tw = g.flag('tw')
    if tw:
        wl = g.w_rows()
        if tw == '1':
            for f in wl: f()
            wl = []
    else: g.w_setup(); wl = []
    g.offsets1(); g.radix4_fwd()
    p('s_waitcnt lgkmcnt(0)'); g.TG, g.sN = g.tags(g.sE); g.mask()
    g.stamp('cons')
    g.plain = '1' in plain
    g.phase1(wl)
    if tw: g.wait_vm('W'); g.tw_produce(); g.stamp('twst')
    g.loads_wx()
    g.TU, n2 = g.tags(g.sE2); g.S.put(n2)
    g.offsets2(); g.S.put(Reg('s', 4, 28)); g.late_offsets()
    g.release_pending(); g.values_m()
    g.stamp('vm')
    for f in g.wx_steps(): f()
    g.free('wxo', 'r4s', 'odd')
    g.wait_vm('t1st'); g.stamp('ack')
    if tw:
        g.free('aWR')
        p(f's_sleep {geti("z1", 8)}')
        g.t1_issue(); g.stamp('t1ld')
        p(f's_sleep {geti("zw", 4)}')
        g.tw_issue(); g.V.put(g.WXV, g.PF); g.tw_consume()
    else:
        G = g.w_loads(); ng = geti('ng', 4)
        for i, f in enumerate(G[:ng]):
            f()
            if not g.flag('nopace'): g.wait_vm('W')
        if geti('z1', 0): p(f's_sleep {geti("z1", 0)}')
        g.t1_issue()
        g.stamp('t1ld')
        for f in G[ng:]: f()
        g.wait_vm('W'); g.V.put(g.WXV, g.PF); g.wstage()
        p('s_waitcnt lgkmcnt(0)\ns_barrier')
        g.m_read(); p('s_waitcnt lgkmcnt(0)')
    g.stamp('twok')
    g.mpre()
    g.stamp('mpre')
    g.plain = '2' in plain
    g.phase2()
    g.radix4_inv(); g.release_pending()
    g.values_l()
    g.wait_vm('t2st')
    p(f's_sleep {geti("z2", 4)}')
    g.t2_issue()
    g.stamp('t2ld')
    g.plain = '3' in plain
    g.phase3(None if geti('zy', 0) else (lambda: g.ty_issue(0)))
    if geti('zy', 0): p(f's_sleep {geti("zy", 0)}'); g.ty_issue(0)
    g.ty_issue(1)
    g.ty_consume(0)
    g.stamp('ty0')
    g.ty_consume(1)
    g.finish()
    g.role('B'); g.plain = False
    g.prologue()
    order = g.flag('bo_', 'pw')
    for ch in order:
        if ch == 'p' and not tw: g.w_prefetch()
        if ch == 'v': g.values_b(); g.zero_fill(True); g.offsets_b()
        if ch == 'w': g.values_b((geti('nu', 100), g.loads_u())); g.zero_fill(True); g.offsets_b()
        if ch == 'u':
            for f in g.loads_u(): f()
        if ch == 'z': p(f's_sleep {geti("zu", 8)}')
    p('s_waitcnt lgkmcnt(0)'); g.S.put(Reg('s', 4, 28)); g.TG, g.sN = g.tags(g.sE2); g.mask()
    g.kgen_setup()
    g.stamp('ks')
    U = g.kgen_units(); na = geti('na', 24)
    for f in U[:na]: f()
    g.stamp('u24'); g.kflush()
    p('s_waitcnt vmcnt(0)'); g.stamp('gK')
    if geti('zs', 0): p(f's_sleep {geti("zs", 0)}')
    g.tu_produce()
    g.stamp('tust')
    for f in U[na:-1]: f()
    g.kflush(); g.release_pending()
    g.V.put(g.PF, *g.junk)
    if not tw: g.V.put(g.PW)
    g.zero_fill(False); U[-1]()
    def tui():
        if geti('zt', 0): p(f's_sleep {geti("zt", 0)}')
        g.tu_issue()
    if geti('tp', 2) == 0: tui()
    g.stamp('ku')
    g.kgen_mfma((15, 8, 0)); g.stamp('kmf')
    if geti('tp', 2) == 1: tui()
    g.kexpand()
    if geti('tp', 2) == 2: tui()
    p('s_waitcnt lgkmcnt(0)\ns_barrier')
    g.stamp('kdone')
    g.tu_consume()
    g.conv_setup()
    p('s_waitcnt lgkmcnt(0)\ns_barrier')
    g.stamp('c3')
    g.conv_prime()
    g.conv_run(until='half0')
    g.y_stage(0)
    g.conv_run(count=geti('c1', 14))
    wn = lambda: min(15, len(g.dsq) - 1 - max(i for i, k in enumerate(g.dsq) if k is None)) if None in g.dsq else 15
    p(f's_waitcnt lgkmcnt({wn()})\ns_barrier')
    g.y_read(0)
    g.conv_run(count=geti('c2', 14))
    p(f's_waitcnt lgkmcnt({wn()})')
    g.stamp('y0')
    g.conv_run(side=g.y_stores(0))
    g.y_stage(1)
    p('s_waitcnt lgkmcnt(0)\ns_barrier')
    g.y_read(1); p('s_waitcnt lgkmcnt(0)')
    for f in g.y_stores(1): f()
    g.stamp('cv')
    g.finish()
    return g

if __name__ == '__main__':
    g = globals()['build_' + sys.argv[2]]('-s' in sys.argv, {k: True for k in sys.argv[3:]})
    open(sys.argv[1], 'w').write(g.emit())
```

```python
import sys, math, struct, re
import numpy as np
from dsl import *

NAME = "concat_heads__spectral_gfnet__ssm_conv_s4__prompt"
def fl(x): return hex(struct.unpack('<I', struct.pack('<f', x))[0])
def fbits(x): return np.asarray(x, np.float32).view(np.uint32)
def bf(x):
    u = fbits(x).astype(np.uint64); return ((u + 0x7fff + ((u >> 16) & 1)) >> 16).astype(np.uint32) & 0xffff
def pk(a, b): return bf(a) | (bf(b) << 16)

T1, T2, TU, TY, T1X, WX, EOFF, DBG = 0, 4 << 20, 8 << 20, 12 << 20, 20 << 20, (20 << 20) + (64 << 10), (20 << 20) + (128 << 10), 24 << 20
TW = 16 << 20
WS = 0
A0, PL = 16384, 4608
XI, XS1 = A0, 4112
US = A0 + 4*PL; EX = US
GY = US + 16384
KB, KW = 0, 20384
KT = 256
S5, S3, S9, S7 = KT + 4384, KT + 7680, KT + 10976, KT + 13184
UTO = KT + 15360 + 512
SMO = UTO + 2048
YO = KT
LDS_BYTES = 81920
assert 4*KW <= LDS_BYTES and UTO + 4096 <= KW and KT + 16896 <= SMO and GY + 8192 <= LDS_BYTES and KW % 128 == 32
KO2, KE3, KO3, KC1, KE2, DUMP, CPB = 0, 256, 448, 1024, 1296, 1552, 386
NV, NA = 208, 48
SPIN_MAX = 4000
lane = np.arange(64)
L15, GK, H = lane & 15, lane >> 4, lane >> 5
def PI(i): return (i & 0x13) | ((i >> 2 & 1) << 3) | ((i >> 3 & 1) << 2)
kb = lambda v: KB + KW*v
ut = lambda v: kb(v) + UTO
sm = lambda v: kb(v) + SMO

def cs(rev): return np.cos(2*np.pi*rev), np.sin(2*np.pi*rev)

def shared_tables():
    q = []
    k = PI(lane & 31)
    ang = [[k*(8*f + 4*H + jj) for jj in range(4)] for f in range(4)]
    for f in range(4): q.append([pk(*cs(a/32)) for a in ang[f]])
    for f in range(4): q.append([pk(-cs(a/32)[1], cs(a/32)[0]) for a in ang[f]])
    for f in range(4): q.append([fbits(cs(a/1024)[0]) for a in ang[f]])
    for f in range(4): q.append([fbits(cs(a/1024)[1]) for a in ang[f]])
    a16 = [L15*(4*GK + jj) for jj in range(4)]
    q.append([pk(*cs(a/16)) for a in a16]); q.append([pk(-cs(a/16)[1], cs(a/16)[0]) for a in a16])
    q.append([fbits(cs(a/256)[0]) for a in a16]); q.append([fbits(cs(a/256)[1]) for a in a16])
    return q
def band_tables():
    q = []
    for lo, hi in ((-6, -2), (-5, -3), (-8, 0), (-7, -1)):
        one = lambda s: ((8*GK + s - 16 - L15 >= lo) & (8*GK + s - 16 - L15 <= hi))*1.0
        q.append([pk(one(2*d), one(2*d+1)) for d in range(4)])
    return q
def cm_tables():
    q = []
    for r in range(4):
        th = [(r + 4*L15 + 256*GK + 64*rho)/2048 for rho in range(4)]
        q.append([fbits(cs(t)[1]) for t in th]); q.append([fbits(cs(t)[0]) for t in th])
    return q

def wave_values(v):
    d = {}
    r4, cc = lane >> 2 & 3, lane & 3
    d['aXR'] = A0 + PL*v + (r4 & 1)*2176 + (4*H + (r4 >> 1))*64 + 32*(GK & 1) + 8*cc
    d['aZW'] = A0 + PL*v + (lane & 31)*144 + 32*H
    for t in range(4):
        ql = 128*v + 32*t + 2*L15 + (GK & 1)
        q = np.where(H == 0, ql, np.where(ql == 0, 512, 1024 - ql))
        d[f'aZR{t}'] = A0 + PI(q >> 5)*144 + (q & 31)*4
    d['aZX'] = A0 + np.where(H == 0, 16*144, 0)
    d['aC'] = (64*GK + r4)*16384 + cc*16
    d['uld'] = (lane >> 3)*2048 + (lane & 7)*16
    sg = 1 - 2*(lane & 1)
    d['wxs'] = sg; d['wxa'] = sg*(GK + 1024*(lane >> 2 & 1)); d['wxc'] = (lane >> 3 & 1)*1024
    d['wxo'] = r4*8 + (lane & 1)*4
    d['pwv'] = (lane >> 3)*4104 + (lane & 7)*73
    d['wgv'] = (64*GK + L15)*4104
    d['aTR'] = US + 4096*v + r4*128 + GK*32 + cc*8
    d['aTO'] = (lane >> 2)*16384 + cc*16
    d['aKR'] = kb(v) + KT + L15*528 + GK*16
    d['aZ0'] = np.where(lane < 32, kb(v) + 16*L15, ut(v) - 512 + 16*(lane & 31))
    d['r4k'] = fbits(r4/1024); d['r4b'] = fbits((lane & 1)*0.25); d['r4s'] = (lane >> 1 & 1) << 31
    d['r4m1'] = np.where(GK == (lane & 2), 0xffffffff, 0); d['r4m2'] = np.where(GK == (lane & 2) + 1, 0xffffffff, 0)
    m = 2*(lane >> 3 & 1) + (lane >> 1 & 1)
    d['r4ik'] = fbits(m*0.25); d['r4ib'] = fbits((lane & 1)*-0.25)
    d['r4l'] = np.where(GK == (lane >> 2 & 1), 0xffffffff, 0); d['r4h'] = np.where(GK == (lane >> 2 & 1) + 2, 0xffffffff, 0)
    d['aWR'] = WS + 4096*v + 4*lane
    d['aXW'] = XI + cc*XS1 + (lane >> 2)*64 + 16*(v ^ (2*(GK & 1)))
    d['aXI'] = XI + v*XS1 + L15*64 + 16*(GK ^ (2*(L15 >> 2 & 1)))
    d['aEW'] = EX + GK*4096 + L15*64 + ((v + (L15 >> 1)) & 3)*16
    d['aER'] = EX + 4096*v + 16*lane
    d['aT2s'] = (lane >> 2)*64 + ((lane - (lane >> 3)) & 3)*16
    d['aUW'] = ut(cc) + (64*v + (lane >> 2))*16
    d['aK0'] = kb(v) + KT + 256*H + 16*L15 + 8*(GK & 1)
    for rho in range(4):
        mu = 64 + 16*(2*(GK - 2) + (rho >> 1)) + L15
        hi = np.where(rho & 1, KO2 + 2*(159 - mu), np.where(mu == 64, KC1 + 256, KE2 + 2*(160 - mu)))
        d[f'aK1{rho}'] = sm(v) + np.where(GK < 2, KC1 + 2*(64*GK + 4*L15 + rho), hi)
        a = 4*GK + rho; mp = 64 + 8*a + (L15 >> 1)
        adr = np.where(L15 & 1, KO3 + 2*(127 - mp), np.where(mp == 64, KE2 + 2*(160 - 128), KE3 + 2*(128 - mp)))
        ok = (a < 8) | ((a == 8) & (L15 == 0))
        d[f'aK2{rho}'] = sm(v) + np.where(ok, adr, DUMP)
    d['aSZ'] = sm(v) + 16*lane
    d['aE1r'] = sm(v) + KC1 + 8*(lane & 31)
    d['aE1w'] = kb(v) + KT + 512 + 16*(lane & 31)
    d['aE2r'] = kb(v) + KT + 16*lane
    d['aE2w'] = kb(v) + KT + (lane >> 2)*256 + cc*16
    d['aB16'] = kb(v) + KT + 4096 + r4*64 + cc*16
    d['aPad'] = kb(v) + np.array([S5, S3, S9, S7])[lane >> 1 & 3] - 32 + 16*(lane & 1)
    d['aSm'] = sm(v) + 0*lane
    for k in range(4):
        def byte(i):
            lag = 512 - r4 + i
            lo = np.where(lag == 509, 0, np.where(lag == 510, 2, 4))
            z = (lag > 514) | (cc > 0)
            return np.where(z, 0x0c0c, lo | (lo + 1) << 8)
        d[f'sel{k}'] = byte(2*k) | byte(2*k+1) << 16
        hit = lambda s: np.isin(1040 + L15 - 8*GK - s, (1027, 1028))
        d[f'pm{k}'] = np.where(hit(2*k), 0xffff, 0) | np.where(hit(2*k+1), 0xffff0000, 0)
    sadr = lambda pc: 8*pc + 8*(pc >> 4)
    for t in range(2):
        y = 16 - 8*GK - 4*t + 4*cc
        d[f'aKA{t}'] = kb(v) + KT + (y >> 5)*256 + r4*64 + (y & 31)*2
        nu = 8*(GK & 1) + 4*t + r4
        d[f'aS2{t}'] = kb(v) + np.where(H == 0, S5 + sadr(2*nu - 3 + cc), S3 + sadr(2*nu - 2 + cc))
        d[f'aS3{t}'] = kb(v) + np.where(H == 0, S9 + sadr(4*nu - 3 + cc), S7 + sadr(4*nu - 1 + cc))
    d['aUB'] = ut(v) - 32 - 448 + 32*L15 + 16*GK
    d['aSW'] = kb(v) + 32*L15 + 8*GK + 8*(L15 >> 2)
    d['aR2'] = sm(v) + np.where(H == 0, KE2, KO2) + 2*(158 - 2*L15 + 8*(GK & 1)) - 32*8
    d['aR3'] = sm(v) + np.where(H == 0, KE3, KO3) + np.where(L15 & 1, 0, CPB) + 2*(127 - L15 + 8*(GK & 1)) - 32*7
    d['aYW'] = kb(v) + YO + 32*L15 + 8*((GK + (L15 >> 2)) & 3)
    d['aYR'] = kb(r4) + YO + 512*v + 128*GK + 8*((cc + GK) & 3)
    d['aYO'] = GK*512 + L15*8
    d['odd'] = np.where(lane & 1, 0xffffffff, 0)
    vad = lambda q: A0 + 8192*H + (q & 31)*128 + (((q >> 5) ^ ((q >> 1 & 7) << 2)) << 2)
    k0 = 128*v + 32*(GK & 1) + 2*L15
    d['aVW0'] = vad(k0); d['aVW1'] = vad(1024 - 65 - k0); d['aVW2'] = vad(np.where(k0 == 0, 512, 1024 - k0)); d['aVW3'] = vad(1024 - 64 - k0)
    for f in range(4): d[f'aVR{f}'] = A0 + 4096*v + (lane & 31)*128 + 16*((2*f + H) ^ (lane >> 1 & 7))
    n2 = PI(lane & 31); fz = (n2 >> 1 & 1) | (n2 >> 3 & 1) << 1
    for hf in range(2): d[f'aOW{hf}'] = A0 + 4096*v + n2*64 + 16*((2*hf + H) ^ fz)
    d['aOR'] = A0 + 4096*v + 16*lane
    d['aO'] = 16*(lane ^ ((lane >> 3 & 1) | H << 1))
    hi, lo = lane >> 3, lane & 7
    d['aGL'] = hi*16384 + lo*16; d['aGO'] = hi*4096 + lo*16
    for i in range(2):
        d[f'aGW{i}'] = GY + 2048*v + 1024*i + hi*128 + 16*(lo ^ GK ^ (4*i))
        d[f'aGR{i}'] = GY + 2048*v + lo*256 + 16*(lo ^ GK ^ (4*i)) + 8*(hi & 1)
    return {k: (np.asarray(x, np.int64) + 0*lane) & 0xffffffff for k, x in d.items()}

GROUPS = {'E': 'aZR0 aZR1 aZR2 aZR3'.split()}
def build_table():
    quads = []; off = {}
    W = [wave_values(v) for v in range(4)]
    for g, names in GROUPS.items():
        assert len(names) % 4 == 0
        off[g] = 1024*len(quads)
        for v in range(4):
            for i in range(0, len(names), 4): quads.append([W[v][n] for n in names[i:i+4]])
    data = np.array([np.stack([np.asarray(c, np.int64) for c in q], axis=1) for q in quads]).astype(np.uint32)
    return data.reshape(-1), off

def unpack_pk(text):
    out = []
    for l in text.split('\n'):
        l = l.strip(); neg = 'neg_lo' in l; mn, rest = l.split(None, 1)
        ops = [int(re.match(r'v\[(\d+):', x.strip()).group(1)) for x in re.split(r',(?![^\[]*\])', rest.split(' neg')[0])]
        for e in range(2):
            r = [f'v{o+e}' for o in ops]
            if 'mul' in mn: out.append(f'v_mul_f32 {r[0]}, {r[1]}, {r[2]}')
            elif neg: out.append(f'v_fma_f32 {r[0]}, -{r[1]}, {r[2]}, {r[3]}')
            elif r[0] != r[3]: out.append(f'v_fma_f32 {r[0]}, {r[1]}, {r[2]}, {r[3]}')
            else: out.append(f'v_fmac_f32 {r[0]}, {r[1]}, {r[2]}')
    return '\n'.join(out)

class Quads:
    def __init__(self, qs): self.q = qs
    def __getitem__(self, i):
        assert i.start//4 == (i.stop-1)//4
        return self.q[i.start//4][i.start % 4:(i.stop-1) % 4 + 1]

class Gen:
    def __init__(self, stamps=False, opts=None):
        self.stamps = stamps; self.o = opts or {}; self.stn = []
        self.tins = 's_memtime' if self.o.get('cyc') else 's_memrealtime'
        self.lbl = 0; self.ool = []; self.mains = []; self.roles = []
        self.table, self.toff = build_table(); self.t = {}; self.junk = []; self.plain = False; self.bg = []; self.inbg = False; self.bgt = 0; self.bgi = 80
    def role(self, name):
        self.p = self.main = Prog(); self.mains.append(self.p); self.rn = name
        self.V = Alloc('v', NV, 1); self.A = Alloc('a', NA); self.S = Alloc('s', 102, 32); self.roles.append((name, self.V, self.A, self.S))
        self.vmlog = []; self.t = {}; self.junk = []; self.stn = []; self.pend = []; self.so = {}
        for k in ('TL', 'UL', 'YL'): self.__dict__.pop(k, None)
    def X(self, n):
        try: return self.A.get(n)
        except RuntimeError: return self.V.get(n)
    def putX(self, *rs):
        for r in rs: (self.A if r.k == 'a' else self.V).put(r)
    def flag(self, k, d=''):
        return next((x.split('=')[1].replace('+', ' ') for x in self.o if x.startswith(k + '=')), d)
    def P(self, text):
        for l in text.split('\n'):
            if not l.strip(): continue
            self.p(l)
            if self.bg and self.p is self.main and not self.inbg:
                i = self.p.ins[-1]
                self.bgt += {'mfma': 4*i.passes, 'ds': 8, 'vmem': -10**6}.get(i.kind, 4)
                if i.kind == 'vmem': self.bgt = 0
                if self.bgt >= self.bgi and i.kind in ('valu', 'mfma') and not i.mn.startswith(('v_cmp', 'v_readfirst')):
                    self.inbg = True; self.bg.pop(0)(); self.inbg = False; self.bgt = 0
    def background(self, l, interval=80): self.bg += l; self.bgi = interval; self.bgt = 0
    def bgflush(self):
        self.inbg = True
        while self.bg: self.bg.pop(0)()
        self.inbg = False
    def stamp(self, name):
        if not self.stamps: return
        if self.flag('only') and name not in self.flag('only').split(',') + ['end']: return
        r = self.S.get(2); self.stn.append((name, r)); self.p(f'{self.tins} {r}')
    def label(self, base):
        self.lbl += 1; return f'L{base}{self.lbl}'
    def vm(self, text, tag):
        self.p(text)
        if self.p is self.main: self.vmlog.append(tag)
    def after(self, tag):
        return len(self.vmlog) - 1 - max(i for i, t in enumerate(self.vmlog) if t == tag)
    def wait_vm(self, tag): self.p(f's_waitcnt vmcnt({self.after(tag)})')
    def begin_ool(self, lb):
        q = Prog(); self.ool.append(q); self.p = q; q(f'{lb}:')
    def end_ool(self): self.p = self.main
    def srd(self, base, nbytes):
        r = self.S.get(4)
        self.p(f's_mov_b32 {r[0]}, {base[0]}\ns_mov_b32 {r[1]}, {base[1]}\ns_mov_b32 {r[2]}, {nbytes}\ns_mov_b32 {r[3]}, 0x20000')
        return r
    def sexpr(self, terms, const=0, dst=None):
        dst = dst or self.S.get(); first = True
        for reg, mult in terms:
            sh = mult.bit_length() - 1
            if first:
                self.p(f's_lshl_b32 {dst}, {reg}, {sh}' if mult == 1 << sh else f's_mul_i32 {dst}, {reg}, {mult}'); first = False
            elif mult == 1: self.p(f's_add_u32 {dst}, {dst}, {reg}')
            else:
                self.p(f's_lshl_b32 {self.st0}, {reg}, {sh}' if mult == 1 << sh else f's_mul_i32 {self.st0}, {reg}, {mult}')
                self.p(f's_add_u32 {dst}, {dst}, {self.st0}')
        if const: self.p(f's_add_u32 {dst}, {dst}, {const}')
        return dst
    def splus(self, src, const):
        d = self.S.get(); self.p(f's_add_u32 {d}, {src}, {const}'); return d
    def group_loads(self, g):
        names = GROUPS[g]; n = len(names)//4; l = []
        so = [None]; RR = [self.V.get(4) for _ in range(n)]
        for i in range(n):
            for k in range(4):
                if names[4*i+k] in self.t: self.junk.append(RR[i][k])
                else: self.t[names[4*i+k]] = RR[i][k]
        def mk(i):
            def f():
                if i % 4 == 0:
                    if so[0] is None: so[0] = self.sexpr([(self.sV, 1024*n)], self.toff[g])
                    else: self.p(f's_add_u32 {so[0]}, {so[0]}, 4096')
                R = RR[i]
                self.vm(f'buffer_load_dwordx4 {R}, {self.L16}, {self.rT}, {so[0]} offen offset:{1024*(i % 4)}', 'g' + g)
                if i == n-1: self.S.put(so[0])
            return f
        return [mk(i) for i in range(n)]
    def free(self, *names): self.V.put(*[self.t.pop(n) for n in names])

    def prologue(self):
        p, V, S = self.P, self.V, self.S; B = self.rn == 'B'
        P = lambda b: Reg('s', b, 2)
        self.x, self.wr, self.wi, self.u = P(4), P(6), P(8), P(10)
        self.par = [P(12), P(14), P(16), P(18), P(20), P(22)]
        self.ldt, self.dsk, self.out, self.ws = P(24), P(26), P(28), P(30)
        self.sV, self.sC, self.sR, self.sG = S.get(), S.get(), S.get(), S.get()
        self.L = L = V.get(); self.L16 = V.get(); t = V.get(); self.PF = V.get()
        self.st0, self.st1 = S.get(), S.get(); self.sa = S.get(2); self.rT = rT = S.get(4)
        st0, st1, sa = self.st0, self.st1, self.sa
        sV, sC, sR, sG = self.sV, self.sC, self.sR, self.sG
        pc = 'L_pc' + self.rn
        if B: p('L_B:\ns_cmp_ge_u32 s2, 512\ns_cbranch_scc1 L_end\ns_sub_u32 s2, s2, 256')
        if self.stamps:
            r = S.get(2); self.stn.append(('start', r)); p(f'{self.tins} {r}')
            self.clk0 = S.get(2); p(f's_memtime {self.clk0}')
        if not B: p(f's_cmp_ge_u32 s2, 256\ns_cbranch_scc1 L_B\ns_setprio {self.flag("prio", 3)}')
        p(f'''s_getpc_b64 {sa}
        {pc}:
        s_load_dwordx16 s[4:19], s[0:1], 0
        s_lshr_b32 {st0}, s2, 3
        v_lshrrev_b32 {t}, 6, v0
        v_and_b32 {L}, 63, v0''')
        if not B:
            p(f'''s_lshl_b32 {st1}, {st0}, 10
            v_lshl_add_u32 {self.PF}, {t}, 1, {L}
            v_lshl_add_u32 {self.PF}, {self.PF}, 7, {st1}
            v_min_u32 {self.PF}, L_tblend-{pc}-64, {self.PF}
            s_mov_b64 exec, 3''')
            self.vm(f'global_load_dword {self.PF}, {self.PF}, {sa}', 'pf')
            p('s_mov_b64 exec, -1')
        p(f'''v_readfirstlane_b32 {sV}, {t}
        s_load_dwordx8 s[20:27], s[0:1], 64
        s_load_dwordx2 s[28:29], s[0:1], 96
        s_load_dwordx2 s[30:31], s[0:1], 112
        v_lshlrev_b32 {self.L16}, 4, {L}
        s_and_b32 {sC}, s2, 7
        s_lshl_b32 {sC}, {sC}, 5
        s_add_u32 {sC}, {sC}, {st0}
        s_add_u32 {rT[0]}, {sa[0]}, L_tbl-{pc}
        s_addc_u32 {rT[1]}, {sa[1]}, 0''')
        self.sE = S.get(); self.sE2 = S.get(); self.sb = S.get(2); self.sD = S.get()
        self.sTau = S.get(); self.sGam = S.get()
        p(f's_lshl2_add_u32 {self.sD}, {sC}, {sV}')
        if not B:
            self.sJ = self.sexpr([(sV, 256), (sC, 1)])
            p(f's_mul_i32 {st1}, {sV}, {PL}\ns_add_u32 m0, {st1}, {A0}\ns_lshl_b32 {st0}, {self.sJ}, 12')
        p('s_waitcnt lgkmcnt(0)')
        self.stamp('karg')
        if not B:
            p(f's_add_u32 {sa[0]}, {self.x[0]}, {st0}\ns_addc_u32 {sa[1]}, {self.x[1]}, 0')
            self.vm(f'global_load_lds_dwordx4 {self.L16}, {sa}', 'x')
            self.vm(f'global_load_lds_dwordx4 {self.L16}, {sa} offset:1024', 'x')
            p(f's_add_u32 m0, {st1}, {A0+128}\ns_nop 0')
            self.vm(f'global_load_lds_dwordx4 {self.L16}, {sa} offset:2048', 'x')
            self.vm(f'global_load_lds_dwordx4 {self.L16}, {sa} offset:3072', 'x')
        else: self.loads_par()
        p(f'''s_add_u32 {self.sb[0]}, {self.ws[0]}, {EOFF}
        s_addc_u32 {self.sb[1]}, {self.ws[1]}, 0
        s_lshr_b32 {self.sGam}, {sC}, 4
        s_lshl_b32 {st0}, {self.sGam}, 7
        s_add_u32 {st0}, {st0}, 256
        s_load_dword {self.sE2}, {self.sb}, {st0}
        {'' if B else f's_load_dword {self.sE}, {self.sb}, 0'}
        s_lshr_b32 {sR}, {sC}, 6
        s_and_b32 {sG}, {sC}, 63
        s_and_b32 {self.sTau}, {sC}, 15
        s_mov_b32 {rT[2]}, {4*len(self.table)}
        s_mov_b32 {rT[3]}, 0x20000''')
        V.put(t)
    def loads_par(self):
        p, V, st1 = self.P, self.V, self.st1
        self.PR = V.get(6); t = V.get(); self.sLD = self.S.get(); self.sDS = self.S.get()
        p(f'''s_lshl_b32 {st1}, {self.sD}, 8
        v_lshl_add_u32 {t}, {self.L}, 2, {st1}
        s_lshr_b32 {st1}, {self.sD}, 1
        s_lshl_b32 {st1}, {st1}, 2
        s_load_dword {self.sLD}, {self.ldt}, {st1}
        s_load_dword {self.sDS}, {self.dsk}, {st1}''')
        for i in range(6): self.vm(f'global_load_dword {self.PR[i]}, {t}, {self.par[i]}', 'par')
        V.put(t)
    def tlb_touch(self):
        p, V = self.P, self.V; self.TT = V.get(2); a = V.get()
        p(f"""v_lshlrev_b32 {a}, 21, {self.L}
        v_add_u32 {a}, 0x1fff80, {a}
        s_mov_b64 exec, 0x433""")
        self.vm(f'global_load_dword {self.TT[0]}, {a}, {self.ws}', 'tt')
        p('s_mov_b64 exec, 0xf')
        self.vm(f'global_load_dword {self.TT[1]}, {a}, {self.out}', 'tt')
        p('s_mov_b64 exec, -1'); V.put(a)
    def offsets1(self):
        p, S, sC, sV = self.P, self.S, self.sC, self.sV
        self.rW = self.srd(self.ws, 1 << 28)
        so = self.so
        so['t1st'] = [self.sexpr([(sV, 1 << 18), (sC, 64)], T1)]
        for t_ in range(1, 4): so['t1st'].append(self.splus(so['t1st'][0], 65536*t_))
        so['wx'] = self.sexpr([(sV, 16384), (sC, 64)], WX)
        so['tust'] = self.sexpr([(self.sGam, 1 << 18), (self.sTau, 1024), (sV, 256)], TU)
    def offsets2(self):
        p, S, sC, sV, so = self.P, self.S, self.sC, self.sV, self.so
        self.rO = self.srd(self.out, 8 << 20)
        so['t1ld'] = self.sexpr([(sC, 16384), (sV, 4096)], T1)
        if self.flag('tw'): so['twld'] = self.splus(so['t1ld'], TW - T1)
    def wvals(self, t, a, b, gk):
        L = self.L
        if not self.flag('tw'): return f'''v_and_b32 {t['wgv']}, 15, {L}
        v_lshl_add_u32 {t['wgv']}, {gk}, 6, {t['wgv']}
        v_mul_u32_u24 {t['wgv']}, 4104, {t['wgv']}'''
        t['aWQ'] = self.V.get(); t['aTO'] = self.V.get()
        return f'''v_lshlrev_b32 {t['aWQ']}, 2, {b}
        v_xor_b32 {t['aWQ']}, {t['aWQ']}, {a}
        v_lshl_add_u32 {t['aWQ']}, {b}, 4, {t['aWQ']}
        s_lshl_b32 {self.st1}, {self.sV}, 12
        v_lshl_add_u32 {t['aWQ']}, {t['aWQ']}, 4, {self.st1}
        v_lshlrev_b32 {t['wgv']}, 6, {gk}
        v_xor_b32 {t['wgv']}, {t['wgv']}, {self.L16}
        v_and_b32 {t['wgv']}, 0xf0, {t['wgv']}
        v_mul_u32_u24 {t['aTO']}, 4104, {gk}
        v_add_u32 {t['wgv']}, {t['wgv']}, {t['aTO']}
        v_lshlrev_b32 {t['aTO']}, 4, {b}
        v_lshl_add_u32 {t['aTO']}, {a}, 14, {t['aTO']}'''
    def early_values(self):
        p, V, t, L = self.P, self.V, self.t, self.L
        for n in 'wxs wxa wxc wxo wgv aC aZX aXR aZW r4k r4b r4s r4m1 r4m2 r4ik r4ib r4l r4h odd'.split(): t[n] = V.get()
        a, b, gk = V.get(), V.get(), V.get()
        p(f'''v_lshrrev_b32 {a}, 3, {L}
        v_and_b32 {b}, 7, {L}
        v_lshrrev_b32 {gk}, 4, {L}
        v_and_b32 {b}, 1, {L}
        v_sub_u32 {t['odd']}, 0, {b}
        v_or_b32 {t['wxs']}, 1, {t['odd']}
        v_cvt_f32_u32 {b}, {b}
        v_mul_f32 {t['r4b']}, {fl(0.25)}, {b}
        v_mul_f32 {t['r4ib']}, {fl(-0.25)}, {b}
        v_and_b32 {a}, 1, {a}
        v_lshlrev_b32 {t['wxc']}, 10, {a}
        v_bfe_u32 {b}, {L}, 1, 1
        v_lshlrev_b32 {t['r4s']}, 31, {b}
        v_lshl_add_u32 {a}, {a}, 1, {b}
        v_cvt_f32_u32 {a}, {a}
        v_mul_f32 {t['r4ik']}, {fl(0.25)}, {a}
        v_bfe_u32 {a}, {L}, 2, 2
        v_and_b32 {b}, 4, {t['odd']}
        v_lshl_add_u32 {t['wxo']}, {a}, 3, {b}
        v_and_b32 {b}, 32, {self.L16}
        v_add_u32 {t['wxo']}, {t['wxo']}, {b}
        v_cvt_f32_u32 {a}, {a}
        v_mul_f32 {t['r4k']}, {fl(1/1024)}, {a}
        v_bfe_u32 {a}, {L}, 2, 1
        v_cmp_eq_u32 vcc, {a}, {gk}
        v_lshlrev_b32 {b}, 10, {a}
        v_add_u32 {a}, 2, {a}
        v_cndmask_b32 {t['r4l']}, 0, -1, vcc
        v_cmp_eq_u32 vcc, {a}, {gk}
        v_mul_i32_i24 {t['wxa']}, {t['wxs']}, {b}
        v_and_b32 {a}, 2, {L}
        v_cndmask_b32 {t['r4h']}, 0, -1, vcc
        v_cmp_eq_u32 vcc, {a}, {gk}
        v_add_u32 {a}, 1, {a}
        v_and_b32 {b}, 15, {L}
        v_cndmask_b32 {t['r4m1']}, 0, -1, vcc
        v_cmp_eq_u32 vcc, {a}, {gk}
        v_lshrrev_b32 {a}, 2, {L}
        v_and_b32 {b}, 3, {L}
        v_cndmask_b32 {t['r4m2']}, 0, -1, vcc
        {self.wvals(t, a, b, gk)}
        v_lshlrev_b32 {b}, 4, {b}
        v_and_b32 {a}, 3, {a}
        v_lshl_add_u32 {a}, {gk}, 6, {a}
        v_lshl_add_u32 {t['aC']}, {a}, 14, {b}
        v_cmp_gt_u32 vcc, 32, {L}
        v_mov_b32 {a}, {A0}
        v_mov_b32 {b}, {A0 + 16*144}
        v_cndmask_b32 {t['aZX']}, {a}, {b}, vcc
        s_mul_i32 {self.st0}, {self.sV}, {PL}
        s_add_u32 {self.st0}, {self.st0}, {A0}
        v_and_b32 {a}, 0x28, {L}
        v_and_b32 {b}, 3, {L}
        v_add_lshl_u32 {a}, {a}, {b}, 3
        v_and_b32 {b}, 16, {L}
        v_lshl_add_u32 {a}, {b}, 1, {a}
        v_bfe_u32 {b}, {L}, 2, 1
        v_mul_u32_u24 {b}, 2176, {b}
        v_add3_u32 {t['aXR']}, {a}, {b}, {self.st0}
        v_and_b32 {a}, 31, {L}
        v_mul_u32_u24 {a}, 144, {a}
        v_and_b32 {b}, 32, {L}
        v_add3_u32 {t['aZW']}, {a}, {b}, {self.st0}''')
        V.put(a, b, gk)
    def dft_consts(self):
        p, V, A, L = self.P, self.V, self.A, self.L
        self.CFr, self.CFi = A.get(16), A.get(16); self.TWc, self.TWs = V.get(16), V.get(16)
        k, b, an, c, s, d, d2, sgn = [V.get() for _ in range(8)]
        p(f'''v_and_b32 {k}, 0x13, {L}
        v_bfe_u32 {b}, {L}, 2, 1
        v_lshl_or_b32 {k}, {b}, 3, {k}
        v_bfe_u32 {b}, {L}, 3, 1
        v_lshl_or_b32 {k}, {b}, 2, {k}
        v_lshrrev_b32 {b}, 5, {L}
        v_cvt_f32_u32 {k}, {k}
        v_cvt_f32_u32 {b}, {b}
        v_mul_f32 {k}, {fl(1/32)}, {k}
        v_mul_f32 {b}, {b}, {k}
        v_mul_f32 {b}, 4.0, {b}
        v_and_b32 {sgn}, 0x80008000, {self.t['odd']}''')
        for f in range(2):
            for jj in range(4):
                i = 4*f + jj
                p(f'''v_fmamk_f32 {an}, {k}, {fl(8*f+jj)}, {b}
                v_cos_f32 {c}, {an}
                v_sin_f32 {s}, {an}
                v_mul_f32 {an}, {fl(1/32)}, {an}
                v_cvt_pk_bf16_f32 {d}, {c}, {s}
                v_cos_f32 {self.TWc[i]}, {an}
                v_cvt_pk_bf16_f32 {d2}, -{s}, {c}
                v_sin_f32 {self.TWs[i]}, {an}
                v_fmac_f32 {an}, 0.5, {k}
                v_accvgpr_write_b32 {self.CFr[i]}, {d}
                v_accvgpr_write_b32 {self.CFi[i]}, {d2}
                v_cos_f32 {self.TWc[8+i]}, {an}
                v_xor_b32 {d}, {sgn}, {d}
                v_xor_b32 {d2}, {sgn}, {d2}
                v_sin_f32 {self.TWs[8+i]}, {an}
                v_accvgpr_write_b32 {self.CFr[8+i]}, {d}
                v_accvgpr_write_b32 {self.CFi[8+i]}, {d2}''')
        V.put(k, b, an, c, s, d, d2, sgn)
    def twiddles_again(self):
        p, V, L = self.P, self.V, self.L
        self.TWc, self.TWs = V.get(16), V.get(16); k, b, an = V.get(), V.get(), V.get()
        p(f'''v_and_b32 {k}, 0x13, {L}
        v_bfe_u32 {b}, {L}, 2, 1
        v_lshl_or_b32 {k}, {b}, 3, {k}
        v_bfe_u32 {b}, {L}, 3, 1
        v_lshl_or_b32 {k}, {b}, 2, {k}
        v_lshrrev_b32 {b}, 5, {L}
        v_cvt_f32_u32 {k}, {k}
        v_cvt_f32_u32 {b}, {b}
        v_mul_f32 {k}, {fl(1/1024)}, {k}
        v_mul_f32 {b}, {b}, {k}
        v_mul_f32 {b}, 4.0, {b}''')
        for i in range(16):
            p(f'v_fmamk_f32 {an}, {k}, {fl(8*(i >> 2) + (i & 3))}, {b}\nv_cos_f32 {self.TWc[i]}, {an}\nv_sin_f32 {self.TWs[i]}, {an}')
        V.put(k, b, an)
    def c16_loads(self):
        self.C16r, self.C16i = self.A.get(4), self.A.get(4); self.T16c, self.T16s = self.V.get(4), self.V.get(4)
        o = self.S.get(); self.p(f's_mov_b32 {o}, {self.toff["C16"]}')
        return self.tloads([self.C16r, self.C16i, self.T16c, self.T16s], o, 'c16')
    def tloads(self, regs, o, tag):
        def mk(k):
            def f():
                self.vm(f'buffer_load_dwordx4 {regs[k]}, {self.L16}, {self.rT}, {o} offen offset:{1024*k}', tag)
                if k == len(regs)-1: self.S.put(o)
            return f
        return [mk(k) for k in range(len(regs))]
    def loads_u(self):
        p, S = self.P, self.S; sa, st0, st1 = self.sa, self.st0, self.st1
        o = self.sexpr([(self.sTau, 1 << 18), (self.sV, 1 << 16), (self.sGam, 128)])
        r = self.srd(self.u, 4 << 20)
        m = self.sexpr([(self.sV, 4096)], US)
        def mk(i):
            def f():
                self.p(f's_add_u32 m0, {m}, {1024*i}')
                self.p(f's_add_u32 {o}, {o}, 16384' if i else 's_nop 0')
                self.vm(f'buffer_load_dwordx4 {self.t["uld"]}, {r}, {o} offen lds', 'u')
                if i == 3: S.put(o, r, m); self.free('uld')
            return f
        return [mk(i) for i in range(4)]
    def loads_wx(self):
        p, V, t = self.P, self.V, self.t
        self.WXV = V.get(); a = V.get()
        p(f'''s_movk_i32 {self.st1}, 1026
        v_mad_i32_i24 {a}, {t['wxs']}, {self.sD}, {t['wxa']}
        v_and_b32 {a}, 0x7ff, {a}
        v_mad_u32_u24 {a}, {a}, {self.st1}, {t['wxc']}
        s_mov_b64 exec, 0x3333''')
        self.vm(f'global_load_ushort {self.WXV}, {a}, {self.wr}', 'wx')
        p('s_mov_b64 exec, 0xcccc')
        self.vm(f'global_load_ushort {self.WXV}, {a}, {self.wi} ; nocheck', 'wx')
        p('s_mov_b64 exec, -1')
        V.put(a); self.free('wxs', 'wxa', 'wxc')
    def wx_steps(self):
        V, t = self.V, self.t; a, b = V.get(), V.get(); W = self.WXV
        def last():
            self.p('s_mov_b64 exec, 0xffff')
            self.vm(f'buffer_store_dword {W}, {t["wxo"]}, {self.rW}, {self.so["wx"]} offen sc1', 'wxst')
            self.p('s_mov_b64 exec, -1'); V.put(a, b); self.S.put(self.so['wx'])
        D = 'row_mask:0xf bank_mask:0xf'
        return [lambda: (self.wait_vm('wx'), self.p(f"v_lshlrev_b32 {W}, 16, {W}\nv_and_b32 {a}, {t['odd']}, {t['r4s']}\nv_xor_b32 {W}, {W}, {a}\nv_mov_b32 {b}, {self.sN}")),
                lambda: self.p(f"v_add_f32_dpp {a}, {W}, {W} quad_perm:[1,0,3,2] {D}\nv_mul_f32 {a}, 0.5, {a}"),
                lambda: self.p(f"v_mov_b32_dpp {W}, {a} quad_perm:[2,3,0,1] {D}\nv_cvt_pk_bf16_f32 {W}, {a}, {W}\nv_bfi_b32 {W}, {t['odd']}, {b}, {W}"),
                last]
    def w_srd(self):
        p, S = self.P, self.S; r = self.rWW = S.get(4); self.sWH = S.get()
        p(f'''s_bitcmp1_b32 {self.sV}, 0
        s_cselect_b32 {r[0]}, {self.wi[0]}, {self.wr[0]}
        s_cselect_b32 {r[1]}, {self.wi[1]}, {self.wr[1]}
        s_mov_b32 {r[2]}, {2048*1026}
        s_mov_b32 {r[3]}, 0x20000
        s_lshr_b32 {self.sWH}, {self.sV}, 1''')
    def w_prefetch(self):
        p, V, S = self.P, self.V, self.S
        self.w_srd(); self.PW = V.get(); x = V.get(); a = S.get(); b = S.get()
        p(f'''v_and_b32 {x}, 7, {self.L}
        v_mul_u32_u24 {x}, 4104, {x}
        v_lshrrev_b32 {self.PW}, 3, {self.L}
        v_lshlrev_b32 {self.PW}, 7, {self.PW}
        v_min_u32 {self.PW}, 511, {self.PW}
        v_add_u32 {self.PW}, {self.PW}, {x}
        s_and_b32 {a}, {self.sC}, 31
        s_and_b32 {b}, {self.sC}, 32''')
        o = self.sexpr([(a, 64*1026), (self.sWH, 32*1026), (self.sR, 1026), (b, 16)])
        r = self.rWW; V.put(x); S.put(a, b, self.sWH)
        def f():
            self.p('s_mov_b32 exec_hi, 0xff')
            self.vm(f'buffer_load_ubyte {self.PW}, {self.PW}, {r}, {o} offen', 'pw')
            self.p('s_mov_b32 exec_hi, -1'); S.put(o, r)
        return f
    def w_setup(self):
        self.w_srd()
        self.oW = self.sexpr([(self.sWH, 1024*1026), (self.sR, 1026), (self.sG, 16)]); self.S.put(self.sWH)
    def w_loads(self):
        self.WL = self.V.get(16)
        def mk(i):
            def f():
                if i: self.p(f's_add_u32 {self.oW}, {self.oW}, {64*1026}')
                self.vm(f'buffer_load_dwordx4 {self.WL[4*i:4*i+4]}, {self.t["wgv"]}, {self.rWW}, {self.oW} offen', 'W')
                if i == 3: self.free('wgv'); self.S.put(self.oW, self.rWW)
            return f
        return [mk(i) for i in range(4)]
    def w_rows(self):
        p, V, S, sC = self.P, self.V, self.S, self.sC
        r = S.get(4); self.WL = V.get(16); a, b = S.get(), S.get()
        p(f'''s_bitcmp1_b32 {sC}, 7
        s_cselect_b32 {r[0]}, {self.wi[0]}, {self.wr[0]}
        s_cselect_b32 {r[1]}, {self.wi[1]}, {self.wr[1]}
        s_mov_b32 {r[2]}, {2048*1026}
        s_mov_b32 {r[3]}, 0x20000
        s_bfe_u32 {a}, {sC}, 0x10006
        s_lshl_b32 {a}, {a}, 10
        s_bfe_u32 {b}, {sC}, 0x20004
        s_add_u32 {a}, {a}, {b}
        s_bfe_u32 {b}, {sC}, 0x20002
        s_lshl_b32 {b}, {b}, 8
        s_add_u32 {a}, {a}, {b}
        s_and_b32 {b}, {sC}, 3
        s_lshl4_add_u32 {a}, {b}, {a}''')
        o = self.sexpr([(a, 1026), (self.sV, 256)]); m = self.sexpr([(self.sV, 4096)])
        p(f'''s_bfe_u32 {a}, {sC}, 0x20004
        s_lshl2_add_u32 {a}, {a}, {self.sV}
        s_lshl_b32 {a}, {a}, 18
        s_and_b32 {b}, {sC}, 15
        s_lshl_b32 {b}, {b}, 6
        s_add_u32 {a}, {a}, {b}
        s_bfe_u32 {b}, {sC}, 0x10006
        s_lshl_b32 {b}, {b}, 11
        s_add_u32 {a}, {a}, {b}
        s_lshr_b32 {b}, {sC}, 7
        s_lshl_b32 {b}, {b}, 10
        s_add_u32 {a}, {a}, {b}
        s_add_u32 {a}, {a}, {TW}''')
        self.so['twst'] = [a] + [self.splus(a, 4096*j) for j in range(1, 4)]; S.put(b)
        def mk(i):
            def f():
                self.p(f's_add_u32 m0, {m}, {WS+1024*i}')
                self.p(f's_add_u32 {o}, {o}, {64*1026}' if i else 's_nop 0')
                self.vm(f'buffer_load_dwordx4 {self.t["wgv"]}, {r}, {o} offen lds', 'W')
                if i == 3: self.free('wgv'); S.put(o, r, m)
            return f
        return [mk(i) for i in range(4)]
    def tw_produce(self):
        p, V = self.P, self.V; R = V.get(16)
        for rho in range(4): p(f'ds_read_b128 {self.WL[4*rho:4*rho+4]}, {self.t["aWQ"]} offset:{WS+1024*rho}')
        p('s_waitcnt lgkmcnt(0)'); self.free('aWQ')
        for j in range(4):
            for rho in range(4): p(f'v_bfi_b32 {R[4*j+rho]}, {self.MK}, {self.WL[4*rho+j]}, {self.TG[rho]}')
            self.vm(f'buffer_store_dwordx4 {R[4*j:4*j+4]}, {self.t["aTO"]}, {self.rW}, {self.so["twst"][j]} offen sc1', 'twst')
        self.pend.append(R); self.S.put(*self.so['twst']); self.free('aTO')
    def tw_issue(self):
        self.ldw = [f'buffer_load_dwordx4 {self.WL[4*i:4*i+4]}, {self.L16}, {self.rW}, {self.so["twld"]} offen offset:{1024*i} sc1' for i in range(4)]
        for x in self.ldw: self.vm(x, 'twld')
    def tw_consume(self):
        acc, tt = self.V.get(), self.V.get(2)
        self.poll_chunks(self.WL, self.ldw, self.TG, self.after('twld'), acc, tt)
        self.V.put(acc, tt); self.S.put(self.so['twld'])
    def radix4_fwd(self):
        p, V, A, t = self.P, self.V, self.A, self.t
        self.R4a, self.R4b = A.get(4), A.get(4)
        w, an, c, s, d = V.get(), V.get(), V.get(), V.get(), V.get()
        p(f"v_cvt_f32_u32 {w}, {self.sC}\nv_fmac_f32 {t['r4b']}, {w}, {t['r4k']}\nv_fmamk_f32 {t['r4ik']}, {w}, {fl(1/1024)}, {t['r4ik']}")
        for m in range(4):
            p(f'''v_fmamk_f32 {an}, {t['r4k']}, {fl(256*m)}, {t['r4b']}
            v_sin_f32 {s}, {an}
            v_cos_f32 {c}, {an}
            v_xor_b32 {s}, {t['r4s']}, {s}
            v_cvt_pk_bf16_f32 {d}, {c}, {s}
            v_and_b32 {w}, {t['r4m1']}, {d}
            v_and_b32 {d}, {t['r4m2']}, {d}
            v_accvgpr_write_b32 {self.R4a[m]}, {w}
            v_accvgpr_write_b32 {self.R4b[m]}, {d}''')
        V.put(w, an, c, s, d); self.free('r4k', 'r4b', 'r4m1', 'r4m2')
    def radix4_inv(self):
        p, V, A, t = self.P, self.V, self.A, self.t
        self.R4l, self.R4h = A.get(4), A.get(4)
        w, an, c, s, d = V.get(), V.get(), V.get(), V.get(), V.get()
        for m in range(4):
            p(f'''v_fmamk_f32 {an}, {t['r4ik']}, {fl(m)}, {t['r4ib']}
            v_cos_f32 {c}, {an}
            v_sin_f32 {s}, {an}
            v_mul_f32 {c}, {fl(2.0**-21)}, {c}
            v_mul_f32 {s}, {fl(-2.0**-21)}, {s}
            v_cvt_pk_bf16_f32 {d}, {c}, {s}
            v_and_b32 {w}, {t['r4l']}, {d}
            v_and_b32 {d}, {t['r4h']}, {d}
            v_accvgpr_write_b32 {self.R4l[m]}, {w}
            v_accvgpr_write_b32 {self.R4h[m]}, {d}''')
        V.put(w, an, c, s, d); self.free('r4ik', 'r4ib', 'r4l', 'r4h')
    def tags(self, sE):
        p, V, S = self.P, self.V, self.S
        TG = S.get(4); sN = S.get(); st0, st1 = self.st0, self.st1
        p(f'''s_not_b32 {sN}, {sE}
        s_mul_i32 {st0}, {sE}, 0x9e3779b1
        s_lshr_b32 {st1}, {st0}, 15
        s_and_b32 {TG[1]}, {st1}, 0x10001
        s_lshr_b32 {st1}, {st0}, 14
        s_and_b32 {TG[2]}, {st1}, 0x10001
        s_lshr_b32 {st1}, {st0}, 13
        s_and_b32 {TG[3]}, {st1}, 0x10001
        s_lshr_b32 {st1}, {st0}, 12
        s_and_b32 {st1}, {st1}, 0x10000
        s_and_b32 {TG[0]}, {sN}, 1
        s_or_b32 {TG[0]}, {TG[0]}, {st1}''')
        return TG, sN
    def mask(self):
        self.MK = self.V.get(); self.p(f'v_mov_b32 {self.MK}, 0xfffefffe')
    def epoch_advance(self, cond, sE, off, tt):
        p = self.P; lb, lep = self.label('ep'), self.label('epo')
        p(f's_or_b32 {self.st0}, {cond}, {self.sV}\ns_cmp_eq_u32 {self.st0}, 0\ns_cbranch_scc1 {lep}\n{lb}:')
        self.begin_ool(lep)
        p(f'''s_add_u32 {self.st0}, {sE}, 1
        v_mov_b32 {tt[0]}, {self.st0}
        {off(tt[1])}
        s_mov_b64 exec, 1
        global_store_dword {tt[1]}, {tt[0]}, {self.sb}
        s_mov_b64 exec, -1
        s_branch {lb}''')
        self.end_ool()
    def offsets_b(self):
        so, sC, sV = self.so, self.sC, self.sV
        self.rW = self.srd(self.ws, 1 << 28)
        so['tuld'] = self.sexpr([(sC, 16384), (sV, 4096)], TU)
        so['tyst'] = [self.sexpr([(sC, 16384), (sV, 2048)], TU)]
        so['tyst'].append(self.splus(so['tyst'][0], 8192))
    def late_offsets(self):
        so, sC, sV = self.so, self.sC, self.sV
        so['t2ld'] = [self.sexpr([(sV, 1 << 18), (sC, 64)], T1)]
        for i in range(1, 4): so['t2ld'].append(self.splus(so['t2ld'][0], i << 20))
        so['tyld'] = self.sexpr([(self.sGam, 1 << 18), (self.sTau, 512), (sV, 128)], TU)
        so['oA'] = [self.sexpr([(self.sJ, 8192)])]; so['oA'].append(self.splus(so['oA'][0], 4096))
        so['oY'] = self.sexpr([(self.sTau, 1 << 18), (sV, 1 << 16), (self.sGam, 128)], 2048)

    def checked(self, text, expect, hook=None):
        import vsim
        for v in range(4):
            regs = {str(self.L): lane.astype(np.int64), str(self.L16): 16*lane.astype(np.int64), str(self.sV): v}
            W = wave_values(v); vsim.run(text.split('\n'), regs)
            for r, want in expect.items():
                w = (want(W, v) if callable(want) else W[want]) & 0xffffffff
                assert (regs[str(r)] == w).all(), (v, r, want, regs[str(r)], w)
        ls = [l for l in text.split('\n') if l.strip()]
        n = len(ls) if hook is None else hook[0]
        self.P('\n'.join(ls[:n]))
        if hook:
            for f in hook[1]: f()
            self.P('\n'.join(ls[n:]))
    def fields(self):
        V = self.V; f = {n: V.get() for n in 'l15 gk h r4 cc q2 g1'.split()}; L = self.L
        txt = f"""v_and_b32 {f['l15']}, 15, {L}
        v_lshrrev_b32 {f['gk']}, 4, {L}
        v_lshrrev_b32 {f['h']}, 5, {L}
        v_bfe_u32 {f['r4']}, {L}, 2, 2
        v_and_b32 {f['cc']}, 3, {L}
        v_lshrrev_b32 {f['q2']}, 2, {L}
        v_bfe_u32 {f['g1']}, {L}, 4, 1
        """
        return f, txt
    def values_b0(self):
        V, t, L = self.V, self.t, self.L
        t['aKR'], t['bE'] = V.get(), V.get(); a, b = V.get(), V.get(); sB = self.sKM = self.S.get()
        self.checked(f"""s_mul_i32 {sB}, {self.sV}, {KW}
        v_and_b32 {a}, 15, {L}
        v_lshrrev_b32 {b}, 4, {L}
        v_mad_u32_u24 {a}, {a}, 33, {b}
        v_lshl_add_u32 {t['aKR']}, {a}, 4, {sB}
        v_and_b32 {a}, 31, {L}
        v_lshl_add_u32 {t['bE']}, {a}, 4, {sB}""", {t['aKR']: lambda W, v: W['aKR'] - KT, t['bE']: lambda W, v: W['aE1w'] - KT - 512})
        V.put(a, b)
    def values_e(self):
        V, t, L = self.V, self.t, self.L
        for k in range(4): t[f'aZR{k}'] = V.get()
        k1, col, a, b, c = V.get(), V.get(), V.get(), V.get(), V.get(); k0 = self.S.get(); m = self.S.get(2); self.k144 = self.S.get()
        x = f"""v_and_b32 {a}, 15, {L}
        v_bfe_u32 {b}, {L}, 4, 1
        v_lshl_add_u32 {k1}, {a}, 1, {b}
        v_cmp_gt_u32 {m}, 32, {L}
        v_sub_u32 {a}, 0, {k1}
        v_and_b32 {a}, 31, {a}
        v_cndmask_b32 {col}, {a}, {k1}, {m}
        v_lshlrev_b32 {col}, 2, {col}
        v_add_u32 {col}, {A0}, {col}
        v_min_u32 {k1}, 1, {k1}
        v_sub_u32 {k1}, 32, {k1}
        s_lshl_b32 {k0}, {self.sV}, 2
        """
        for k in range(4):
            x += f"""v_mov_b32 {a}, {k0}
            v_sub_u32 {b}, {k1}, {a}
            v_cndmask_b32 {a}, {b}, {a}, {m}
            """
            if k == 0: x += f"v_lshrrev_b32 {b}, 5, {a}\nv_lshrrev_b32 {a}, {b}, {a}\n"
            x += f"""v_and_b32 {b}, 4, {a}
            v_and_b32 {c}, 8, {a}
            v_mul_u32_u24 {b}, 144, {b}
            v_mad_u32_u24 {b}, {a}, {self.k144}, {b}
            v_mul_u32_u24 {c}, 72, {c}
            v_sub_u32 {b}, {b}, {c}
            v_add_u32 {t[f'aZR{k}']}, {b}, {col}
            s_add_u32 {k0}, {k0}, 1
            """
        x = f"s_movk_i32 {self.k144}, 144\n" + x
        save = self.P; out = []
        self.P = out.append; self.checked(x, {t[f'aZR{k}']: f'aZR{k}' for k in range(4)}); self.P = save
        ls = [l for l in x.split('\n') if l.strip()]; n = 5
        fs = [(lambda q=ls[i:i+n]: self.p('\n'.join(q))) for i in range(0, len(ls), n)]
        fs.append(lambda: (V.put(k1, col, a, b, c), self.S.put(k0, m, self.k144)))
        return fs
    def values_u(self):
        V, t, L = self.V, self.t, self.L
        for n in ('aTR', 'aTO'): t[n] = V.get()
        a, b = V.get(), V.get()
        self.checked(f"""v_and_b32 {a}, 3, {L}
        v_lshrrev_b32 {b}, 2, {L}
        v_lshlrev_b32 {t['aTO']}, 4, {a}
        v_lshl_add_u32 {t['aTO']}, {b}, 14, {t['aTO']}
        v_and_b32 {b}, 3, {b}
        v_lshl_add_u32 {a}, {b}, 4, {a}
        v_lshrrev_b32 {b}, 4, {L}
        v_lshl_add_u32 {a}, {b}, 2, {a}
        s_lshl_b32 {self.st0}, {self.sV}, 12
        v_lshl_add_u32 {t['aTR']}, {a}, 3, {self.st0}""", {t['aTO']: 'aTO', t['aTR']: lambda W, v: W['aTR'] - US})
        V.put(a, b)
    def values_b(self, hook=None):
        V, S, t, L, L16, sV = self.V, self.S, self.t, self.L, self.L16, self.sV
        f, x = self.fields(); l15, gk, h, r4, cc, q2, g1 = f.values()
        names = 'bL16 b0 aE1r aE2w b16 aK0 aPad aUB aSW aYW aYR aYO aUW aKA0 aKA1 aS20 aS21 aS30 aS31 aR2 aR3 aK10 aK11 aK12 aK13 aK20 aK2z sel0 sel1 sel2'.split()
        for n in names: t[n] = V.get()
        a, b, c = V.get(), V.get(), V.get(); sB = self.sKM; k0, k1 = self.st0, self.st1
        x += f"""s_mul_i32 {sB}, {sV}, {KW}
        v_lshlrev_b32 {c}, 4, {cc}
        v_lshl_add_u32 {a}, {q2}, 8, {c}
        v_add_u32 {t['aE2w']}, {sB}, {a}
        v_add_u32 {t['bL16']}, {sB}, {L16}
        v_mov_b32 {t['b0']}, {sB}
        v_and_b32 {a}, 31, {L}
        v_lshl_add_u32 {t['aE1r']}, {a}, 3, {sB}
        v_lshl_add_u32 {t['b16']}, {l15}, 4, {sB}
        v_lshl_add_u32 {a}, {h}, 5, {g1}
        v_lshl_add_u32 {t['aK0']}, {a}, 3, {t['b16']}
        v_bfe_u32 {a}, {L}, 1, 2
        v_mul_u32_u24 {a}, 3296, {a}
        v_min_u32 {a}, 8800, {a}
        v_and_b32 {b}, 16, {L16}
        v_add3_u32 {t['aPad']}, {a}, {b}, {sB}
        v_lshl_add_u32 {a}, {l15}, 1, {gk}
        v_lshl_add_u32 {t['aUB']}, {a}, 4, {sB}
        v_lshl_add_u32 {c}, {l15}, 5, {sB}
        v_add_u32 {a}, {gk}, {r4}
        v_lshl_add_u32 {t['aSW']}, {a}, 3, {c}
        v_and_b32 {a}, 3, {a}
        v_lshl_add_u32 {t['aYW']}, {a}, 3, {c}
        v_add_u32 {a}, {gk}, {cc}
        v_and_b32 {a}, 3, {a}
        v_lshl_add_u32 {a}, {gk}, 4, {a}
        v_mul_u32_u24 {b}, {KW}, {r4}
        v_lshl_add_u32 {a}, {a}, 3, {b}
        s_lshl_b32 {k0}, {sV}, 9
        v_add_u32 {t['aYR']}, {k0}, {a}
        v_lshlrev_b32 {a}, 3, {l15}
        v_lshl_add_u32 {t['aYO']}, {gk}, 9, {a}
        v_mul_u32_u24 {a}, {KW}, {cc}
        v_lshl_add_u32 {a}, {q2}, 4, {a}
        s_lshl_b32 {k0}, {sV}, 10
        v_add_u32 {t['aUW']}, {k0}, {a}
        s_add_u32 {k0}, {sB}, {KT}
        v_lshl_add_u32 {c}, {r4}, 6, {k0}
        v_lshlrev_b32 {a}, 1, {gk}
        v_sub_u32 {a}, {cc}, {a}
        """
        for k in range(2):
            x += f"""v_lshl_add_u32 {b}, {a}, 2, {16-4*k}
            v_lshl_add_u32 {t[f'aKA{k}']}, {b}, 1, {c}
            v_ashrrev_i32 {b}, 31, {b}
            v_and_b32 {b}, 192, {b}
            v_sub_u32 {t[f'aKA{k}']}, {t[f'aKA{k}']}, {b}
            """
        x += f"v_lshl_add_u32 {c}, {g1}, 3, {r4}\n"
        for nm, sh, arr, dist in (('aS2', 1, S5, S3-S5), ('aS3', 2, S9, S7-S9)):
            x += f"""v_lshl_add_u32 {a}, {h}, {sh-1}, {cc}
            v_lshl_add_u32 {a}, {c}, {sh}, {a}
            s_add_u32 {k0}, {sB}, {arr}
            v_mul_u32_u24 {t[nm+'1']}, {dist}, {h}
            v_add_u32 {t[nm+'1']}, {k0}, {t[nm+'1']}
            v_add_u32 {a}, -3, {a}
            v_ashrrev_i32 {b}, 4, {a}
            v_add_lshl_u32 {b}, {a}, {b}, 3
            v_add_u32 {t[nm+'0']}, {t[nm+'1']}, {b}
            v_add_u32 {a}, {4 << sh}, {a}
            v_ashrrev_i32 {b}, 4, {a}
            v_add_lshl_u32 {b}, {a}, {b}, 3
            v_add_u32 {t[nm+'1']}, {t[nm+'1']}, {b}
            """
        x += f"""s_add_u32 {k0}, {sB}, {SMO}
        v_lshl_add_u32 {c}, {g1}, 4, {k0}
        v_mul_u32_u24 {a}, {KE2-KO2}, {h}
        v_lshl_add_u32 {a}, {l15}, 2, {a}
        v_sub_u32 {a}, {c}, {a}
        v_add_u32 {t['aR2']}, {KE2+60}, {a}
        v_and_b32 {b}, 1, {L}
        v_mul_u32_u24 {a}, {CPB}, {b}
        v_lshl_add_u32 {a}, {l15}, 1, {a}
        v_sub_u32 {a}, {c}, {a}
        v_mul_u32_u24 {c}, {KO3-KE3}, {h}
        v_add_u32 {a}, {KE3+CPB+30}, {a}
        v_add_u32 {t['aR3']}, {a}, {c}
        v_mul_u32_u24 {b}, {KO3-KE3-2}, {b}
        v_and_b32 {a}, 14, {L}
        v_lshl_add_u32 {a}, {gk}, 6, {a}
        v_sub_u32 {a}, {b}, {a}
        s_add_u32 {k1}, {k0}, {KE3+128}
        v_add_u32 {a}, {k1}, {a}
        s_add_u32 {k1}, {k0}, {DUMP}
        v_mov_b32 {c}, {k1}
        v_cmp_gt_u32 vcc, 33, {L}
        v_add_u32 {b}, -48, {a}
        s_add_u32 {k1}, {k0}, {KE2+64}
        v_cndmask_b32 {t['aK20']}, {c}, {a}, vcc
        v_cmp_gt_u32 vcc, 32, {L}
        v_lshl_add_u32 {a}, {gk}, 4, {l15}
        v_lshlrev_b32 {a}, 3, {a}
        v_cndmask_b32 {t['aK2z']}, {c}, {b}, vcc
        v_lshl_add_u32 {b}, {gk}, 5, {l15}
        v_lshlrev_b32 {b}, 1, {b}
        v_sub_u32 {b}, {KE2+320-KC1}, {b}
        v_cndmask_b32 {a}, {b}, {a}, vcc
        v_cmp_ne_u32 vcc, 0, {L}
        v_mov_b32 {c}, {k1}
        s_add_u32 {k1}, {k0}, {KC1}
        v_add_u32 {a}, {k1}, {a}
        v_cndmask_b32 {t['aK20']}, {c}, {t['aK20']}, vcc
        v_mul_u32_u24 {b}, {KE2-KO2+4}, {h}
        v_sub_u32 {b}, {a}, {b}
        v_add_u32 {t['aK11']}, 2, {b}
        v_mul_u32_u24 {b}, 36, {h}
        v_sub_u32 {b}, 4, {b}
        v_add_u32 {t['aK12']}, {a}, {b}
        v_add_u32 {t['aK13']}, {t['aK11']}, {b}
        v_cmp_ne_u32 vcc, 32, {L}
        s_add_u32 {k1}, {k1}, 256
        v_mov_b32 {c}, {k1}
        v_mov_b32 {t['sel0']}, 0x0c0c0c0c
        v_cndmask_b32 {t['aK10']}, {c}, {a}, vcc
        v_mov_b32 {t['sel1']}, {t['sel0']}
        v_mov_b32 {t['sel2']}, {t['sel0']}
        """
        T = [[0x5040504, 0x5040504, 0x5040302, 0x3020100], [0xc0c0504, 0x5040504, 0x5040504, 0x5040504], [None, None, 0xc0c0504, 0x5040504]]
        for r in range(4):
            x += f"s_mov_b32 exec_lo, {hex(0x10001 << 4*r)}\ns_mov_b32 exec_hi, {hex(0x10001 << 4*r)}\n"
            for k in range(3):
                if T[k][r]: x += f"v_mov_b32 {t[f'sel{k}']}, {hex(T[k][r])}\n"
        x += "s_mov_b64 exec, -1\n"
        self.BD = self.X(16); self.PM = V.get(8); D = V.get(8); o2 = V.get(2)
        x += f"""v_lshlrev_b32 {a}, 3, {gk}
        v_sub_u32 {a}, {a}, {l15}
        v_cvt_f32_i32 {a}, {a}
        """
        for s_ in range(8):
            x += f"v_add_f32 {D[s_]}, {fl(s_-12.0)}, {a}\nv_add_f32 {b}, {fl(s_-12.5)}, {a}\nv_sub_f32 {self.PM[s_]}, 1.0, abs({b})\n"
            x += f"v_add_f32_e64 {self.PM[s_]}, {self.PM[s_]}, {self.PM[s_]} clamp\n"
        for k, hw in enumerate((3.0, 2.0, 5.0, 4.0)):
            hs = {3.0: k1, 5.0: k1}.get(hw, str(hw))
            if hs is k1: x += f"s_mov_b32 {k1}, {fl(hw)}\n"
            for d in range(4):
                x += f"v_sub_f32 {o2[0]}, {hs}, abs({D[2*d]}) clamp\nv_sub_f32 {o2[1]}, {hs}, abs({D[2*d+1]}) clamp\n"
                if self.BD.k == 'a': x += f"v_cvt_pk_bf16_f32 {b}, {o2[0]}, {o2[1]}\nv_accvgpr_write_b32 {self.BD[4*k+d]}, {b}\n"
                else: x += f"v_cvt_pk_bf16_f32 {self.BD[4*k+d]}, {o2[0]}, {o2[1]}\n"
        E = {t[n]: n for n in 'aYO aKA0 aKA1 aS20 aS21 aS30 aS31 aR2 aR3 aK10 aK11 aK12 aK13 aK20 aSW sel0 sel1 sel2'.split()}
        rel = {'bL16': ('aE2r', KT), 'b0': ('aSm', SMO), 'aE1r': ('aE1r', SMO+KC1), 'aE2w': ('aE2w', KT),
               'b16': ('aB16', KT+4096), 'aK0': ('aK0', KT), 'aPad': ('aPad', S5-32), 'aUB': ('aUB', UTO-480), 'aYW': ('aYW', YO), 'aYR': ('aYR', YO), 'aUW': ('aUW', UTO)}
        for n, (w, o) in rel.items(): E[t[n]] = (lambda W, v, w=w, o=o: W[w] - o)
        E[t['aK2z']] = lambda W, v: np.where(lane < 32, W['aK23'], sm(v) + DUMP)
        bt = band_tables()
        for k in range(16): E[self.BD[k]] = (lambda W, v, k=k: np.asarray(bt[k >> 2][k & 3], np.int64))
        for k in range(8): E[self.PM[k]] = (lambda W, v, k=k: np.where(W[f'pm{k >> 1}'] >> (16*(k & 1)) & 1, 0x3f800000, 0))
        self.checked(x, E, hook)
        V.put(a, b, c, D, o2, *f.values())
    def values_m(self):
        V, t, L, L16, sV = self.V, self.t, self.L, self.L16, self.sV
        f, x = self.fields(); l15, gk, h, r4, cc, q2, g1 = f.values()
        names = 'aXW aXI aEW aER aT2s aWR'.split()
        for n in names: t[n] = V.get()
        a, b = V.get(), V.get(); k0 = self.st0
        x += f"""v_mul_u32_u24 {a}, {XS1}, {cc}
        v_lshl_add_u32 {a}, {q2}, 6, {a}
        v_lshlrev_b32 {b}, 1, {g1}
        v_xor_b32 {b}, {sV}, {b}
        v_lshl_add_u32 {t['aXW']}, {b}, 4, {a}
        v_and_b32 {b}, 1, {r4}
        v_lshlrev_b32 {b}, 1, {b}
        v_xor_b32 {b}, {gk}, {b}
        v_lshl_add_u32 {b}, {l15}, 2, {b}
        s_mul_i32 {k0}, {sV}, {XS1}
        v_lshl_add_u32 {t['aXI']}, {b}, 4, {k0}
        v_bfe_u32 {b}, {L}, 1, 3
        v_add_u32 {b}, {sV}, {b}
        v_and_b32 {b}, 3, {b}
        v_lshl_add_u32 {b}, {l15}, 2, {b}
        v_lshl_add_u32 {b}, {gk}, 8, {b}
        v_lshlrev_b32 {t['aEW']}, 4, {b}
        s_lshl_b32 {k0}, {sV}, 12
        v_add_u32 {t['aER']}, {k0}, {L16}
        v_lshl_add_u32 {t['aWR']}, {L}, 2, {k0}
        v_lshrrev_b32 {a}, 3, {L}
        v_sub_u32 {a}, {L}, {a}
        v_and_b32 {a}, 3, {a}
        v_lshlrev_b32 {a}, 4, {a}
        v_lshl_add_u32 {t['aT2s']}, {q2}, 6, {a}
        """
        rel = {'aXW': XI, 'aXI': XI, 'aEW': EX, 'aER': EX, 'aT2s': 0, 'aWR': WS}
        self.checked(x, {t[n]: (lambda W, v, n=n, o=o: W[n] - o) for n, o in rel.items()})
        p, A = self.P, self.A
        self.C16r, self.C16i = A.get(4), A.get(4)
        self.T16c, self.T16s, self.Cm, self.Sm = V.get(4), V.get(4), V.get(4), V.get(4)
        k, an, c, s, d = cc, q2, r4, h, g1
        p(f"""v_cvt_f32_u32 {k}, {l15}
        v_cvt_f32_u32 {b}, {gk}
        v_mul_f32 {k}, {fl(1/16)}, {k}
        v_mul_f32 {d}, {b}, {k}
        v_mul_f32 {d}, 4.0, {d}""")
        for jj in range(4):
            p(f"""v_fmamk_f32 {an}, {k}, {fl(jj)}, {d}
            v_cos_f32 {c}, {an}
            v_sin_f32 {s}, {an}
            v_mul_f32 {an}, {fl(1/16)}, {an}
            v_cvt_pk_bf16_f32 {a}, {c}, {s}
            v_cos_f32 {self.T16c[jj]}, {an}
            v_cvt_pk_bf16_f32 {b}, -{s}, {c}
            v_sin_f32 {self.T16s[jj]}, {an}
            v_accvgpr_write_b32 {self.C16r[jj]}, {a}
            v_accvgpr_write_b32 {self.C16i[jj]}, {b}""")
        p(f"""v_lshl_add_u32 {c}, {gk}, 6, {l15}
        v_lshl_add_u32 {c}, {c}, 2, {self.sR}
        v_cvt_f32_u32 {c}, {c}
        v_mul_f32 {c}, {fl(1/2048)}, {c}""")
        for rho in range(4):
            p(f"v_add_f32 {an}, {fl(rho/32)}, {c}\nv_sin_f32 {self.Cm[rho]}, {an}\nv_cos_f32 {self.Sm[rho]}, {an}")
        V.put(a, b, *f.values())
    def values_l(self):
        V, t, L, L16, sV = self.V, self.t, self.L, self.L16, self.sV
        f, x = self.fields(); l15, gk, h, r4, cc, q2, g1 = f.values()
        names = 'aVW0 aVW1 aVW2 aVW3 aVR0 aVR1 aVR2 aVR3 aOW0 aOW1 aOR aO aGW0 aGW1 aGR0 aGR1 aGL aGO'.split()
        for n in names: t[n] = V.get()
        a, b, c, k = V.get(), V.get(), V.get(), V.get(); k0 = self.st0; self.kGY = self.st1
        def vad(dst, q): return f"""v_lshrrev_b32 {a}, 5, {q}
        v_bfe_u32 {b}, {q}, 1, 3
        v_lshlrev_b32 {b}, 2, {b}
        v_xor_b32 {a}, {a}, {b}
        v_and_b32 {b}, 31, {q}
        v_lshl_add_u32 {a}, {b}, 5, {a}
        v_lshl_add_u32 {dst}, {a}, 2, {r4}
        """
        x += f"""v_lshlrev_b32 {r4}, 13, {h}
        v_lshl_add_u32 {k}, {g1}, 4, {l15}
        s_lshl_b32 {k0}, {sV}, 7
        v_lshl_add_u32 {k}, {k}, 1, {k0}
        """ + vad(t['aVW0'], k) + f"v_sub_u32 {c}, {1024-65}, {k}\n" + vad(t['aVW1'], c) + f"v_sub_u32 {c}, {1024-64}, {k}\n" + vad(t['aVW3'], c)
        x += f"v_cmp_ne_u32 vcc, 0, {k}\nv_sub_u32 {c}, 0x400, {k}\nv_mov_b32 {a}, 0x200\ns_lshl_b32 {k0}, {sV}, 12\nv_cndmask_b32 {c}, {a}, {c}, vcc\n" + vad(t['aVW2'], c)
        x += f"""v_and_b32 {a}, 31, {L}
        v_bfe_u32 {b}, {L}, 1, 3
        v_xor_b32 {b}, {b}, {h}
        v_lshl_add_u32 {b}, {a}, 3, {b}
        v_lshl_add_u32 {t['aVR0']}, {b}, 4, {k0}
        v_xor_b32 {t['aVR1']}, 32, {t['aVR0']}
        v_xor_b32 {t['aVR2']}, 64, {t['aVR0']}
        v_xor_b32 {t['aVR3']}, 0x60, {t['aVR0']}
        v_add_u32 {t['aOR']}, {k0}, {L16}
        v_bfe_u32 {a}, {L}, 2, 1
        v_bfe_u32 {b}, {L}, 3, 1
        v_and_b32 {c}, 0x13, {L}
        v_lshl_or_b32 {c}, {a}, 3, {c}
        v_lshl_or_b32 {c}, {b}, 2, {c}
        v_bfe_u32 {k}, {L}, 1, 1
        v_lshl_or_b32 {k}, {a}, 1, {k}
        v_xor_b32 {k}, {k}, {h}
        v_lshl_add_u32 {k}, {c}, 2, {k}
        v_lshl_add_u32 {t['aOW0']}, {k}, 4, {k0}
        v_xor_b32 {t['aOW1']}, 32, {t['aOW0']}
        v_lshl_or_b32 {b}, {h}, 1, {b}
        v_xor_b32 {b}, {b}, {L}
        v_lshlrev_b32 {t['aO']}, 4, {b}
        v_lshrrev_b32 {a}, 3, {L}
        v_and_b32 {b}, 7, {L}
        v_lshlrev_b32 {c}, 4, {b}
        v_lshl_add_u32 {t['aGL']}, {a}, 14, {c}
        v_lshl_add_u32 {t['aGO']}, {a}, 12, {c}
        v_xor_b32 {c}, {b}, {gk}
        s_lshl_b32 {k0}, {sV}, 11
        v_lshl_add_u32 {c}, {c}, 4, {k0}
        v_lshl_add_u32 {t['aGW0']}, {a}, 7, {c}
        v_xor_b32 {t['aGW1']}, 64, {t['aGW0']}
        v_lshl_add_u32 {c}, {b}, 8, {c}
        v_and_b32 {a}, 8, {L}
        v_add3_u32 {t['aGR0']}, {c}, {a}, {self.kGY}
        v_xor_b32 {t['aGR1']}, 64, {t['aGR0']}
        """
        x = f"s_mov_b32 {self.kGY}, {GY}\n" + x
        rel = {n: A0 for n in names[:11]}; rel.update({'aO': 0, 'aGW0': GY, 'aGW1': GY + 1024, 'aGR0': 0, 'aGR1': 0, 'aGL': 0, 'aGO': 0})
        self.checked(x, {t[n]: (lambda W, v, n=n, o=o: W[n] - o) for n, o in rel.items()})
        V.put(a, b, c, k, *f.values())

    def fft1024(self, FA, Dr, Di, waits):
        p = self.P
        for st in range(2):
            for f in range(4):
                if st == 0: p(f's_waitcnt lgkmcnt({waits[f]})')
                p(f'v_mfma_f32_32x32x16_bf16 {Dr}, {FA[4*f:4*f+4]}, {self.CFr[4*f:4*f+4]}, {Dr if f else 0}')
                p(f'v_mfma_f32_32x32x16_bf16 {Di}, {FA[4*f:4*f+4]}, {self.CFi[4*f:4*f+4]}, {Di if f else 0}')
            if st == 0: self.twiddle(Dr, Di, self.TWc, self.TWs, FA)
    def twiddle(self, Dr, Di, Tc, Ts, F):
        p, V = self.P, self.V
        T = V.get(8); n = Dr.n//2
        if self.plain:
            for k in range(0, Dr.n, 4):
                for e in range(4): p(f'v_mul_f32 {T[e]}, {Dr[k+e]}, {Tc[(k+e) % Tc.n]}\nv_mul_f32 {T[4+e]}, {Di[k+e]}, {Tc[(k+e) % Tc.n]}')
                for e in range(4): p(f'v_fmac_f32 {T[e]}, {Di[k+e]}, {Ts[(k+e) % Tc.n]}\nv_fma_f32 {T[4+e]}, -{Dr[k+e]}, {Ts[(k+e) % Tc.n]}, {T[4+e]}')
                for e in range(4): p(f'v_cvt_pk_bf16_f32 {F[k+e]}, {T[e]}, {T[4+e]}')
            V.put(T); return
        for k0 in range(0, n, 2):
            ks = (k0, k0+1)
            tt = {k: (T[4*(k-k0):4*(k-k0)+2], T[4*(k-k0)+2:4*(k-k0)+4]) for k in ks}
            s2 = lambda R, k: R[(2*k) % R.n:(2*k) % R.n+2]
            for k in ks: p(f'v_pk_mul_f32 {tt[k][0]}, {s2(Dr,k)}, {s2(Tc,k)}\nv_pk_mul_f32 {tt[k][1]}, {s2(Di,k)}, {s2(Tc,k)}')
            for k in ks: p(f'v_pk_fma_f32 {tt[k][0]}, {s2(Di,k)}, {s2(Ts,k)}, {tt[k][0]}\nv_pk_fma_f32 {tt[k][1]}, {s2(Dr,k)}, {s2(Ts,k)}, {tt[k][1]} neg_lo:[1,0,0] neg_hi:[1,0,0]')
            for k in ks:
                for e in range(2): p(f'v_cvt_pk_bf16_f32 {F[2*k+e]}, {tt[k][0][e]}, {tt[k][1][e]}')
        V.put(T)
    def fft256(self, F, Dr, Di, waits=None):
        p = self.P; n = F.n//4
        q = lambda R, s: R[4*s:4*s+4]
        for s in range(n):
            if waits: p(f's_waitcnt lgkmcnt({waits[s]})')
            p(f'v_mfma_f32_16x16x32_bf16 {q(Dr,s)}, {q(F,s)}, {self.C16r}, 0\nv_mfma_f32_16x16x32_bf16 {q(Di,s)}, {q(F,s)}, {self.C16i}, 0')
        self.twiddle(Dr, Di, self.T16c, self.T16s, F)
        for s in range(n):
            p(f'v_mfma_f32_16x16x32_bf16 {q(Dr,s)}, {self.C16r}, {q(F,s)}, 0\nv_mfma_f32_16x16x32_bf16 {q(Di,s)}, {self.C16i}, {q(F,s)}, 0')
    def tag4(self, R, TG=None):
        for d in range(4): self.P(f'v_bfi_b32 {R[d]}, {self.MK}, {R[d]}, {(TG or self.TG)[d]}')
    def check16(self, R, acc, t, TG=None):
        p = self.P; TG = TG or self.TG
        for d in range(4):
            p(f'v_bitop3_b32 {t[0]}, {R[d]}, {R[4+d]}, {TG[d]} bitop3:0x7e')
            p(f'v_bitop3_b32 {t[1]}, {R[8+d]}, {R[12+d]}, {TG[d]} bitop3:0x7e')
            p(f'v_or3_b32 {acc}, {t[0]}, {t[1]}, {acc if d else 0}')
        p(f'v_and_b32 {acc}, 0x10001, {acc}\nv_cmp_ne_u32 vcc, 0, {acc}')
    def check_nonce(self, X, n, acc, t):
        for i in range(n):
            self.p(f'v_bitop3_b32 {t if i else acc}, {X[4*i+1]}, {X[4*i+3]}, {self.sN} bitop3:0x7e')
            if i: self.p(f'v_or_b32 {acc}, {t}, {acc}')
        self.p(f'v_cmp_ne_u32 vcc, 0, {acc}')
    def poll(self, issue, check, first_wait):
        ok, re_, lp = self.label('ok'), self.label('re'), self.label('lp')
        cnt = self.st1; outer = self.p
        self.p(f's_waitcnt vmcnt({first_wait})')
        check()
        self.p(f's_cbranch_vccnz {re_}\n{ok}:')
        self.begin_ool(re_)
        self.p(f's_movk_i32 {cnt}, {SPIN_MAX}\n{lp}:\ns_sleep {self.flag("bo", 4)}')
        issue()
        self.p('s_waitcnt vmcnt(0)')
        check()
        self.p(f's_cbranch_vccz {ok}\ns_sub_u32 {cnt}, {cnt}, 1\ns_cmp_lg_u32 {cnt}, 0\ns_cbranch_scc1 {lp}\ns_branch {ok}')
        self.p = outer

    def poll_chunks(self, R, loads, TG, first_wait, acc, tt):
        ok, re_, lp = self.label('ok'), self.label('re'), self.label('lp')
        cnt = self.st1; outer = self.p; n = len(loads); p = self.P
        p(f's_waitcnt vmcnt({first_wait})')
        if n == 4: self.check16(R, acc, tt, TG)
        else:
            for d in range(4): p(f'v_bitop3_b32 {tt[d&1] if d else acc}, {R[d]}, {R[4+d]}, {TG[d]} bitop3:0x7e' + (f'\nv_or3_b32 {acc}, {acc}, {tt[0]}, {tt[1]}' if d == 2 else ''))
            p(f'v_or_b32 {acc}, {acc}, {tt[1]}\nv_and_b32 {acc}, 0x10001, {acc}\nv_cmp_ne_u32 vcc, 0, {acc}')
        p(f's_cbranch_vccnz {re_}\n{ok}:')
        self.begin_ool(re_)
        any_ = self.S.get(2); D = 'row_mask:0xf bank_mask:0xf'
        p(f's_movk_i32 {cnt}, {SPIN_MAX}\n{lp}:\ns_sleep {self.flag("bo", 6)}\ns_mov_b64 {any_}, 0')
        for i in range(n):
            sk = self.label('sk'); q = R[4*i:4*i+4]
            p(f'''v_xor_b32 {acc}, {TG[0]}, {q[0]}
            v_bitop3_b32 {acc}, {q[1]}, {TG[1]}, {acc} bitop3:0xbe
            v_bitop3_b32 {acc}, {q[2]}, {TG[2]}, {acc} bitop3:0xbe
            v_bitop3_b32 {acc}, {q[3]}, {TG[3]}, {acc} bitop3:0xbe
            v_and_b32 {acc}, 0x10001, {acc}
            v_or_b32_dpp {acc}, {acc}, {acc} quad_perm:[1,0,3,2] {D}
            v_or_b32_dpp {acc}, {acc}, {acc} quad_perm:[2,3,0,1] {D}
            v_cmp_ne_u32 vcc, 0, {acc}
            s_or_b64 {any_}, {any_}, vcc
            s_cbranch_vccz {sk}
            s_mov_b64 exec, vcc
            {loads[i]}
            s_mov_b64 exec, -1
            {sk}:''')
        p(f'''s_cmp_eq_u64 {any_}, 0
        s_cbranch_scc1 {ok}
        s_waitcnt vmcnt(0)
        s_sub_u32 {cnt}, {cnt}, 1
        s_cmp_lg_u32 {cnt}, 0
        s_cbranch_scc1 {lp}
        s_branch {ok}''')
        self.S.put(any_); self.p = outer

    def phase1(self, bg1):
        p, V, S, t = self.P, self.V, self.S, self.t
        FA, Dr, Di = V.get(16), V.get(16), V.get(16)
        self.wait_vm('x')
        self.stamp('xland')
        for f in range(4):
            for k in range(2): p(f'ds_read_b64_tr_b16 {FA[4*f+2*k:4*f+2*k+2]}, {t["aXR"]} offset:{512*f+128*k}')
        self.background(bg1, 24)
        self.fft1024(FA, Dr, Di, (6, 4, 2, 0))
        self.bgflush(); self.stamp('f1')
        for g in range(4):
            for jj in range(4): p(f'v_cvt_pk_bf16_f32 {FA[4*g+jj]}, {Dr[4*g+jj]}, {Di[4*g+jj]}')
            p(f'ds_write_b128 {t["aZW"]}, {FA[4*g:4*g+4]} offset:{64*(g>>1)+16*(g&1)}')
        p('s_waitcnt lgkmcnt(0)'); self.stamp('zw'); p('s_barrier'); self.stamp('s1')
        X = V.get(8); xa = V.get()
        for k in range(4):
            a = t[f'aZR{k}']
            p(f'ds_read2st64_b32 {FA[4*k:4*k+2]}, {a} offset0:0 offset1:18\nds_read2st64_b32 {FA[4*k+2:4*k+4]}, {a} offset0:36 offset1:54')
        p(f'ds_read2st64_b32 {X[0:2]}, {t["aZX"]} offset0:0 offset1:18\nds_read2st64_b32 {X[2:4]}, {t["aZX"]} offset0:36 offset1:54')
        for k in range(4):
            p(f's_waitcnt lgkmcnt({8-2*k})')
            p(f'v_mfma_f32_16x16x32_bf16 {Dr[4*k:4*k+4]}, {self.R4a}, {FA[4*k:4*k+4]}, 0\nv_mfma_f32_16x16x32_bf16 {Di[4*k:4*k+4]}, {self.R4b}, {FA[4*k:4*k+4]}, 0')
        p(f's_waitcnt lgkmcnt(0)\nv_mfma_f32_16x16x32_bf16 {X[4:8]}, {self.R4a}, {X[0:4]}, 0')
        for k in range(4):
            o = FA[4*k:4*k+4]
            p(f'''v_cvt_pk_bf16_f32 {o[0]}, {Dr[4*k]}, {Dr[4*k+1]}
            v_cvt_pk_bf16_f32 {o[1]}, {Dr[4*k+2]}, {Dr[4*k+3]}
            v_cvt_pk_bf16_f32 {o[2]}, {Di[4*k]}, {Di[4*k+1]}
            v_cvt_pk_bf16_f32 {o[3]}, {Di[4*k+2]}, {Di[4*k+3]}''')
            self.tag4(o)
            self.vm(f'buffer_store_dwordx4 {o}, {t["aC"]}, {self.rW}, {self.so["t1st"][k]} offen sc1', 't1st')
        self.stamp('t1st')
        S.put(*self.so['t1st'])
        p(f'''v_cvt_pk_bf16_f32 {X[0]}, {X[4]}, {X[5]}
        v_cvt_pk_bf16_f32 {X[2]}, {X[6]}, {X[7]}
        v_mov_b32 {X[1]}, {self.sN}
        v_mov_b32 {X[3]}, {self.sN}
        v_and_b32 {xa}, 0x30, {self.L16}
        s_lshl_b32 {self.st0}, {self.sV}, 4
        s_lshl_b64 exec, 15, {self.st0}
        s_add_u32 {self.st0}, {self.so['wx']}, {(T1X - WX) & 0xffffffff}''')
        self.vm(f'buffer_store_dwordx4 {X[0:4]}, {xa}, {self.rW}, {self.st0} offen sc1', 't1x')
        p('s_mov_b64 exec, -1')
        self.pend = [FA, Dr, Di, X, xa]
        self.free('aXR', 'aZW', 'aZX', 'aC', 'aZR0', 'aZR1', 'aZR2', 'aZR3'); self.A.put(self.R4a, self.R4b)
    def release_pending(self): self.V.put(*self.pend); self.pend = []

    def wstage(self):
        p = self.P
        p(f's_lshl_b32 {self.st0}, {self.sV}, 10\ns_add_u32 m0, {self.st0}, {WS}\ns_nop 0')
        for rho in range(4):
            for s in range(4): p(f'ds_write_addtid_b32 {self.WL[4*rho+s]} offset:{4096*s+256*rho}')
    def cm_load(self):
        self.Cm, self.Sm = self.V.get(4), self.V.get(4)
        o = self.sexpr([(self.sR, 2048)], self.toff['CM'])
        return self.tloads([self.Cm, self.Sm], o, 'cm')
    def mcalc(self, M, W0r, W0i, W1r, W1i):
        p = self.P
        for h in range(2):
            s2 = lambda R: R[2*h:2*h+2]
            l = ((W0r, W1r, M[0], M[2], M[4]), (W0i, W1i, M[1], M[3], M[5]))
            for (a, b, pp, mm, nn) in l: p(f'v_pk_add_f32 {s2(nn)}, {s2(a)}, {s2(b)} neg_lo:[0,1] neg_hi:[0,1]\nv_pk_add_f32 {s2(a)}, {s2(a)}, {s2(b)}')
            for (a, b, pp, mm, nn) in l: p(f'v_pk_fma_f32 {s2(pp)}, {s2(self.Cm)}, {s2(nn)}, {s2(a)} neg_lo:[1,0,0] neg_hi:[1,0,0]\nv_pk_fma_f32 {s2(mm)}, {s2(self.Cm)}, {s2(nn)}, {s2(a)}')
            for (a, b, pp, mm, nn) in l: p(f'v_pk_mul_f32 {s2(nn)}, {s2(self.Sm)}, {s2(nn)}')
    def m_read(self):
        for k in range(8): self.p(f'ds_read2st64_b32 {self.WL[2*k:2*k+2]}, {self.t["aWR"]} offset0:{2*k} offset1:{2*k+1}')
        self.free('aWR')
    def mpre(self):
        p, V, S = self.P, self.V, self.S; R = self.WL
        self.M = [[V.get(4) for _ in range(6)] for _ in range(2)]
        U = V.get(16)
        for u in range(2):
            for i in range(16):
                p(f'v_lshlrev_b32 {U[i]}, 16, {R[i]}' if u == 0 else f'v_and_b32 {U[i]}, 0xffff0000, {R[i]}')
            self.mcalc(self.M[u], U[0:4], U[4:8], U[8:12], U[12:16])
        V.put(self.WL)
        lb, lsp = self.label('nosp'), self.label('spm')
        junk = [V.get(4), V.get(4)]; acc = V.get(); X, X2, X3 = self.SX; M0 = self.M[0]
        self.N2 = [V.get(4), V.get(4)]
        p(f's_cmp_eq_u32 {self.sSP}, 0\ns_cbranch_scc1 {lsp}\n{lb}:')
        self.begin_ool(lsp)
        def check():
            self.check_nonce(X, 4, acc, U[0]); p(f'v_mov_b32 {U[1]}, {acc}'); self.check_nonce(X2, 4, acc, U[0])
            p(f'v_or_b32 {U[1]}, {acc}, {U[1]}'); self.check_nonce(X3, 4, acc, U[0])
            p(f'v_or_b32 {acc}, {acc}, {U[1]}\nv_cmp_ne_u32 vcc, 0, {acc}')
        self.poll(self.sp_loads, check, 0)
        for col, XX in enumerate((X, X2)):
            for half in range(2):
                for i in range(4):
                    src = XX[4*i+2*half]
                    p(f'v_lshlrev_b32 {U[8*half+i]}, 16, {src}\nv_and_b32 {U[8*half+4+i]}, 0xffff0000, {src}')
            MM = [M0[0], M0[1], junk[0], junk[1], M0[4], M0[5]] if col == 0 else [junk[0], junk[1], M0[2], M0[3], self.N2[0], self.N2[1]]
            self.mcalc(MM, U[0:4], U[4:8], U[8:12], U[12:16])
        FX, Xr, Xi = X[0:8], X2[0:8], X2[8:16]
        for s_ in range(2):
            for i in range(4): p(f'v_mov_b32 {FX[4*s_+i]}, {X3[4*i+2*s_]}')
        self.fft256(FX, Xr, Xi)
        N = ' neg_lo:[1,0,0] neg_hi:[1,0,0]'
        for h in range(2):
            s2 = lambda R: R[2*h:2*h+2]; T = U
            nr, ni, n2r, n2i = M0[4], M0[5], self.N2[0], self.N2[1]
            Pr, Pi, Qr, Qi = Xr[0:4], Xi[0:4], Xr[4:8], Xi[4:8]
            p(f"""v_pk_mul_f32 {T[0:2]}, {s2(ni)}, {s2(Qr)} neg_lo:[1,0] neg_hi:[1,0]
            v_pk_mul_f32 {T[2:4]}, {s2(ni)}, {s2(Qi)} neg_lo:[1,0] neg_hi:[1,0]
            v_pk_mul_f32 {T[4:6]}, {s2(n2i)}, {s2(Pr)}
            v_pk_mul_f32 {T[6:8]}, {s2(n2i)}, {s2(Pi)}
            v_pk_fma_f32 {s2(ni)}, {s2(nr)}, {s2(Qr)}, {T[2:4]}
            v_pk_fma_f32 {s2(nr)}, {s2(nr)}, {s2(Qi)}, {T[0:2]}{N}
            v_pk_fma_f32 {s2(n2i)}, {s2(n2r)}, {s2(Pr)}, {T[6:8]}{N}
            v_pk_fma_f32 {s2(n2r)}, {s2(n2r)}, {s2(Pi)}, {T[4:6]}""")
        p(f's_branch {lb}')
        self.end_ool()
        V.put(U, acc, *junk, *self.SX, self.aSP, self.Cm, self.Sm); S.put(*self.oSP)
    def sp_loads(self):
        X, X2, X3 = self.SX; p = self.P
        for col, XX in enumerate((X, X2)):
            for i in range(4): p(f'buffer_load_dwordx4 {XX[4*i:4*i+4]}, {self.aSP[0]}, {self.rW}, {self.oSP[0]} offen offset:{1024*i+16*col} sc1')
        for i in range(4): p(f'buffer_load_dwordx4 {X3[4*i:4*i+4]}, {self.aSP[0]}, {self.rW}, {self.oSP[1]} offen offset:{1024*i} sc1')
    def sp_issue(self):
        p, V, S = self.P, self.V, self.S
        self.SX = [V.get(16), V.get(16), V.get(16)]; self.aSP = a = V.get(2); self.oSP = [S.get(), S.get()]; self.sSP = S.get()
        lb, lsp = self.label('spj'), self.label('spi')
        p(f's_or_b32 {self.sSP}, {self.sG}, {self.sV}\ns_cmp_eq_u32 {self.sSP}, 0\ns_cbranch_scc1 {lsp}\n{lb}:')
        self.begin_ool(lsp)
        p(f"""s_lshl_b32 {self.oSP[0]}, {self.sR}, 14
        s_add_u32 {self.oSP[0]}, {self.oSP[0]}, {WX}
        s_lshl_b32 {self.oSP[1]}, {self.sR}, 14
        s_add_u32 {self.oSP[1]}, {self.oSP[1]}, {T1X}
        v_lshrrev_b32 {a[0]}, 4, {self.L}
        v_and_b32 {a[1]}, 15, {self.L}
        v_lshl_add_u32 {a[0]}, {a[0]}, 6, {a[1]}
        v_lshlrev_b32 {a[0]}, 6, {a[0]}""")
        self.sp_loads()
        p(f's_branch {lb}')
        self.end_ool()

    def t1_issue(self):
        if not hasattr(self, 'TL'): self.TL = self.V.get(16)
        self.ld1 = [f'buffer_load_dwordx4 {self.TL[4*i:4*i+4]}, {self.L16}, {self.rW}, {self.so["t1ld"]} offen offset:{1024*i} sc1' for i in range(4)]
        for x in self.ld1: self.vm(x, 't1ld')
    def middle(self, M, Pr, Pi, Qr, Qi, Fp, Fm, N2=None):
        p, V = self.P, self.V
        ppr, ppi, mmr, mmi, nr, ni = M
        T = V.get(8); N = ' neg_lo:[1,0,0] neg_hi:[1,0,0]'
        for h in range(2):
            s = lambda R: R[2*h:2*h+2]
            a, b, c, d = T[0:2], T[2:4], T[4:6], T[6:8]
            pp = (lambda x: p(unpack_pk(x))) if self.plain else p
            if N2: pp(f'''v_pk_fma_f32 {a}, {s(ppr)}, {s(Pr)}, {s(nr)}
            v_pk_fma_f32 {b}, {s(ppr)}, {s(Pi)}, {s(ni)}
            v_pk_fma_f32 {c}, {s(mmr)}, {s(Qr)}, {s(N2[0])}
            v_pk_fma_f32 {d}, {s(mmr)}, {s(Qi)}, {s(N2[1])}''')
            else: pp(f'''v_pk_mul_f32 {a}, {s(ppr)}, {s(Pr)}
            v_pk_mul_f32 {b}, {s(ppr)}, {s(Pi)}
            v_pk_mul_f32 {c}, {s(mmr)}, {s(Qr)}
            v_pk_mul_f32 {d}, {s(mmr)}, {s(Qi)}''')
            pp(f'''v_pk_fma_f32 {a}, {s(ppi)}, {s(Pi)}, {a}{N}
            v_pk_fma_f32 {b}, {s(ppi)}, {s(Pr)}, {b}
            v_pk_fma_f32 {c}, {s(mmi)}, {s(Qi)}, {c}{N}
            v_pk_fma_f32 {d}, {s(mmi)}, {s(Qr)}, {d}''')
            if not N2: pp(f'''v_pk_fma_f32 {a}, {s(ni)}, {s(Qr)}, {a}{N}
            v_pk_fma_f32 {b}, {s(nr)}, {s(Qr)}, {b}
            v_pk_fma_f32 {c}, {s(nr)}, {s(Pi)}, {c}
            v_pk_fma_f32 {d}, {s(nr)}, {s(Pr)}, {d}{N}
            v_pk_fma_f32 {a}, {s(nr)}, {s(Qi)}, {a}{N}
            v_pk_fma_f32 {b}, {s(ni)}, {s(Qi)}, {b}{N}
            v_pk_fma_f32 {c}, {s(ni)}, {s(Pr)}, {c}
            v_pk_fma_f32 {d}, {s(ni)}, {s(Pi)}, {d}''')
            for e in range(2):
                p(f'v_cvt_pk_bf16_f32 {Fp[2*h+e]}, {b[e]}, {a[e]}\nv_cvt_pk_bf16_f32 {Fm[2*h+e]}, {d[e]}, {c[e]}')
        V.put(T)
    def phase2(self, after_check=None, after_middle=None):
        p, V, S, t = self.P, self.V, self.S, self.t
        TL = self.TL; F, Dr, Di = V.get(16), V.get(16), V.get(16)
        acc = V.get(); tt = V.get(2)
        self.poll_chunks(TL, self.ld1, self.TG, self.after('t1ld'), acc, tt)
        self.stamp('t1ok')
        p(f's_xor_b32 {self.TG[1]}, {self.TG[1]}, 1')
        for s in range(4):
            for i in range(4): p(f'v_mov_b32 {F[4*s+i]}, {TL[4*i+s]}')
            p(f'ds_write_b128 {t["aXW"]}, {F[4*s:4*s+4]} offset:{XI+1024*s}')
        if after_check: after_check()
        p('s_waitcnt lgkmcnt(0)\ns_barrier')
        for s in range(4): p(f'ds_read_b128 {F[4*s:4*s+4]}, {t["aXI"]} offset:{XI+1024*s}')
        self.epoch_advance(self.sC, self.sE, lambda r: f'v_mov_b32 {r}, 0', tt)
        q = lambda R, s: R[4*s:4*s+4]
        self.fft256(F, Dr, Di, (3, 2, 1, 0))
        lsp, ldone = self.label('sp'), self.label('spd')
        p(f's_cmp_eq_u32 {self.sSP}, 0\ns_cbranch_scc1 {lsp}')
        self.middle(self.M[0], q(Dr,0), q(Di,0), q(Dr,1), q(Di,1), q(F,0), q(F,1))
        p(f'{ldone}:')
        self.begin_ool(lsp)
        p('s_nop 7')
        self.middle(self.M[0], q(Dr,0), q(Di,0), q(Dr,1), q(Di,1), q(F,0), q(F,1), self.N2)
        p(f's_branch {ldone}')
        self.end_ool()
        self.middle(self.M[1], q(Dr,2), q(Di,2), q(Dr,3), q(Di,3), q(F,2), q(F,3))
        V.put(*self.M[0], *self.M[1], *self.N2)
        if after_middle: after_middle()
        self.fft256(F, Dr, Di)
        for rho in range(4):
            o = F[4*rho:4*rho+4]
            for s in range(4): p(f'v_cvt_pk_bf16_f32 {o[s]}, {Di[4*s+rho]}, {Dr[4*s+rho]}')
            self.tag4(o)
            p(f'ds_write_b128 {t["aEW"]}, {o} offset:{EX+1024*rho}')
        p('s_waitcnt lgkmcnt(0)\ns_barrier')
        for i in range(4): p(f'ds_read_b128 {Dr[4*i:4*i+4]}, {t["aER"]} offset:{EX+1024*i}')
        for i in range(4):
            p(f's_waitcnt lgkmcnt({3-i})')
            self.vm(f'buffer_store_dwordx4 {Dr[4*i:4*i+4]}, {t["aT2s"]}, {self.rW}, {self.so["t1ld"]} offen offset:{1024*i} sc1', 't2st')
        self.stamp('t2st')
        self.pend = [Dr]
        V.put(F, Di, acc, tt, self.T16c, self.T16s)
        self.free('aXW', 'aXI', 'aEW', 'aER', 'aT2s')
        self.A.put(self.C16r, self.C16i); S.put(self.so['t1ld'], self.sSP)

    def t2_issue(self):
        self.ld2 = [f'buffer_load_dwordx4 {self.TL[4*r:4*r+4]}, {self.t["aTO"]}, {self.rW}, {self.so["t2ld"][r]} offen sc1' for r in range(4)]
        for x in self.ld2: self.vm(x, 't2ld')
    def phase3(self, after_check=None):
        p, V, S, t = self.P, self.V, self.S, self.t
        TL = self.TL; F, Dr, Di = V.get(16), V.get(16), V.get(16)
        acc = V.get(); tt = V.get(2)
        self.poll_chunks(TL, self.ld2, self.TG, self.after('t2ld'), acc, tt)
        self.stamp('t2ok')
        if after_check: after_check()
        for s in range(4):
            for i in range(4): p(f'v_mov_b32 {F[4*s+i]}, {TL[4*i+s]}')
        for s in range(4):
            p(f'v_mfma_f32_16x16x32_bf16 {Dr[4*s:4*s+4]}, {self.R4l}, {F[4*s:4*s+4]}, 0\nv_mfma_f32_16x16x32_bf16 {Di[4*s:4*s+4]}, {self.R4h}, {F[4*s:4*s+4]}, 0')
        for s in range(4):
            e, up = s >> 1, s & 1; w = []
            for hi, D in ((0, Dr), (1, Di)):
                for ml in range(2):
                    o = TL[4*s+2*hi+ml]
                    p(f'v_cvt_pk_bf16_f32 {o}, {"-" if up else ""}{D[4*s+2*ml+1]}, {D[4*s+2*ml]}')
                    if not up: a, off = t['aVW0'], 128*e + 8*hi
                    elif e: a, off = t['aVW1'], 8*(1-hi)
                    else: a, off = t[f'aVW{2+hi}'], 0
                    w.append(f'ds_write_b32 {a}, {o} offset:{A0 + off + 4096*ml}')
            for x in w: p(x)
        p('s_waitcnt lgkmcnt(0)\ns_barrier')
        for f in range(4): p(f'ds_read_b128 {F[4*f:4*f+4]}, {t[f"aVR{f}"]} offset:{A0}')
        self.fft1024(F, Dr, Di, (3, 2, 1, 0))
        for row, D in ((0, Di), (1, Dr)):
            for hf in range(2):
                o = F[8*row+4*hf:8*row+4*hf+4]
                for k in range(4): p(f'v_cvt_pk_bf16_f32 {o[k]}, {D[8*hf+2*k]}, {D[8*hf+2*k+1]}')
                p(f'ds_write_b128 {t[f"aOW{hf}"]}, {o} offset:{A0+2048*row}')
        for i in range(4): p(f'ds_read_b128 {Dr[4*i:4*i+4]}, {t["aOR"]} offset:{A0+1024*i}')
        for i in range(4):
            p(f's_waitcnt lgkmcnt({3-i})')
            self.vm(f'buffer_store_dwordx4 {Dr[4*i:4*i+4]}, {t["aO"]}, {self.rO}, {self.so["oA"][i>>1]} offen offset:{1024*(i&1)} {self.flag("out", "sc1")}', 'out')
        self.stamp('outst')
        V.put(F, Di, acc, tt)

    def tu_produce(self, side=None):
        p, V, t = self.P, self.V, self.t
        R = V.get(16)
        for b in range(4):
            for h in range(2): p(f'ds_read_b64_tr_b16 {R[4*b+2*h:4*b+2*h+2]}, {t["aTR"]} offset:{US+1024*b+512*h}')
        for b in range(4):
            p(f's_waitcnt lgkmcnt({6-2*b})')
            self.tag4(R[4*b:4*b+4], self.TU)
            self.vm(f'buffer_store_dwordx4 {R[4*b:4*b+4]}, {t["aTO"]}, {self.rW}, {self.so["tust"]} offen offset:{64*b} sc1', 'tust')
            if side: side[b]()
        self.pend.append(R); self.free('aTR'); self.S.put(self.so['tust'])
    def tu_issue(self):
        if not hasattr(self, 'UL'): self.UL = self.V.get(16)
        self.ldu = [f'buffer_load_dwordx4 {self.UL[4*i:4*i+4]}, {self.L16}, {self.rW}, {self.so["tuld"]} offen offset:{1024*i} sc1' for i in range(4)]
        for x in self.ldu: self.vm(x, 'tuld')
    def tu_consume(self):
        p, V = self.P, self.V
        acc, tt = V.get(), V.get(2)
        self.poll_chunks(self.UL, self.ldu, self.TG, self.after('tuld'), acc, tt)
        for i in range(4): p(f'ds_write_b128 {self.t["aUW"]}, {self.UL[4*i:4*i+4]} offset:{UTO+256*i}')
        V.put(acc, tt, self.UL); self.free('aUW'); self.S.put(self.so['tuld'])

    def cmul(self, items):
        p = self.P
        for i, (d, x, e) in enumerate(items): p(f'v_pk_mul_f32 {self.CT[2*i:2*i+2]}, {x}, {e} op_sel:[0,0] op_sel_hi:[0,1]')
        for i, (d, x, e) in enumerate(items): p(f'v_pk_fma_f32 {d}, {x}, {e}, {self.CT[2*i:2*i+2]} op_sel:[1,1,0] op_sel_hi:[1,0,1] neg_lo:[0,1,0]')
    def krow(self, row, X, neg=False):
        k = len(self.kq)//2; o = self.KO[2*k:2*k+2]
        for u in range(2):
            self.P(f'v_cvt_pk_bf16_f32 {o[u]}, {X[u][0]}, {"-" if neg else ""}{X[u][1]}')
            self.kq.append(f'ds_write_addtid_b32 {o[u]} offset:{KB+KT+528*row+256*u}')
        if k == 3: self.kflush()
    def kflush(self):
        for x in self.kq: self.p(x)
        self.kq = []
    def km0(self): self.p(f's_mov_b32 m0, {self.sKM}')
    def kgen_setup(self, landed=None):
        p, V, S, t = self.P, self.V, self.S, self.t
        st0 = self.st0; self.kq = []
        self.E = {n: [V.get(2), V.get(2)] for n in (1, 8, 128)}
        self.KY = [V.get(2), V.get(2)]; self.KX = [V.get(2), V.get(2)]; self.CT = V.get(4); self.KO = V.get(8)
        dt, t0, t1, t2 = V.get(), V.get(), V.get(), V.get(); z = V.get(4)
        LOG2E = math.log2(math.e); hi = struct.unpack('<f', struct.pack('<f', LOG2E))[0]
        p(f"""s_and_b32 {st0}, {self.sD}, 1
        s_lshl_b32 {st0}, {st0}, 4
        s_lshr_b32 {self.sLD}, {self.sLD}, {st0}
        s_lshl_b32 {self.sLD}, {self.sLD}, 16
        s_lshr_b32 {self.sDS}, {self.sDS}, {st0}
        s_lshl_b32 {self.sDS}, {self.sDS}, 16
        v_mov_b32 {t0}, {fl(hi)}
        v_mul_f32 {t1}, {self.sLD}, {t0}
        v_fma_f32 {t2}, {self.sLD}, {t0}, -{t1}
        v_mov_b32 {t0}, {fl(LOG2E-hi)}
        v_exp_f32 {dt}, {t1}
        v_fmac_f32 {t2}, {self.sLD}, {t0}
        v_mul_f32 {t2}, {fl(math.log(2))}, {t2}
        v_fmac_f32 {dt}, {dt}, {t2}
        v_cvt_pk_bf16_f32 {dt}, {dt}, {dt}
        v_lshlrev_b32 {dt}, 16, {dt}""")
        self.km0()
        self.stamp('p0'); self.wait_vm('par'); self.stamp('par')
        if landed: landed()
        un = lambda d, src, u: p(f'v_lshlrev_b32 {d}, 16, {src}' if u == 0 else f'v_and_b32 {d}, 0xffff0000, {src}')
        PR = self.PR
        for u in range(2):
            X, Y = self.KX[u], self.KY[u]
            un(X[0], PR[2], u); un(X[1], PR[3], u); un(Y[0], PR[4], u); un(Y[1], PR[5], u)
            p(f'v_pk_mul_f32 {X}, {X}, {Reg("v", dt.b, 1)}' if False else f'v_mul_f32 {X[0]}, {dt}, {X[0]}\nv_mul_f32 {X[1]}, {dt}, {X[1]}')
        self.cmul([(self.KY[u], self.KY[u], self.KX[u]) for u in range(2)])
        for u in range(2):
            a, b = z[2*u], z[2*u+1]
            un(a, PR[0], u); un(b, PR[1], u)
            p(f"""v_mul_f32 {a}, {dt}, {a}
            v_mul_f32 {b}, {dt}, {b}
            v_mul_f32 {a}, {fl(LOG2E)}, {a}
            v_mul_f32 {b}, {fl(1/(2*math.pi))}, {b}""")
        for n in (1, 8, 128):
            for u in range(2):
                a, b = z[2*u], z[2*u+1]; E = self.E[n][u]
                if n == 1: p(f'v_exp_f32 {t0}, {a}\nv_fract_f32 {t1}, {b}')
                else: p(f'v_mul_f32 {t0}, {fl(n)}, {a}\nv_mul_f32 {t1}, {fl(n)}, {b}\nv_exp_f32 {t0}, {t0}\nv_fract_f32 {t1}, {t1}')
                p(f"""v_cos_f32 {E[0]}, {t1}
                v_sin_f32 {E[1]}, {t1}
                v_mul_f32 {E[0]}, {t0}, {E[0]}
                v_mul_f32 {E[1]}, {t0}, {E[1]}""")
        V.put(dt, t0, t1, t2, z, self.PR)
    def zero_fill(self, early):
        z = self.V.get(4); t = self.t
        for k in range(4): self.p(f'v_mov_b32 {z[k]}, 0')
        if early: self.p(f"ds_write_b128 {t['bE']}, {z}")
        else: self.p(f"ds_write_b128 {t['bE']}, {z} offset:{UTO-512}\nds_write_b128 {t['bL16']}, {z} offset:{SMO}\nds_write_b128 {t['bL16']}, {z} offset:{SMO+1024}")
        self.V.put(z)
    def kgen_units(self):
        p, A, V = self.P, self.A, self.V; X, Y, E = self.KX, self.KY, self.E; U = []
        aKR = self.t['aKR']
        def first():
            for u in range(2):
                p(f'v_mov_b32 {self.KO[u]}, 0x3f80'); self.kq.append(f'ds_write_addtid_b32 {self.KO[u]} offset:{KB+KT+256*u}')
            self.krow(1, E[8], True)
        U.append(first)
        def unit(dst, src, e, row, neg=False):
            def f():
                self.cmul([(dst[u], src[u], e[u]) for u in range(2)])
                if row is not None: self.krow(row, dst, neg)
            U.append(f)
        for b in range(2, 16): unit(X, E[8] if b == 2 else X, E[8], b, True)
        U.append(lambda: self.krow(16, Y))
        for a in range(2):
            if a: unit(Y, Y, E[128], 24)
            for j in range(1, 8): unit(X, Y if j == 1 else X, E[1], 16+8*a+j)
        def reads1():
            self.kflush()
            self.BF, self.AF = self.X(32), [self.X(32), self.X(32), self.X(32)]
            for k in range(8):
                p(f'ds_read_b128 {self.BF[4*k:4*k+4]}, {aKR} offset:{KT+64*k}')
                p(f'ds_read_b128 {self.AF[0][4*k:4*k+4]}, {aKR} offset:{KT+16*528+64*k}')
        U.append(reads1)
        unit(E[1], E[1], E[1], None); unit(E[8], E[1], E[1], None)
        for a in range(2):
            unit(Y, Y, E[128], 4*a)
            for j in range(1, 4): unit(X, Y if j == 1 else X, E[1], 4*a+j)
        for a in range(4):
            unit(Y, Y, E[128], 8+2*a); unit(X, Y, E[8], 9+2*a)
        for a in range(9): unit(Y, Y, E[128], 16+a)
        def reads2():
            self.kflush()
            for k in range(1, 3):
                for i in range(8): p(f'ds_read_b128 {self.AF[k][4*i:4*i+4]}, {aKR} offset:{KT+16*528*(k-1)+64*i}')
            V.put(*E[1], *E[8], *E[128], *X, *Y, self.CT, self.KO); self.free('aKR')
        U.append(reads2)
        return U
    def kgen_mfma(self, waits):
        p, V, t = self.P, self.V, self.t
        KD = V.get(12); d = V.get(); O = V.get(6)
        for k in range(3):
            p(f's_waitcnt lgkmcnt({waits[k]})')
            for i in range(8):
                p(f'v_mfma_f32_16x16x32_bf16 {KD[4*k:4*k+4]}, {self.AF[k][4*i:4*i+4]}, {self.BF[4*i:4*i+4]}, {KD[4*k:4*k+4] if i else 0}')
            if k == 0: p(f'v_cmp_eq_u32 vcc, 0, {self.L}\nv_mov_b32 {d}, {self.sDS}\nv_cndmask_b32 {d}, 0, {d}, vcc')
            if k == 1:
                p(f'v_add_f32 {KD[0]}, {KD[0]}, {d}')
                for i in range(2): p(f'v_cvt_pk_bf16_f32 {O[i]}, {KD[2*i]}, {KD[2*i+1]}')
            if k == 2:
                p(f'ds_write_b64 {t["aK0"]}, {O[0:2]} offset:{KT}')
                for i in range(2, 4): p(f'v_cvt_pk_bf16_f32 {O[i]}, {KD[2*i]}, {KD[2*i+1]}')
                for rho in range(4): p(f'ds_write_b16{"_d16_hi" if rho & 1 else ""} {t[f"aK1{rho}"]}, {O[2+(rho>>1)]}')
        self.putX(self.BF, *self.AF)
        R = V.get(6)
        p(f"""ds_read_b64 {R[0:2]}, {t['aE1r']} offset:{SMO+KC1}
        ds_read_b32 {R[2]}, {t['aE1r']} offset:{SMO+KC1+8}
        ds_read_b32 {R[4]}, {t['b0']} offset:{SMO+KC1+252}
        ds_read_b32 {R[5]}, {t['b0']} offset:{SMO+KC1+256}""")
        for i in range(4, 6): p(f'v_cvt_pk_bf16_f32 {O[i]}, {KD[2*i]}, {KD[2*i+1]}')
        for cp in range(2):
            for rho in range(4): p(f'ds_write_b16{"_d16_hi" if rho & 1 else ""} {t["aK2z" if rho else "aK20"]}, {O[4+(rho>>1)]} offset:{CPB*cp + (48-16*rho if rho else 0)}')
        V.put(KD, d, O); self.KR = R
        self.free('aK0', 'aK10', 'aK11', 'aK12', 'aK13', 'aK20', 'aK2z', 'aE1r')
    def kexpand(self):
        p, V, S, A, t = self.P, self.V, self.S, self.A, self.t
        sLO = S.get(); R = self.KR; O = V.get(12); Q = V.get(6); z = V.get(4); self.PA = V.get(4); PM = self.PM
        p(f"""s_mov_b32 {sLO}, 0x01000100
        ds_read_u16 {self.PA[0]}, {t['b0']} offset:{SMO+KE2+64}
        s_waitcnt lgkmcnt(11)
        v_perm_b32 {O[0]}, {R[0]}, {R[0]}, {sLO}
        v_alignbit_b32 {O[1]}, {R[1]}, {R[0]}, 16
        v_perm_b32 {O[2]}, {R[1]}, {R[1]}, {sLO}
        v_alignbit_b32 {O[3]}, {R[2]}, {R[1]}, 16
        ds_write_b128 {t['bE']}, {O[0:4]} offset:{KT+512}
        ds_read_b64 {Q[0:2]}, {t['bL16']} offset:{KT-8}
        ds_read_b128 {Q[2:6]}, {t['bL16']} offset:{KT}
        s_waitcnt lgkmcnt(12)""")
        for k in range(3): p(f'v_perm_b32 {O[4+k]}, {R[5]}, {R[4]}, {t[f"sel{k}"]}')
        p(f'v_mov_b32 {O[7]}, 0')
        for k in range(4): p(f'v_mov_b32 {z[k]}, 0')
        p(f"ds_write_b128 {t['b16']}, {O[4:8]} offset:{KT+4096}\nds_write_b128 {t['aPad']}, {z} offset:{S5-32}")
        self.K2, self.K3, self.KA = [Quads([self.X(4) for _ in range(n)]) for n in (6, 4, 17)]
        for dl in range(3, 9):
            for h in range(2): p(f'ds_read2_b32 {self.K2[4*(dl-3)+2*h:4*(dl-3)+2*h+2]}, {t["aR2"]} offset0:{8*(8-dl)+2*h} offset1:{8*(8-dl)+2*h+1}')
        p('s_waitcnt lgkmcnt(14)')
        p(f'v_lshlrev_b32 {self.PA[0]}, 16, {self.PA[0]}')
        w = t['aE2w']
        p(f'ds_write_b128 {w}, {Q[2:6]} offset:{KT}')
        for k in range(4): p(f'v_alignbit_b32 {O[k]}, {Q[k+2]}, {Q[k+1]}, 16')
        p(f'ds_write_b128 {w}, {O[0:4]} offset:{KT+64}')
        for k in range(4): p(f'v_mov_b32 {O[4+k]}, {Q[k+1]}')
        p(f'ds_write_b128 {w}, {O[4:8]} offset:{KT+128}')
        for k in range(4): p(f'v_alignbit_b32 {O[8+k]}, {Q[k+1]}, {Q[k]}, 16')
        p(f'ds_write_b128 {w}, {O[8:12]} offset:{KT+192}')
        for k in range(8): p(f'v_mul_f32 {PM[k]}, {self.PA[0]}, {PM[k]}')
        for k in range(4): p(f'v_cvt_pk_bf16_f32 {self.PA[k]}, {PM[2*k]}, {PM[2*k+1]}')
        for dl in range(4, 8):
            for h in range(2): p(f'ds_read2_b32 {self.K3[4*(dl-4)+2*h:4*(dl-4)+2*h+2]}, {t["aR3"]} offset0:{8*(7-dl)+2*h} offset1:{8*(7-dl)+2*h+1}')
        for e in range(17):
            for k in range(2): p(f'ds_read_b64_tr_b16 {self.KA[4*e+2*k:4*e+2*k+2]}, {t[f"aKA{k}"]} offset:{256*e}')
        V.put(R, O, Q, z, PM); S.put(sLO)
        self.free('bE', 'bL16', 'b0', 'b16', 'aE2w', 'aPad', 'sel0', 'sel1', 'sel2', 'aKA0', 'aKA1', 'aR2', 'aR3')
    def band_loads(self):
        self.BD = self.X(16)
        o = self.S.get(); self.p(f's_mov_b32 {o}, {self.toff["BAND"]}')
        return self.tloads([self.BD[4*k:4*k+4] for k in range(4)], o, 'band')

    def conv_plan(self):
        l = []
        s2 = lambda j: [('r2', c, ('S2', j), ('K2', 2*c-j)) for c in range(2, 8) if 2*c-8 <= j <= 2*c-3]
        s3 = lambda j: [('r3', c, ('S3', j), ('K3', c-j)) for c in range(4, 8) if j <= c-4]
        later = {26: s2(4) + s3(0), 28: s2(5) + s3(1), 30: s3(2) + s3(3), 36: s2(6), 38: s2(7), 44: s2(8), 46: s2(9), 48: s2(10), 50: s2(11)}
        for f in range(-7, 57):
            if f % 8 == 0 and 0 <= f <= 40:
                for k in range(4 if f <= 24 else 2): l.append(('band', f//8, ('BD', k), ('B', f)))
            if f in (0, 8, 16, 24): l.append(('patch', 4 + f//8, ('PA', 0), ('B', f)))
            for c in range(8):
                e = 8*c - f
                if 0 <= e <= 16: l.append(('dense', c, ('KA', e), ('B', f)))
            if f in (18, 20, 22, 23): l += s2({18: 0, 20: 1, 22: 2, 23: 3}[f])
            l += later.get(f, [])
            if f == 24: l.append(('mark', 'half0'))
        return l
    def conv_setup(self):
        V, A = self.V, self.A
        self.ACC = V.get(32); self.BT = V.get(8); self.BO = V.get(4)
        self.ring = {'B': [self.X(4) for _ in range(7)], 'S': [self.X(4) for _ in range(3)]}
        self.plan = self.conv_plan(); self.pc = 0; self.dsq = []; self.started = set()
        self.slot = {}; self.issued = set(); self.written = set(); self.post = []; self.nband = 0
        self.lastuse = {}; self.order = []
        for i, x in enumerate(self.plan):
            if x[0] == 'mark': continue
            for k in x[2:4]:
                if k[0] in ('B', 'S2', 'S3'):
                    if k not in self.lastuse: self.order.append(k)
                    self.lastuse[k] = i
        self.TGY = V.get(2); t = self.t; t['odd'] = V.get()
        self.p(f's_xor_b32 {self.TG[1]}, {self.TG[1]}, 1')
        self.p(f'v_and_b32 {t["odd"]}, 1, {self.L}\nv_sub_u32 {t["odd"]}, 0, {t["odd"]}')
        for d in range(2):
            self.p(f'v_mov_b32 {self.TGY[d]}, {self.TG[d]}\nv_mov_b32 {self.BO[0]}, {self.TG[2+d]}\nv_bfi_b32 {self.TGY[d]}, {t["odd"]}, {self.BO[0]}, {self.TGY[d]}')
        self.free('odd')
    def conv_reg(self, k):
        if k[0] == 'KA': return self.KA[4*k[1]:4*k[1]+4]
        if k[0] == 'K2': return self.K2[4*(k[1]-3):4*(k[1]-3)+4]
        if k[0] == 'K3': return self.K3[4*(k[1]-4):4*(k[1]-4)+4]
        if k[0] == 'BD': return self.BD[4*k[1]:4*k[1]+4]
        if k[0] == 'PA': return self.PA
        return self.slot[k]
    def conv_try_read(self):
        if not self.order: return 0
        k = self.order[0]; pool = self.ring['B' if k[0] == 'B' else 'S']; t = self.t
        if not pool: return 0
        if k[0] == 'S2' and not all((ty, c) in self.written for ty in (0, 1) for c in range((128*k[1]+127)//256 + 1)): return 0
        if k[0] == 'S3' and not all((ty, k[1]) in self.written for ty in (2, 3)): return 0
        R = pool.pop(0); self.slot[k] = R; self.order.pop(0)
        if k[0] == 'B':
            self.p(f'ds_read_b128 {R}, {t["aUB"]} offset:{UTO-32+64*k[1]}'); self.dsq.append(k); return 1
        for h in range(2):
            self.p(f'ds_read_b64_tr_b16 {R[2*h:2*h+2]}, {t[("aS2" if k[0] == "S2" else "aS3") + str(h)]} offset:{(272 if k[0] == "S2" else 544)*k[1]}')
            self.dsq.append(k)
        return 2
    def conv_prime(self, n=5):
        for _ in range(n): self.conv_try_read()
    def conv_post(self, force=False):
        if not self.post or (self.post[0][0] > self.pc and not force): return 0
        _, x, key = self.post.pop(0)
        self.p(x)
        if key: self.dsq.append(None); self.written.add(key)
        return 1
    def conv_run(self, until=None, count=None, side=None):
        p = self.P; side = list(side or []); n = 0
        end = len(self.plan) if until is None and count is None else None
        if until: end = self.plan.index(('mark', until))
        if count: end = min(len(self.plan), self.pc + count)
        total = end - self.pc; every = max(1, total//(len(side)+1)) if side else 0
        while self.pc < end:
            x = self.plan[self.pc]
            if x[0] == 'mark': self.pc += 1; continue
            kind, c, ka, kbk = x
            for k in (ka, kbk):
                while k[0] in ('B', 'S2', 'S3') and k not in self.slot:
                    if not self.conv_try_read(): assert self.conv_post(True), (x, self.order[:3])
            need = [j for j, key in enumerate(self.dsq) if key in (ka, kbk)]
            if need:
                left = min(15, len(self.dsq) - 1 - max(need))
                p(f's_waitcnt lgkmcnt({left})'); self.dsq = self.dsq[len(self.dsq)-left:] if left else []
            if kind == 'band':
                while len(self.post) > 3: self.conv_post(True)
                b = self.nband & 1; self.nband += 1; D = self.BT[4*b:4*b+4]; o = self.BO[2*b:2*b+2]
                p(f'v_mfma_f32_16x16x32_bf16 {D}, {self.conv_reg(ka)}, {self.conv_reg(kbk)}, 0')
                self.post += [(self.pc+3, f'v_cvt_pk_bf16_f32 {o[0]}, {D[0]}, {D[1]}', None), (self.pc+3, f'v_cvt_pk_bf16_f32 {o[1]}, {D[2]}, {D[3]}', None),
                              (self.pc+4, f'ds_write_b64 {self.t["aSW"]}, {o} offset:{(S5, S3, S9, S7)[ka[1]]+544*c}', (ka[1], c))]
            else:
                acc = self.ACC[4*c:4*c+4]
                p(f'v_mfma_f32_16x16x32_bf16 {acc}, {self.conv_reg(ka)}, {self.conv_reg(kbk)}, {acc if c in self.started else 0}')
                self.started.add(c)
            for k in (ka, kbk):
                if self.lastuse.get(k) == self.pc: self.ring['B' if k[0] == 'B' else 'S'].append(self.slot[k])
            self.pc += 1; n += 1
            if side and n % every == 0: side.pop(0)()
            elif self.conv_post(): self.conv_post()
            else: self.conv_try_read()
        for f in side: f()
    def ds_other(self, n): self.dsq += [None]*n
    def y_stage(self, half):
        p, V = self.P, self.V; O = V.get(8)
        for i in range(4):
            c = 4*half+i
            p(f'v_cvt_pk_bf16_f32 {O[2*i]}, {self.ACC[4*c]}, {self.ACC[4*c+1]}\nv_cvt_pk_bf16_f32 {O[2*i+1]}, {self.ACC[4*c+2]}, {self.ACC[4*c+3]}')
        for i in range(4): p(f'ds_write_b64 {self.t["aYW"]}, {O[2*i:2*i+2]} offset:{YO+512*(4*half+i)}')
        V.put(O); self.ds_other(4)
    def y_read(self, half):
        self.YR = self.V.get(8)
        for k in range(4): self.p(f'ds_read_b64_tr_b16 {self.YR[2*k:2*k+2]}, {self.t["aYR"]} offset:{YO+2048*half+32*k}')
        self.ds_other(4)
    def y_stores(self, half):
        YR = self.YR
        def mk(k):
            def f():
                for d in range(2): self.p(f'v_bfi_b32 {YR[2*k+d]}, {self.MK}, {YR[2*k+d]}, {self.TGY[d]}')
                self.vm(f'buffer_store_dwordx2 {YR[2*k:2*k+2]}, {self.t["aYO"]}, {self.rW}, {self.so["tyst"][half]} offen offset:{128*k} sc1', 'yst')
                if k == 3: self.V.put(YR)
            return f
        return [mk(k) for k in range(4)]
    def ty_issue(self, half):
        if not hasattr(self, 'YL'): self.YL = [self.V.get(8), self.V.get(8)]; self.ldy = {}
        Y = self.YL[half]; o = [self.splus(self.so['tyld'], 8192*half + (i << 17)) for i in range(2)]
        self.ldy[half] = [f'buffer_load_dwordx4 {Y[4*i:4*i+4]}, {self.t["aGL"]}, {self.rW}, {o[i]} offen sc1' for i in range(2)]
        for x in self.ldy[half]: self.vm(x, f'tyld{half}')
    def ty_consume(self, half):
        p, V, t = self.P, self.V, self.t; Y = self.YL[half]
        acc, tt = V.get(), V.get(2)
        self.poll_chunks(Y, self.ldy[half], self.TU, self.after(f'tyld{half}'), acc, tt)
        if half == 0: self.epoch_advance(self.sTau, self.sE2, lambda r: f's_lshl_b32 {self.st0}, {self.sGam}, 7\ns_add_u32 {self.st0}, {self.st0}, 256\nv_mov_b32 {r}, {self.st0}', tt)
        for i in range(2): p(f'ds_write_b128 {t[f"aGW{i}"]}, {Y[4*i:4*i+4]} offset:{GY+1024*i}')
        for k in range(2): p(f'ds_read2_b64 {Y[4*k:4*k+4]}, {t[f"aGR{k}"]} offset0:0 offset1:16')
        for k in range(2):
            p(f's_add_u32 {self.st0}, {self.so["oY"]}, {(half << 22) + 32768*k}\ns_waitcnt lgkmcnt({1-k})')
            self.vm(f'buffer_store_dwordx4 {Y[4*k:4*k+4]}, {t["aGO"]}, {self.rO}, {self.st0} offen {self.flag("out", "sc1")}', 'yout')
        V.put(acc, tt)

    def finish(self):
        p, V = self.P, self.V
        if self.stamps:
            p('s_waitcnt vmcnt(0)')
            self.stamp('end'); c1 = self.S.get(2); p(f's_memtime {c1}\ns_waitcnt lgkmcnt(0)')
            p(f's_sub_u32 {c1[0]}, {c1[0]}, {self.clk0[0]}'); self.stn.append(('cyc', c1))
            d = V.get(); a = V.get()
            p(f's_lshl_b32 {self.st0}, s2, 2\ns_add_u32 {self.st0}, {self.st0}, {self.sV}\ns_lshl_b32 {self.st0}, {self.st0}, 7\ns_add_u32 {self.st0}, {self.st0}, {DBG + (131072 if self.rn == "B" else 0)}')
            self.names = getattr(self, 'names', {}); self.names[self.rn] = [n for n, _ in self.stn]
            p(f'v_mov_b32 {a}, 0\ns_mov_b64 exec, 1')
            for i, (n, r) in enumerate(self.stn):
                p(f'v_mov_b32 {d}, {r[0]}\nbuffer_store_dword {d}, {a}, {self.rW}, {self.st0} offen offset:{4*i}\ns_nop 1')
            amp = [k for k in self.o if k.startswith('amp=')]
            if amp and self.rn == 'A':
                _, nm, wg = amp[0].split('=')
                r = dict(self.stn)[nm]; e = dict(self.stn)['end']; t = self.sa
                p(f'''s_lshl_b32 {self.st0}, s2, 2
                s_add_u32 {self.st0}, {self.st0}, {self.sV}
                s_cmp_lg_u32 {self.st0}, {4*int(wg)}
                s_cbranch_scc1 L_end
                s_sub_u32 {self.st0}, {r[0]}, {self.stn[0][1][0]}
                s_min_u32 {self.st0}, {self.st0}, 10000
                s_mul_i32 {self.st0}, {self.st0}, 20
                L_amp:
                s_sleep 8
                s_memrealtime {t}
                s_waitcnt lgkmcnt(0)
                s_sub_u32 {self.st1}, {t[0]}, {e[0]}
                s_cmp_lt_u32 {self.st1}, {self.st0}
                s_cbranch_scc1 L_amp''')
        p('s_endpgm' if self.rn == 'A' else 'L_end:\ns_endpgm')

    def emit(self):
        pad = 0; errs = []
        for q in self.mains + self.ool: pad += q.pad(); errs += q.verify()
        for e in errs: print('VERIFY', e, file=sys.stderr)
        hdr = open('cdna_kernels/%s.s.ref' % NAME).read().split('; Override launch')[0]
        nv = NV; na = NA
        s = hdr + (('; cyc\n' if self.o.get('cyc') else '') + '; stamps: ' + ' '.join(self.names['A']) + '\n; stampsB: ' + ' '.join(self.names['B']) + '\n' if self.stamps else '')
        s += f'; @launch grid=(512,1,1) block=(256,1,1) lds={LDS_BYTES}\n'
        s += f'.amdgcn_target "amdgcn-amd-amdhsa--gfx950"\n.text\n.globl {NAME}_kernel\n.p2align 8\n.type {NAME}_kernel,@function\n{NAME}_kernel:\n'
        s += ''.join(q.text() for q in self.mains + self.ool) + 'L_codeend:\n'
        s += '; constant tables: DFT fragments, twiddles, window masks, per-lane addresses\n.p2align 8\n.type L_tbl,@object\nL_tbl:\n'
        tb = self.table
        s += ''.join('.long ' + ','.join(hex(int(x)) for x in tb[i:i+16]) + '\n' for i in range(0, len(tb), 16)) + 'L_tblend:\n.size L_tbl, .-L_tbl\n'
        s += f'''.section .rodata,"a"
.p2align 6
.amdhsa_kernel {NAME}_kernel
  .amdhsa_next_free_vgpr {nv+na}
  .amdhsa_next_free_sgpr 102
  .amdhsa_accum_offset {nv}
  .amdhsa_group_segment_fixed_size 0
  .amdhsa_kernarg_size 120
  .amdhsa_user_sgpr_count 2
  .amdhsa_user_sgpr_kernarg_segment_ptr 1
  .amdhsa_system_sgpr_workgroup_id_x 1
  .amdhsa_float_denorm_mode_32 3
.end_amdhsa_kernel
'''
        n = [sum(1 for i in q.ins if i.states) for q in self.mains]
        print(f'instrs {n} pad {pad} regs {[(r, v.hi, a.hi, s_.hi) for r, v, a, s_ in self.roles]} errs {len(errs)} table {4*len(tb)} lds {LDS_BYTES}', file=sys.stderr)
        return s

def interleave(units, side, g):
    side = list(side); every = max(1, len(units)//(len(side)+1)) if side else 0
    for i, f in enumerate(units):
        f()
        if side and (i+1) % every == 0: side.pop(0)()
    for f in side: f()

def build_v9(stamps=False, opts=None):
    g = Gen(stamps, opts); p = g.P
    geti = lambda k, d: int(g.flag(k, d))
    plain = g.flag('plain', '23')
    g.role('A')
    g.prologue()
    g.t['uld'] = g.V.get(); x = g.V.get()
    p(f"v_lshrrev_b32 {x}, 3, {g.L}\nv_and_b32 {g.t['uld']}, 0x70, {g.L16}\nv_lshl_add_u32 {g.t['uld']}, {x}, 11, {g.t['uld']}"); g.V.put(x)
    if g.flag('tlb'): g.tlb_touch()
    ul = g.loads_u(); up = geti('up', 1)
    if up == 0:
        for f in ul: f()
    g.early_values()
    pa = g.flag('pa'); early = []
    if pa: early = [g.w_prefetch(), g.loads_wx]
    else: g.loads_wx()
    g.dft_consts()
    g.stamp('b')
    if up == 1:
        for f in ul: f()
    g.w_setup()
    g.offsets1(); g.radix4_fwd(); g.values_u()
    p('s_waitcnt lgkmcnt(0)'); g.TG, g.sN = g.tags(g.sE); g.mask(); g.TU, n2 = g.tags(g.sE2); g.S.put(n2)
    g.stamp('cons')
    g.plain = '1' in plain
    if pa == '2':
        for f in early: f()
        early = []
    g.phase1(early + g.values_e() + (ul if up == 2 else []))
    g.V.put(g.TWc, g.TWs)
    for f in g.wx_steps(): f()
    g.free('wxo', 'r4s', 'odd'); g.stamp('x2')
    G = g.w_loads()
    ts = geti('ts', 0)
    if ts:
        for f in (ul if up == 3 else []) + G: f()
    else:
        g.wait_vm('u'); g.stamp('x3')
        g.tu_produce(G)
        g.stamp('tust')
    g.offsets2(); g.S.put(Reg('s', 4, 28)); g.late_offsets()
    g.release_pending(); g.values_m()
    g.stamp('vm')
    if g.flag('dbgw'): g.wait_vm('t1x'); g.stamp('a1')
    if ts == 1: g.wait_vm('u'); g.tu_produce(); g.stamp('tust')
    g.wait_vm('W'); g.stamp('ack'); g.V.put(g.WXV, g.PF); g.wstage()
    if pa: g.V.put(g.PW)
    if g.flag('tlb'): g.V.put(g.TT)
    if ts == 1: g.release_pending()
    p('s_waitcnt lgkmcnt(0)\ns_barrier')
    if geti('z1', 0): p(f's_sleep {geti("z1", 0)}')
    g.t1_issue(); g.sp_issue()
    g.stamp('t1ld')
    g.m_read()
    if ts == 2: g.tu_produce(); g.stamp('tust'); g.release_pending()
    p('s_waitcnt lgkmcnt(0)')
    g.stamp('twok')
    g.mpre()
    g.stamp('mpre')
    g.plain = '2' in plain
    g.phase2()
    g.radix4_inv(); g.release_pending()
    g.values_l(); g.twiddles_again()
    p(f's_xor_b32 {g.TU[1]}, {g.TU[1]}, 1')
    g.wait_vm('t2st')
    p(f's_sleep {geti("z2", 4)}')
    g.t2_issue()
    g.stamp('t2ld')
    g.plain = '3' in plain
    g.phase3(None if geti('zy', 0) else (lambda: g.ty_issue(0)))
    if geti('zy', 0): p(f's_sleep {geti("zy", 0)}'); g.ty_issue(0)
    g.ty_issue(1)
    g.ty_consume(0)
    g.stamp('ty0')
    g.ty_consume(1)
    g.finish()
    g.role('B'); g.plain = False
    g.prologue()
    if geti('zp', 0): p(f's_sleep {geti("zp", 0)}')
    if not g.flag('pa'): g.w_prefetch()()
    g.values_b0(); g.zero_fill(True); g.offsets_b()
    vp = geti('vp', 1)
    if vp == 0: g.values_b()
    p('s_waitcnt lgkmcnt(0)'); g.S.put(Reg('s', 4, 28)); g.TG, g.sN = g.tags(g.sE2); g.mask()
    g.kgen_setup()
    g.stamp('ks')
    U = g.kgen_units()
    for f in U[:-1]: f()
    g.kflush()
    g.stamp('u24')
    p('s_waitcnt vmcnt(0)'); g.V.put(g.PF)
    if not g.flag('pa'): g.V.put(g.PW)
    U[-1]()
    if vp == 1: g.values_b()
    g.S.put(g.sKM)
    g.zero_fill(False)
    def tui():
        if geti('zt', 0): p(f's_sleep {geti("zt", 0)}')
        g.tu_issue()
    if geti('tp', 2) == 0: tui()
    g.stamp('ku')
    g.kgen_mfma((15, 11, 3)); g.stamp('kmf')
    if geti('tp', 2) == 1: tui()
    g.kexpand()
    if geti('tp', 2) == 2: tui()
    p('s_waitcnt lgkmcnt(0)\ns_barrier')
    g.stamp('kdone')
    g.tu_consume()
    g.conv_setup()
    p('s_waitcnt lgkmcnt(0)\ns_barrier')
    g.stamp('c3')
    g.conv_prime()
    g.conv_run(until='half0')
    g.y_stage(0)
    g.conv_run(count=geti('c1', 14))
    wn = lambda: min(15, len(g.dsq) - 1 - max(i for i, k in enumerate(g.dsq) if k is None)) if None in g.dsq else 15
    p(f's_waitcnt lgkmcnt({wn()})\ns_barrier')
    g.y_read(0)
    g.conv_run(count=geti('c2', 14))
    p(f's_waitcnt lgkmcnt({wn()})')
    g.stamp('y0')
    g.conv_run(side=g.y_stores(0))
    g.y_stage(1)
    p('s_waitcnt lgkmcnt(0)\ns_barrier')
    g.y_read(1); p('s_waitcnt lgkmcnt(0)')
    for f in g.y_stores(1): f()
    g.stamp('cv')
    g.finish()
    return g

if __name__ == '__main__':
    g = globals()['build_' + sys.argv[2]]('-s' in sys.argv, {k: True for k in sys.argv[3:]})
    open(sys.argv[1], 'w').write(g.emit())
```
